```python
import torch

def _softmax(x, axis=-1):
    return torch.softmax(x, dim=axis)

def _gelu(x):
    return torch.nn.functional.gelu(x, approximate='tanh')

def _silu(x):
    return torch.nn.functional.silu(x)

def _sigmoid(x):
    return torch.sigmoid(x)

def _layernorm(x, axis=-1, eps=1e-05):
    m = x.mean(dim=axis, keepdim=True)
    v = x.var(dim=axis, keepdim=True, unbiased=False)
    return (x - m) / torch.sqrt(v + eps)

def _scatter_add(tgt, idx, src, axis=0):
    return tgt.clone().index_add_(axis, idx, src)

def _segment_sum(src, seg, n):
    out = torch.zeros((n,) + src.shape[1:], dtype=src.dtype)
    return out.index_add_(0, seg, src)

def _pad(x, pw):
    flat = tuple((v for pair in reversed(pw) for v in pair))
    return torch.nn.functional.pad(x, flat)
kernel_name = 'sequential_preLN__mha_block__mixer_gmlp__prompt'

def setup_inputs():

    _w = lambda a: (lambda t: t.to(torch.bfloat16) if t.is_floating_point() else t)(torch.as_tensor(a))

    def _A_setup():
        B, S, D, H = (1, 2048, 576, 32)
        return {'x': _w((lambda *s: torch.randn(*s, dtype=torch.bfloat16) * 0.05)(B, S, D)), 'wqkv': _w((lambda *s: torch.randn(*s, dtype=torch.bfloat16) * 0.05)(D, 3 * D)), 'wo': _w((lambda *s: torch.randn(*s, dtype=torch.bfloat16) * 0.05)(D, D))}
    _A_in = _A_setup()

    def _B_setup():
        B, S, D, F = (1, 2048, 576, 4608)
        Fh = F // 2
        return {'x': _w((lambda *s: torch.randn(*s, dtype=torch.bfloat16) * 0.05)(B, S, D)), 'w_in': _w((lambda *s: torch.randn(*s, dtype=torch.bfloat16) * 0.8)(D, 2 * Fh)), 'w_sp': _w(0.01 * (lambda *s: torch.randn(*s, dtype=torch.bfloat16) * 0.8)(S, S)), 'b_sp': _w(1.0 + 0.01 * (lambda *s: torch.randn(*s, dtype=torch.bfloat16) * 0.05)(S)), 'w_out': _w((lambda *s: torch.randn(*s, dtype=torch.bfloat16) * 0.05)(Fh, D))}
    _B_in = _B_setup()
    return {'A_x': _A_in['x'], 'A_wqkv': _A_in['wqkv'], 'A_wo': _A_in['wo'], 'B_x': _B_in['x'], 'B_w_in': _B_in['w_in'], 'B_w_sp': _B_in['w_sp'], 'B_b_sp': _B_in['b_sp'], 'B_w_out': _B_in['w_out']}

def reference(A_x, A_wqkv, A_wo, B_x, B_w_in, B_w_sp, B_b_sp, B_w_out):

    def _A_ref(x, wqkv, wo):
        B, S, D = x.shape
        H = 32
        Dh = D // H
        qkv = (lambda x, *d: x.permute(*d))((x @ wqkv).reshape(B, S, 3, H, Dh), 2, 0, 3, 1, 4)
        q, k, v = (qkv[0], qkv[1], qkv[2])
        scores = torch.einsum('bhqd,bhkd->bhqk', q, k) * Dh ** (-0.5)
        p = _softmax(scores, axis=-1)
        o = torch.einsum('bhqk,bhkd->bhqd', p, v)
        return (lambda x, *d: x.permute(*d))(o, 0, 2, 1, 3).reshape(B, S, D) @ wo

    def _B_ref(x, w_in, w_sp, b_sp, w_out):
        B, S, D = x.shape
        F = w_in.shape[-1]
        Fh = F // 2
        z = _gelu(torch.einsum('bsd,df->bsf', x, w_in))
        z1 = z[..., :Fh].clone()
        z2 = _layernorm(z[..., Fh:], axis=-1)
        g = torch.einsum('ts,bsf->btf', w_sp, z2) + b_sp[None, :, None]
        return torch.einsum('bsf,fd->bsd', z1 * g, w_out)
    x = A_x
    h = x + _A_ref(_layernorm(x, axis=-1), A_wqkv, A_wo)
    h2 = h + _B_ref(_layernorm(h, axis=-1), B_w_in, B_w_sp, B_b_sp, B_w_out)
    return h2
```

```python
import struct

def f32bits(x):
    return struct.unpack("<I", struct.pack("<f", x))[0]

class Asm:
    def __init__(self):
        self.lines = []
    def __call__(self, s):
        for ln in s.split("\n"):
            ln = ln.strip()
            if ln:
                if ln.startswith("buffer_") and "offset:" in ln:
                    assert int(ln.split("offset:")[1].split()[0]) < 4096, ln
                if ln.startswith("ds_") and " offset:" in ln:
                    assert int(ln.split("offset:")[1].split()[0]) < 65536, ln
                if ln.startswith("v_mfma") and self.lines and self.lines[-1].startswith("  v_pk_"):
                    self.lines.append("  s_nop 1")
                self.lines.append("  " + ln)
    def label(self, l):
        self.lines.append(l + ":")
    def comment(self, c):
        self.lines.append("  ; " + c)
    def text(self):
        return "\n".join(self.lines) + "\n"

def vr(b, n=4):
    return f"v[{b}:{b+n-1}]"
def ar(b, n=4):
    return f"a[{b}:{b+n-1}]"
def sr(b, n=4):
    return f"s[{b}:{b+n-1}]"

def srd(a, d, base_lo, base_hi, size, off_sgpr=None, off_imm=None):
    if off_sgpr is None and off_imm is None:
        a(f"s_mov_b32 s{d}, s{base_lo}")
        a(f"s_mov_b32 s{d+1}, s{base_hi}")
    else:
        first = True
        if off_imm is not None:
            a(f"s_add_u32 s{d}, s{base_lo}, {off_imm}")
            a(f"s_addc_u32 s{d+1}, s{base_hi}, 0")
            first = False
        if off_sgpr is not None:
            if first:
                a(f"s_add_u32 s{d}, s{base_lo}, s{off_sgpr}")
                a(f"s_addc_u32 s{d+1}, s{base_hi}, 0")
            else:
                a(f"s_add_u32 s{d}, s{d}, s{off_sgpr}")
                a(f"s_addc_u32 s{d+1}, s{d+1}, 0")
    a(f"s_mov_b32 s{d+2}, {size}")
    a(f"s_mov_b32 s{d+3}, 0x00020000")

def kernel_header(name):
    return f""".globl {name}
.p2align 8
.type {name},@function
{name}:
"""

def kernel_desc(name, vgpr, agpr=0, sgpr=96):
    acc = (vgpr + 3) // 4 * 4
    nfv = acc + agpr if agpr else vgpr
    return f""".p2align 6
.amdhsa_kernel {name}
  .amdhsa_next_free_vgpr {nfv}
  .amdhsa_next_free_sgpr {sgpr}
  .amdhsa_accum_offset {acc}
  .amdhsa_group_segment_fixed_size 0
  .amdhsa_kernarg_size 88
  .amdhsa_user_sgpr_count 2
  .amdhsa_user_sgpr_kernarg_segment_ptr 1
  .amdhsa_system_sgpr_workgroup_id_x 1
.end_amdhsa_kernel
"""

def magic_div(d, maxn):
    for sh in range(8, 24):
        m = (1 << sh) // d + 1
        if all((n * m) >> sh == n // d for n in range(maxn + 1)) and maxn * m < (1 << 32) and m < (1 << 24):
            return m, sh
    raise Exception("no magic")

class VmTrack:
    def __init__(self, a):
        self.a = a; self.ops = []
    def op(self, tag):
        self.ops.append(tag)
    def wait(self, *tags):
        idx = max(i for i, t in enumerate(self.ops) if t in tags)
        n = len(self.ops) - 1 - idx
        self.a(f"s_waitcnt vmcnt({min(n, 63)})")
```

```python
import sys, math
from asmlib import *

S, D, H, DH, F, FH = 2048, 576, 32, 18, 4608, 2304
QKVT_OFF = 0
O_OFF = 7077888
H_OFF = 9437184
Z1_OFF = 11796480
Z2T_OFF = 21233664
U_OFF = 30670848
ST_OFF = 40108032
HS_OFF = 40108032 + 262144
CS_OFF = HS_OFF + 294912
QSCALE = (DH ** -0.5) * math.log2(math.e)

def common_prologue(a, nwg, end_label):
    a(f"s_cmp_ge_u32 s2, {nwg}")
    a(f"s_cbranch_scc1 {end_label}")
    a("v_lshrrev_b32 v1, 6, v0")
    a("s_nop 0")
    a("v_readfirstlane_b32 s12, v1")
    a("v_and_b32 v1, 63, v0")
    a("v_and_b32 v2, 15, v0")
    a("v_bfe_u32 v3, v0, 4, 2")

def dma_voffsets(a, vbase, ninstr, cpr, ldw_bytes, vt):
    m, sh = magic_div(cpr, ninstr * 64)
    for i in range(ninstr):
        a(f"v_add_u32 v{vt}, {i*64}, v1")
        a(f"v_mul_u32_u24 v{vt+1}, {m}, v{vt}")
        a(f"v_lshrrev_b32 v{vt+1}, {sh}, v{vt+1}")
        a(f"v_mul_u32_u24 v{vt+2}, {cpr}, v{vt+1}")
        a(f"v_sub_u32 v{vt+2}, v{vt}, v{vt+2}")
        a(f"v_bfe_u32 v{vt+3}, v{vt+1}, 2, 2")
        a(f"v_lshlrev_b32 v{vt+3}, 3, v{vt+3}")
        a(f"v_lshrrev_b32 v{vt}, 4, v{vt+1}")
        a(f"v_lshl_add_u32 v{vt+3}, v{vt}, 2, v{vt+3}")
        a(f"v_and_b32 v{vt}, 3, v{vt+1}")
        a(f"v_add_u32 v{vt+3}, v{vt+3}, v{vt}")
        a(f"v_mul_u32_u24 v{vt+3}, {ldw_bytes}, v{vt+3}")
        a(f"v_lshl_add_u32 v{vbase+i}, v{vt+2}, 4, v{vt+3}")

def bf16r(a, v):
    a(f"v_cvt_pk_bf16_f32 v{v}, v{v}, v{v}")
    a(f"v_lshlrev_b32 v{v}, 16, v{v}")

def layernorm_regs(a, xbase, nrb, nreg, vt, sones, ncols):
    a(f"v_xor_b32 v{vt+12}, 16, v1")
    a(f"v_lshlrev_b32 v{vt+12}, 2, v{vt+12}")
    a(f"v_xor_b32 v{vt+13}, 32, v1")
    a(f"v_lshlrev_b32 v{vt+13}, 2, v{vt+13}")
    for rb in range(nrb):
        xb = xbase + rb * nreg
        for i in range(4):
            a(f"v_mov_b32 v{vt+i}, 0")
        for i in range(nreg):
            a(f"v_dot2_f32_bf16 v{vt+(i&1)}, v{xb+i}, s{sones}, v{vt+(i&1)}")
            a(f"v_dot2_f32_bf16 v{vt+2+(i&1)}, v{xb+i}, v{xb+i}, v{vt+2+(i&1)}")
        a("s_nop 3")
        a(f"v_add_f32 v{vt}, v{vt}, v{vt+1}")
        a(f"v_add_f32 v{vt+2}, v{vt+2}, v{vt+3}")
        for x in (12, 13):
            a(f"ds_bpermute_b32 v{vt+1}, v{vt+x}, v{vt}")
            a(f"ds_bpermute_b32 v{vt+3}, v{vt+x}, v{vt+2}")
            a("s_waitcnt lgkmcnt(0)")
            a(f"v_add_f32 v{vt}, v{vt}, v{vt+1}")
            a(f"v_add_f32 v{vt+2}, v{vt+2}, v{vt+3}")
        inv = f32bits(1.0 / ncols)
        a(f"v_mul_f32 v{vt}, {inv:#x}, v{vt}")
        a(f"v_mul_f32 v{vt+2}, {inv:#x}, v{vt+2}")
        a(f"v_fma_f32 v{vt+2}, -v{vt}, v{vt}, v{vt+2}")
        a(f"v_max_f32 v{vt+2}, 0, v{vt+2}")
        bf16r(a, vt)
        bf16r(a, vt + 2)
        a(f"v_add_f32 v{vt+2}, {f32bits(1e-5):#x}, v{vt+2}")
        bf16r(a, vt + 2)
        a(f"v_sqrt_f32 v{vt+2}, v{vt+2}")
        a("s_nop 0")
        bf16r(a, vt + 2)
        a(f"v_rcp_f32 v{vt+4}, v{vt+2}")
        a("s_nop 0")
        a(f"v_mov_b32 v{vt+5}, v{vt+4}")
        a(f"v_mul_f32 v{vt+6}, v{vt}, v{vt+4}")
        a(f"v_sub_f32 v{vt+6}, 0, v{vt+6}")
        a(f"v_mov_b32 v{vt+7}, v{vt+6}")
        for i in range(nreg):
            t = vt + 8 + 2 * (i & 1)
            a(f"v_lshlrev_b32 v{t}, 16, v{xb+i}")
            a(f"v_and_b32 v{t+1}, 0xffff0000, v{xb+i}")
            a(f"v_pk_fma_f32 v[{t}:{t+1}], v[{t}:{t+1}], v[{vt+4}:{vt+5}], v[{vt+6}:{vt+7}]")
            a(f"v_cvt_pk_bf16_f32 v{xb+i}, v{t}, v{t+1}")


import os
PROF = bool(os.environ.get("PROF"))
PROF_OFF = 56 << 20
def prof_init(a, wsreg=8):
    if not PROF: return
    srd(a, 88, wsreg, wsreg + 1, 4 << 20, off_imm=PROF_OFF)
    a("s_lshl_b32 s92, s2, 4")
    a("s_add_u32 s92, s92, s12")
    a("s_lshl_b32 s92, s92, 6")
def prof_stamp(a, idx, vtmp):
    if not PROF: return
    a("s_memtime s[94:95]")
    a("s_waitcnt lgkmcnt(0)")
    a(f"v_mov_b32 v{vtmp}, s94")
    a(f"buffer_store_dword v{vtmp}, off, s[88:91], s92 offset:{idx*4}")

def prof_real(a, idx, vtmp):
    if not PROF: return
    a("s_memrealtime s[94:95]")
    a("s_waitcnt lgkmcnt(0)")
    a(f"v_mov_b32 v{vtmp}, s94")
    a(f"buffer_store_dword v{vtmp}, off, s[88:91], s92 offset:{idx*4}")

def xlane_sum_g(a, v, t):
    a(f"v_mov_b32 v{t}, v{v}")
    a("s_nop 1")
    a(f"v_permlane32_swap_b32 v{v}, v{t}")
    a("s_nop 1")
    a(f"v_add_f32 v{v}, v{v}, v{t}")
    a(f"v_mov_b32 v{t}, v{v}")
    a("s_nop 1")
    a(f"v_permlane16_swap_b32 v{v}, v{t}")
    a("s_nop 1")
    a(f"v_add_f32 v{v}, v{v}, v{t}")

def ln_scalars(a, pairs, n):
    inv = f32bits(1.0 / n)
    for s, q in pairs:
        a(f"v_mul_f32 v{s}, {inv:#x}, v{s}")
        a(f"v_mul_f32 v{q}, {inv:#x}, v{q}")
    for s, q in pairs:
        a(f"v_fma_f32 v{q}, -v{s}, v{s}, v{q}")
    for s, q in pairs:
        a(f"v_max_f32 v{q}, 0, v{q}")
    for s, q in pairs:
        bf16r(a, s); bf16r(a, q)
    for s, q in pairs:
        a(f"v_add_f32 v{q}, {f32bits(1e-5):#x}, v{q}")
    for s, q in pairs:
        bf16r(a, q)
    for s, q in pairs:
        a(f"v_sqrt_f32 v{q}, v{q}")
    a("s_nop 0")
    for s, q in pairs:
        bf16r(a, q)
    for s, q in pairs:
        a(f"v_rcp_f32 v{q}, v{q}")
    a("s_nop 0")
    for s, q in pairs:
        a(f"v_mul_f32 v{s}, v{s}, v{q}")
    for s, q in pairs:
        a(f"v_sub_f32 v{s}, 0, v{s}")

GK0 = -2.0 * 0.7978845608028654 * math.log2(math.e)
GK1 = GK0 * 0.044715
def gelu_quad(a, x, t, sK1, vK0, sONE):
    for h in (0, 2):
        a(f"v_pk_mul_f32 v[{t+h}:{t+h+1}], v[{x+h}:{x+h+1}], v[{x+h}:{x+h+1}]")
    for h in (0, 2):
        a(f"v_pk_fma_f32 v[{t+h}:{t+h+1}], v[{t+h}:{t+h+1}], s[{sK1}:{sK1+1}], v[{vK0}:{vK0+1}]")
    for h in (0, 2):
        a(f"v_pk_mul_f32 v[{t+h}:{t+h+1}], v[{t+h}:{t+h+1}], v[{x+h}:{x+h+1}]")
    for j in range(4):
        a(f"v_exp_f32 v{t+j}, v{t+j}")
    for h in (0, 2):
        a(f"v_pk_add_f32 v[{t+h}:{t+h+1}], v[{t+h}:{t+h+1}], s[{sONE}:{sONE+1}]")
    for j in range(4):
        a(f"v_rcp_f32 v{t+j}, v{t+j}")
    for h in (0, 2):
        a(f"v_pk_mul_f32 v[{x+h}:{x+h+1}], v[{x+h}:{x+h+1}], v[{t+h}:{t+h+1}]")

def bcast_sel(reg, pos, n):
    base = reg & ~1
    lo = [0] * n; hi = [1] * n
    lo[pos] = reg & 1; hi[pos] = reg & 1
    return f"v[{base}:{base+1}]", f"op_sel:[{','.join(map(str,lo))}] op_sel_hi:[{','.join(map(str,hi))}]"

def row16_sum(a, regs):
    for sh in (8, 4, 2, 1):
        for v in regs:
            a(f"v_add_f32_dpp v{v}, v{v}, v{v} row_ror:{sh} row_mask:0xf bank_mask:0xf")
```

```python
from asmlib import *
from gen_common import *
def gen_k1():
    a = Asm()
    NB = 7; PITCH = NB * 32; KT = 32 * PITCH
    XB = 32; WB = 176
    common_prologue(a, 256, "L_k1_end")
    a("s_load_dwordx4 s[4:7], s[0:1], 0")
    a("s_load_dwordx2 s[8:9], s[0:1], 80")
    a("s_and_b32 s13, s2, 7")
    a("s_lshr_b32 s14, s2, 3")
    a("s_lshr_b32 s10, s13, 1")
    a("s_lshl_b32 s10, s10, 2")
    a("s_and_b32 s15, s14, 3")
    a("s_add_u32 s10, s10, s15")
    a("s_and_b32 s11, s13, 1")
    a("s_lshl_b32 s11, s11, 3")
    a("s_lshr_b32 s15, s14, 2")
    a("s_add_u32 s11, s11, s15")
    a("s_mul_i32 s28, s10, 147456")
    a("s_mul_i32 s29, s11, 224")
    a("s_mov_b32 s30, 0x3f803f80")
    a("s_lshl_b32 s31, s12, 5")
    a("v_add_u32 v4, s31, v2")
    a("v_mul_u32_u24 v4, 1152, v4")
    a("v_lshl_add_u32 v4, v3, 4, v4")
    a("v_add_u32 v5, 18432, v4")
    dma_voffsets(a, 6, NB, 14, 3456, 14)
    a("v_lshrrev_b32 v13, 2, v1")
    a(f"v_mul_u32_u24 v13, {PITCH}, v13")
    a("v_and_b32 v14, 3, v1")
    a("v_lshl_add_u32 v13, v14, 3, v13")
    a("s_waitcnt lgkmcnt(0)")
    srd(a, 16, 4, 5, 147456, off_sgpr=28)
    srd(a, 20, 6, 7, 576 * 3456)
    srd(a, 24, 8, 9, 1728 * 4096, off_imm=QKVT_OFF)
    prof_init(a); prof_real(a, 14, 232); prof_stamp(a, 8, 232)
    for rb in range(2):
        for ks in range(18):
            a(f"buffer_load_dwordx4 {vr(XB + (rb*18+ks)*4)}, v{4+rb}, s[16:19], 0 offen offset:{ks*64}")
    a(f"s_mul_i32 s32, s12, {KT}")
    a("s_mul_i32 s33, s12, 110592")
    a("s_add_u32 s33, s33, s29")
    def dma_group(c):
        for i in range(NB):
            a(f"s_add_u32 m0, s32, {c*4*KT + i*1024}")
            if i == 0:
                a(f"s_add_u32 s34, s33, {c*4*110592}")
            else:
                a("s_nop 0")
            a(f"buffer_load_dwordx4 v{6+i}, s[20:23], s34 offen lds")
    for c in range(3):
        dma_group(c)
    a("s_waitcnt vmcnt(21)")
    prof_stamp(a, 9, 232)
    for c in range(3, 5):
        dma_group(c)
    for i in range(56):
        a(f"v_accvgpr_write_b32 a{i}, 0")
    layernorm_regs(a, XB, 2, 72, 14, 30, 576)
    def wreads(ks):
        st = WB + (ks & 1) * 28
        for nb in range(NB):
            for rd in range(2):
                a(f"ds_read_b64_tr_b16 v[{st+nb*4+rd*2}:{st+nb*4+rd*2+1}], v13 offset:{(ks%4)*KT + rd*16*PITCH + nb*32}")
    prof_stamp(a, 10, 232)
    a("s_waitcnt vmcnt(28)" if not PROF else "s_waitcnt vmcnt(29)")
    a("s_barrier")
    prof_stamp(a, 11, 232)
    wreads(0)
    for ks in range(18):
        if ks + 1 < 18:
            if (ks + 1) % 4 == 0:
                c = (ks + 1) // 4
                a(f"s_waitcnt vmcnt({(4-c)*7 + (2 if PROF else 0)})")
                a("s_barrier")
                a(f"v_add_u32 v13, {4*KT}, v13")
            wreads(ks + 1)
            a("s_waitcnt lgkmcnt(14)")
        else:
            a("s_waitcnt lgkmcnt(0)")
        st = WB + (ks & 1) * 28
        for nb in range(NB):
            for rb in range(2):
                acc = (rb * NB + nb) * 4
                a(f"v_mfma_f32_16x16x32_bf16 {ar(acc)}, {vr(XB+(rb*18+ks)*4)}, {vr(st+nb*4)}, {ar(acc)}")
    prof_stamp(a, 12, 232)
    a("s_nop 7")
    a("v_lshlrev_b32 v14, 12, v2")
    a("v_lshl_add_u32 v14, v3, 3, v14")
    a("s_lshl_b32 s31, s12, 6")
    a("v_add_u32 v14, s31, v14")
    a("s_mul_i32 s35, s11, 112")
    a("s_lshl_b32 s36, s10, 8")
    for nb in range(NB):
        a(f"s_add_u32 s37, s35, {nb*16}")
        a("s_cmp_lt_u32 s37, 576")
        a(f"s_mov_b32 s39, {f32bits(QSCALE):#x}")
        a("s_cselect_b32 s38, s39, 1.0")
        a("s_lshl_b32 s37, s37, 12")
        a("s_add_u32 s37, s37, s36")
        for rb in range(2):
            acc = (rb * NB + nb) * 4
            t = 16 + rb * 8
            for j in range(4):
                a(f"v_accvgpr_read_b32 v{t+j}, a{acc+j}")
            for j in range(4):
                a(f"v_mul_f32 v{t+j}, s38, v{t+j}")
            a(f"v_cvt_pk_bf16_f32 v{t+4}, v{t}, v{t+1}")
            a(f"v_cvt_pk_bf16_f32 v{t+5}, v{t+2}, v{t+3}")
            a(f"buffer_store_dwordx2 v[{t+4}:{t+5}], v14, s[24:27], s37 offen offset:{rb*32}")
    a("s_waitcnt vmcnt(0)")
    prof_stamp(a, 13, 232); prof_real(a, 15, 232)
    a.label("L_k1_end")
    a("s_endpgm")
    return a.text(), dict(vgpr=236, agpr=56, grid=256, block=256, lds=20 * KT)
```

```python
from asmlib import *
from gen_common import *

import os
DEBUG = bool(os.environ.get('K2DEBUG'))
def gen_k2():
    a = Asm()
    KP = 4160; ONES = 18 * KP; VB = 83296; VP = 4112
    LDS = 157440
    Q1 = 16; Q2 = 20
    KA = [24, 32]; KB = [28, 36]
    VF = [40, 48]
    SB_ = [64, 80]
    P = 56
    O = 96
    a(f"s_cmp_ge_u32 s2, 256")
    a(f"s_cbranch_scc1 L_k2_end")
    a("s_load_dwordx2 s[8:9], s[0:1], 80")
    a("v_lshrrev_b32 v1, 6, v0")
    a("s_nop 0")
    a("v_readfirstlane_b32 s12, v1")
    a("v_and_b32 v1, 63, v0")
    a("s_and_b32 s13, s2, 7")
    a("s_lshr_b32 s14, s2, 3")
    a("s_lshl_b32 s10, s13, 2")
    a("s_and_b32 s15, s14, 3")
    a("s_add_u32 s10, s10, s15")
    a("s_lshr_b32 s11, s14, 2")
    a("s_mul_i32 s28, s10, 18")
    a("v_lshlrev_b32 v2, 4, v1")
    a("s_waitcnt lgkmcnt(0)")
    srd(a, 16, 8, 9, 1728 * 4096, off_imm=QKVT_OFF)
    srd(a, 24, 8, 9, 2048 * 1152, off_imm=O_OFF)
    prof_init(a); prof_real(a, 5, 116); prof_stamp(a, 0, 116)
    a("s_mul_i32 s29, s12, 9")
    for ch in range(2):
        for i in range(9):
            a(f"s_add_u32 s30, s29, {i}")
            a("s_lshr_b32 s31, s30, 1")
            a("s_and_b32 s30, s30, 1")
            a("s_lshl_b32 s30, s30, 10")
            a(f"s_add_u32 s30, s30, {ch*2048}")
            a(f"s_mul_i32 s32, s31, {KP}")
            a(f"s_mul_i32 s33, s31, {VP}")
            a(f"s_add_u32 s33, s33, {VB - 18*VP}")
            a("s_add_u32 s34, s31, 558")
            a("s_cmp_lt_u32 s31, 18")
            a("s_cselect_b32 s32, s32, s33")
            a("s_cselect_b32 s31, s31, s34")
            a("s_add_u32 m0, s32, s30")
            a("s_add_u32 s31, s31, s28")
            a("s_add_u32 s31, s31, 576")
            a("s_lshl_b32 s31, s31, 12")
            a("s_add_u32 s31, s31, s30")
            a("buffer_load_dwordx4 v2, s[16:19], s31 offen lds")
    a("v_and_b32 v3, 31, v1")
    a("v_lshrrev_b32 v4, 5, v1")
    a("s_lshl_b32 s30, s11, 8")
    a("s_lshl_b32 s31, s12, 5")
    a("s_add_u32 s30, s30, s31")
    a("v_add_u32 v5, s30, v3")
    a("v_lshlrev_b32 v6, 1, v5")
    a("v_lshl_add_u32 v7, v4, 15, v6")
    a("s_lshl_b32 s31, s28, 12")
    for j in range(8):
        a(f"s_add_u32 s32, s31, {j*4096}")
        a(f"buffer_load_ushort v{(Q1 if (j&1)==0 else SB_[0])+j//2}, v7, s[16:19], s32 offen")
    for j in range(2):
        a(f"s_add_u32 s32, s31, {(16+j)*4096}")
        a(f"buffer_load_ushort v{Q2 if j==0 else SB_[0]+4}, v6, s[16:19], s32 offen")
    a("v_mov_b32 v8, 0x3f803f80")
    for j in range(9, 12):
        a(f"v_mov_b32 v{j}, v8")
    a("v_lshlrev_b32 v12, 4, v0")
    a(f"v_add_u32 v12, {ONES}, v12")
    a(f"ds_write_b128 v12, v[8:11]")
    a("v_and_b32 v12, 7, v0")
    a("v_lshlrev_b32 v12, 4, v12")
    a(f"v_add_u32 v12, {ONES + 8192}, v12")
    a("ds_write_b128 v12, v[8:11]")
    a("v_bfe_u32 v8, v1, 2, 2")
    a("v_and_b32 v9, 1, v1")
    a("v_bfe_u32 v10, v1, 1, 1")
    a("v_lshl_or_b32 v9, v9, 1, v10")
    a("v_bfe_u32 v10, v1, 4, 1")
    a("v_lshl_add_u32 v9, v10, 2, v9")
    a("v_lshlrev_b32 v9, 3, v9")
    a("v_lshl_add_u32 v10, v4, 3, v8")
    a(f"v_mul_u32_u24 v10, {KP}, v10")
    a("v_add_u32 v112, v10, v9")
    a("v_add_u32 v10, 16, v8")
    a(f"v_mul_u32_u24 v10, {KP}, v10")
    a("v_add_u32 v113, v10, v9")
    a("v_mov_b32 v8, 4")
    a("v_subrev_u32 v9, 20, v3")
    a("v_cmp_gt_u32 vcc, 8, v9")
    a("s_nop 1")
    a("v_cndmask_b32 v8, v8, 0, vcc")
    a("v_cmp_gt_u32 vcc, 18, v3")
    a("s_nop 1")
    a("v_cndmask_b32 v8, v8, v3, vcc")
    a(f"v_mul_u32_u24 v8, {VP}, v8")
    a(f"v_add_u32 v8, {VB}, v8")
    a(f"v_mov_b32 v9, {ONES}")
    a("v_cmp_eq_u32 vcc, 18, v3")
    a("s_nop 1")
    a("v_cndmask_b32 v8, v8, v9, vcc")
    a("v_lshl_add_u32 v114, v4, 4, v8")
    a("v_xor_b32 v115, 32, v1")
    a("v_lshlrev_b32 v115, 2, v115")
    for b in range(2):
        a(f"v_mov_b32 v{KB[b]+2}, 0")
        a(f"v_mov_b32 v{KB[b]+3}, 0")
    a(f"v_mov_b32 v{Q2+2}, 0")
    a(f"v_mov_b32 v{Q2+3}, 0")
    a("v_cmp_eq_u32 s[40:41], 0, v4")
    a("s_waitcnt vmcnt(0)")
    for j in range(5):
        a(f"v_lshl_or_b32 v{Q1+j}, v{SB_[0]+j}, 16, v{Q1+j}")
    a(f"v_cndmask_b32 v{Q2}, 0, v{Q2}, s[40:41]")
    a("s_waitcnt lgkmcnt(0)")
    a("s_barrier")
    prof_stamp(a, 1, 116)
    a("s_mov_b32 s36, 1")
    a("s_mov_b32 s37, 0")
    a.label("L_k2_maxpass")
    a(f"v_mov_b32 v{Q2+1}, 0")
    a("v_mov_b32 v8, 0xff800000")
    a("v_mov_b32 v13, v112")
    a("v_mov_b32 v14, v113")
    a("s_mov_b32 s38, 0")
    a.label("L_k2_maxloop")
    a(f"ds_read_b64_tr_b16 v[{KA[0]}:{KA[0]+1}], v13")
    a(f"ds_read_b64_tr_b16 v[{KA[0]+2}:{KA[0]+3}], v13 offset:{4*KP}")
    a(f"ds_read_b64_tr_b16 v[{KB[0]}:{KB[0]+1}], v14")
    a("v_add_u32 v13, 64, v13")
    a("v_add_u32 v14, 64, v14")
    a("s_waitcnt lgkmcnt(0)")
    a(f"v_mfma_f32_32x32x16_bf16 {vr(SB_[0],16)}, {vr(KA[0])}, {vr(Q1)}, 0")
    a(f"v_mfma_f32_32x32x16_bf16 {vr(SB_[0],16)}, {vr(KB[0])}, {vr(Q2)}, {vr(SB_[0],16)}")
    a("s_nop 15")
    a("s_nop 3")
    for i in range(8):
        a(f"v_max3_f32 v8, v8, v{SB_[0]+2*i}, v{SB_[0]+2*i+1}")
    a("s_add_u32 s38, s38, 1")
    a("s_cmp_lt_u32 s38, s36")
    a("s_cbranch_scc1 L_k2_maxloop")
    if DEBUG:
        srd(a, 48, 8, 9, 1 << 20, off_imm=48 << 20)
        a("v_lshlrev_b32 v10, 2, v0")
        a("s_mul_i32 s52, s2, 0x10000")
        for i in range(16):
            a(f"buffer_store_dword v{SB_[0]+i}, v10, s[48:51], s52 offen offset:{i*2048 % 4096}") if i < 2 else None
        for i in range(16):
            a(f"s_add_u32 s53, s52, {i*2048}")
            a(f"buffer_store_dword v{SB_[0]+i}, v10, s[48:51], s53 offen")
        for i in range(4):
            a(f"s_add_u32 s53, s52, {(16+i)*2048}")
            a(f"buffer_store_dword v{KA[0]+i}, v10, s[48:51], s53 offen")
            a(f"s_add_u32 s53, s52, {(20+i)*2048}")
            a(f"buffer_store_dword v{Q1+i}, v10, s[48:51], s53 offen")
            a(f"s_add_u32 s53, s52, {(24+i)*2048}")
            a(f"buffer_store_dword v{KB[0]+i}, v10, s[48:51], s53 offen")
            a(f"s_add_u32 s53, s52, {(28+i)*2048}")
            a(f"buffer_store_dword v{Q2+i}, v10, s[48:51], s53 offen")
    a("ds_bpermute_b32 v9, v115, v8")
    a("s_waitcnt lgkmcnt(0)")
    a("v_max_f32 v8, v8, v9")
    a("v_sub_f32 v8, 0, v8")
    a("v_cvt_pk_bf16_f32 v9, v8, v8")
    a("v_lshlrev_b32 v9, 16, v9")
    a("v_sub_f32 v10, v8, v9")
    a("v_cvt_pk_bf16_f32 v9, v9, v10")
    a(f"v_cndmask_b32 v{Q2+1}, 0, v9, s[40:41]")
    a("v_mov_b32 v13, v112")
    a("v_mov_b32 v14, v113")
    a("v_mov_b32 v15, v114")
    def kreads(b, toff):
        a(f"ds_read_b64_tr_b16 v[{KA[b]}:{KA[b]+1}], v13 offset:{toff*64}")
        a(f"ds_read_b64_tr_b16 v[{KA[b]+2}:{KA[b]+3}], v13 offset:{4*KP + toff*64}")
        a(f"ds_read_b64_tr_b16 v[{KB[b]}:{KB[b]+1}], v14 offset:{toff*64}")
    def vreads(b, toff):
        a(f"ds_read_b128 {vr(VF[b])}, v15 offset:{toff*64}")
        a(f"ds_read_b128 {vr(VF[b]+4)}, v15 offset:{toff*64+32}")
    kreads(0, 0)
    for i in range(16):
        a(f"v_mov_b32 v{O+i}, 0")
    for i in range(8):
        a(f"v_mov_b32 v{P+i}, 0")
        a(f"v_mov_b32 v{VF[1]+i}, 0")
    a("s_waitcnt lgkmcnt(0)")
    a(f"v_mfma_f32_32x32x16_bf16 {vr(SB_[0],16)}, {vr(KA[0])}, {vr(Q1)}, 0")
    a(f"v_mfma_f32_32x32x16_bf16 {vr(SB_[0],16)}, {vr(KB[0])}, {vr(Q2)}, {vr(SB_[0],16)}")
    kreads(1, 1)
    vreads(0, 0)
    a("s_nop 15")
    prof_stamp(a, 2, 116)
    a("s_mov_b32 s38, 0")
    a.label("L_k2_loop")
    for par in range(2):
        Sx = SB_[par]; N = SB_[1 - par]
        kb = 1 - par
        a("s_waitcnt lgkmcnt(2)")
        a(f"v_mfma_f32_32x32x16_bf16 {vr(N,16)}, {vr(KA[kb])}, {vr(Q1)}, 0")
        a(f"v_mfma_f32_32x32x16_bf16 {vr(O,16)}, {vr(VF[1-par]+4)}, {vr(P+4)}, {vr(O,16)}")
        for i in range(0, 4):
            a(f"v_exp_f32 v{Sx+i}, v{Sx+i}")
        a(f"v_mfma_f32_32x32x16_bf16 {vr(N,16)}, {vr(KB[kb])}, {vr(Q2)}, {vr(N,16)}")
        kreads(par, par + 2)
        vreads(1 - par, par + 1)
        for i in range(4, 8):
            a(f"v_exp_f32 v{Sx+i}, v{Sx+i}")
        a(f"v_exp_f32 v{Sx+8}, v{Sx+8}")
        for i in range(4):
            a(f"v_cvt_pk_bf16_f32 v{P+i}, v{Sx+2*i}, v{Sx+2*i+1}")
        a(f"v_exp_f32 v{Sx+9}, v{Sx+9}")
        a("s_waitcnt lgkmcnt(5)")
        a(f"v_mfma_f32_32x32x16_bf16 {vr(O,16)}, {vr(VF[par])}, {vr(P)}, {vr(O,16)}")
        for i in range(10, 16):
            a(f"v_exp_f32 v{Sx+i}, v{Sx+i}")
        if par == 1:
            a("v_add_u32 v13, 128, v13")
            a("v_add_u32 v14, 128, v14")
            a("v_add_u32 v15, 128, v15")
            a("s_add_u32 s38, s38, 1")
            a("s_cmp_lt_u32 s38, 32")
        else:
            a("s_nop 0")
        for i in range(4, 8):
            a(f"v_cvt_pk_bf16_f32 v{P+i}, v{Sx+2*i}, v{Sx+2*i+1}")
    a("s_cbranch_scc1 L_k2_loop")
    a("s_nop 1")
    a(f"v_mfma_f32_32x32x16_bf16 {vr(O,16)}, {vr(VF[1]+4)}, {vr(P+4)}, {vr(O,16)}")
    a("s_waitcnt lgkmcnt(0)")
    a("s_nop 15")
    a("s_nop 3")
    prof_stamp(a, 3, 116)
    a(f"ds_bpermute_b32 v9, v115, v{O+10}")
    a("s_waitcnt lgkmcnt(0)")
    a(f"v_cndmask_b32 v9, v9, v{O+10}, s[40:41]")
    a("s_cmp_lg_u32 s37, 0")
    a("s_cbranch_scc1 L_k2_store")
    a(f"v_max3_f32 v10, abs(v{O}), abs(v{O+1}), abs(v{O+2})")
    for i in range(3, 15, 2):
        a(f"v_max3_f32 v10, v10, abs(v{O+i}), abs(v{O+i+1})")
    a(f"v_max_f32 v10, v10, abs(v{O+15})")
    a(f"v_mov_b32 v11, {f32bits(2.0**60):#x}")
    a(f"v_mov_b32 v12, {f32bits(2.0**120):#x}")
    a("v_cmp_lt_f32 s[42:43], v9, v11")
    a("v_cmp_lt_f32 s[44:45], v10, v12")
    for i in range(16):
        a(f"v_cmp_o_f32 vcc, v{O+i}, v{O+i}")
        a("s_and_b64 s[42:43], s[42:43], vcc")
    a("s_and_b64 s[42:43], s[42:43], s[44:45]")
    a("s_cmp_eq_u64 s[42:43], exec")
    a("s_cbranch_scc1 L_k2_store")
    a("s_mov_b32 s37, 1")
    a("s_mov_b32 s36, 64")
    a("s_branch L_k2_maxpass")
    a.label("L_k2_store")
    a("v_rcp_f32 v9, v9")
    a("s_nop 0")
    for i in range(10):
        a(f"v_mul_f32 v{O+i}, v{O+i}, v9")
    for i in range(5):
        a(f"v_cvt_pk_bf16_f32 v{P+i}, v{O+2*i}, v{O+2*i+1}")
    a("v_lshrrev_b32 v10, 4, v5")
    a("v_mul_u32_u24 v10, 18432, v10")
    a("v_and_b32 v11, 15, v5")
    a("v_lshl_add_u32 v10, v11, 4, v10")
    a("v_lshl_add_u32 v11, v4, 8, v10")
    a("s_lshl_b32 s31, s10, 9")
    a(f"buffer_store_dwordx4 {vr(P)}, v11, s[24:27], s31 offen")
    a("s_lshr_b32 s31, s10, 2")
    a("s_lshl_b32 s31, s31, 8")
    a("s_and_b32 s32, s10, 3")
    a("s_lshl_b32 s32, s32, 2")
    a("s_add_u32 s31, s31, s32")
    a("s_add_u32 s31, s31, 16384")
    a("v_mov_b32 v11, 0x7f000000")
    a("v_cndmask_b32 v10, v11, v10, s[40:41]")
    a(f"buffer_store_dword v{P+4}, v10, s[24:27], s31 offen")
    a("s_waitcnt vmcnt(0)")
    prof_stamp(a, 4, 116); prof_real(a, 6, 116)
    a.label("L_k2_end")
    a("s_endpgm")
    return a.text(), dict(vgpr=120, agpr=0, grid=256, block=512, lds=LDS)
```

```python
from asmlib import *
from gen_common import *
def gen_k36(mode):
    a = Asm()
    k3 = mode == 3
    L = f"L_k{mode}"
    KS = 18 if k3 else 72
    NMAIN = 234
    NWG = NMAIN + 72 if k3 else NMAIN
    D = 5 if k3 else 6
    WREG = 24576
    PP = 272
    RES = 32; WF = 44; XR = 76
    common_prologue(a, NWG, L + "_end")
    if k3:
        a("s_load_dwordx2 s[4:5], s[0:1], 0")
        a("s_load_dwordx2 s[6:7], s[0:1], 16")
        a("s_load_dwordx2 s[10:11], s[0:1], 32")
    else:
        a("s_load_dwordx2 s[4:5], s[0:1], 64")
        a("s_load_dwordx2 s[6:7], s[0:1], 56")
    a("s_load_dwordx2 s[8:9], s[0:1], 80")
    if k3:
        a(f"s_cmp_ge_u32 s2, {NMAIN}")
        a(f"s_cbranch_scc1 {L}_colsum")
    a("s_and_b32 s13, s2, 7")
    a("s_lshr_b32 s14, s2, 3")
    a("s_mul_i32 s15, s13, 29")
    a("s_min_u32 s13, s13, 2")
    a("s_add_u32 s15, s15, s13")
    a("s_add_u32 s15, s15, s14")
    a("s_mul_i32 s13, s15, 57")
    a("s_lshr_b32 s13, s13, 9")
    a("s_mul_i32 s14, s13, 9")
    a("s_sub_u32 s14, s15, s14")
    assert all((t * 57) >> 9 == t // 9 for t in range(240))
    a("v_lshlrev_b32 v4, 4, v1")
    for rb in range(1, 5):
        a(f"v_add_u32 v{4+rb}, {rb*KS*1024}, v4")
    a("v_bfe_u32 v16, v1, 1, 2")
    a("v_xor_b32 v16, v16, v3")
    a("v_and_b32 v17, 1, v1")
    a("v_lshl_or_b32 v16, v16, 1, v17")
    a("v_lshlrev_b32 v16, 4, v16")
    a("v_lshrrev_b32 v17, 3, v1")
    a("v_mul_u32_u24 v9, 1152, v17")
    a("v_add_u32 v9, v9, v16")
    if k3:
        a("v_bfe_u32 v18, v1, 3, 1")
        a("v_bfe_u32 v19, v1, 4, 1")
        a("v_mad_u32_u24 v18, v19, 18, v18")
        a("v_bfe_u32 v19, v1, 5, 1")
        a("v_mul_u32_u24 v19, 72, v19")
        a("v_add_u32 v18, v18, v19")
        a("v_mul_u32_u24 v10, 1152, v18")
        a("v_add_u32 v10, v10, v16")
    a(f"s_mul_i32 s28, s12, {WREG}")
    a("v_lshrrev_b32 v16, 2, v1")
    a("v_lshlrev_b32 v16, 7, v16")
    a("v_and_b32 v17, 3, v1")
    a("v_lshl_add_u32 v16, v17, 3, v16")
    a("v_add_u32 v16, s28, v16")
    a("v_bfe_u32 v17, v1, 3, 2")
    for nb in range(4):
        a(f"v_xor_b32 v18, {nb}, v17")
        a(f"v_lshl_add_u32 v{11+nb}, v18, 5, v16")
    a(f"s_mul_i32 s29, s13, {5*KS*1024}")
    a("s_lshl_b32 s30, s14, 7")
    if k3:
        a("s_lshl_b32 s15, s12, 10")
        a("s_add_u32 s29, s29, s15")
        a(f"s_mul_i32 s15, s12, {36*1152}")
        a("s_add_u32 s31, s30, s15")
        a(f"s_mul_i32 s15, s12, {288*1152}")
        a("s_add_u32 s32, s30, s15")
    else:
        a(f"s_mul_i32 s15, s12, {18*1024}")
        a("s_add_u32 s29, s29, s15")
        a(f"s_mul_i32 s15, s12, {576*1152}")
        a("s_add_u32 s31, s30, s15")
    a("s_mul_i32 s33, s13, 80")
    if k3:
        a("s_lshr_b32 s15, s12, 1")
        a("s_lshl_b32 s15, s15, 4")
        a("s_add_u32 s34, s33, s15")
        a("v_add_u32 v16, s34, v2")
        a("v_mul_u32_u24 v16, 1152, v16")
        a("s_and_b32 s15, s12, 1")
        a("s_lshl_b32 s15, s15, 6")
        a("s_add_u32 s15, s15, s30")
        a("v_lshl_add_u32 v16, v3, 3, v16")
        a("v_add_u32 v16, s15, v16")
        a(f"v_add_u32 v17, {32*1152}, v16")
        a(f"v_add_u32 v18, {64*1152}, v16")
    else:
        a("v_lshrrev_b32 v19, 3, v0")
        a("v_add_u32 v19, s33, v19")
        a("v_and_b32 v20, 7, v0")
        a("v_lshrrev_b32 v16, 4, v19")
        a("v_mul_u32_u24 v16, 18, v16")
        a("v_lshrrev_b32 v17, 2, v20")
        a("v_add_u32 v16, v16, v17")
        a("s_lshl_b32 s15, s14, 1")
        a("v_add_u32 v16, s15, v16")
        a("v_lshlrev_b32 v16, 10, v16")
        a("v_and_b32 v17, 1, v20")
        a("v_lshl_add_u32 v16, v17, 9, v16")
        a("v_bfe_u32 v17, v20, 1, 1")
        a("v_lshl_add_u32 v16, v17, 3, v16")
        a("v_and_b32 v17, 15, v19")
        a("v_lshl_add_u32 v16, v17, 4, v16")
        a(f"v_add_u32 v17, {2*18*1024}, v16")
        a(f"v_add_u32 v18, {4*18*1024}, v16")
    a("s_waitcnt lgkmcnt(0)")
    srd(a, 16, 8, 9, 128 * KS * 1024, off_imm=(O_OFF if k3 else U_OFF))
    srd(a, 20, 6, 7, KS * 32 * 1152)
    srd(a, 24, 4, 5, 2048 * 1152)
    srd(a, 36, 8, 9, 128 * 18 * 1024, off_imm=H_OFF)
    prof_init(a); prof_real(a, 4, 30); prof_stamp(a, 0, 30)
    for i in range(3):
        a(f"buffer_load_dwordx2 {vr(RES+4*i,2)}, v{16+i}, s[{24 if k3 else 36}:{27 if k3 else 39}], 0 offen")
        a(f"buffer_load_dwordx2 {vr(RES+4*i+2,2)}, v{16+i}, s[{24 if k3 else 36}:{27 if k3 else 39}], 0 offen offset:{32 if k3 else 256}")
    if k3:
        srd(a, 44, 8, 9, 262144, off_imm=ST_OFF)
        a("v_lshlrev_b32 v21, 4, v0")
        a("s_lshl_b32 s15, s2, 12")
        a("v_add_u32 v21, s15, v21")
        for j in range(4):
            a(f"v_mov_b32 v{24+j}, -1")
        a("buffer_store_dwordx4 v[24:27], v21, s[44:47], 0 offen")
    steps = []
    if k3:
        steps.append((16 * 1024, 32, 10, [16 + 144 * (i & 1) + 36 * (i >> 1) for i in range(4)]))
        for n in range(4):
            steps.append((n * 4096, 31, 9, [144 * n + 18 * (i & 1) + 8 * (i >> 1) for i in range(4)]))
    else:
        for cc in range(2):
            for i9 in range(9):
                rc = 32 * i9 if i9 < 4 else (144 + 32 * (i9 - 4) if i9 < 8 else 128)
                ch = 16 if i9 < 8 else 144
                steps.append(((9 * cc + i9) * 1024, 31, 9, [288 * cc + rc + 8 * (i & 1) + ch * (i >> 1) for i in range(4)]))
    N = len(steps)
    def issue(n):
        xoff, wb, wv, rows = steps[n]
        sl = n % D
        a(f"s_add_u32 s40, s29, {xoff}")
        for rb in range(5):
            a(f"buffer_load_dwordx4 {vr(XR + sl*20 + rb*4)}, v{4+rb}, s[16:19], s40 offen")
        for i in range(4):
            a(f"s_add_u32 m0, s28, {sl*4096 + i*1024}")
            a(f"s_add_u32 s41, s{wb}, {rows[i]*1152}")
            a(f"buffer_load_dwordx4 v{wv}, s[20:23], s41 offen lds")
    def trreads(n):
        sl = n % D; st = WF + (n & 1) * 16
        for nb in range(4):
            for rd in range(2):
                a(f"ds_read_b64_tr_b16 v[{st+nb*4+rd*2}:{st+nb*4+rd*2+1}], v{11+nb} offset:{sl*4096 + rd*2048}")
    def mfmas(n, first):
        sl = n % D; st = WF + (n & 1) * 16
        for nb in range(4):
            for rb in range(5):
                acc = (rb * 4 + nb) * 4
                a(f"v_mfma_f32_16x16x32_bf16 {ar(acc)}, {vr(st+nb*4)}, {vr(XR+sl*20+rb*4)}, {ar(acc) if not first else 0}")
    pex = 1 if PROF else 0
    if k3:
        for i in range(80):
            a(f"v_accvgpr_write_b32 a{i}, 0")
        a("s_cmp_ge_u32 s12, 2")
        a(f"s_cbranch_scc1 {L}_skip1")
        issue(0)
        a.label(L + "_skip1")
        for n in range(1, 5): issue(n)
        a("s_cmp_ge_u32 s12, 2")
        a(f"s_cbranch_scc1 {L}_skip2")
        a("s_waitcnt vmcnt(36)")
        trreads(0)
        a("s_waitcnt lgkmcnt(0)")
        mfmas(0, False)
        a.label(L + "_skip2")
        n0 = 1
    else:
        for n in range(D): issue(n)
        n0 = 0
    last = min(D, N) - 1
    a(f"s_waitcnt vmcnt({9*(last-n0)})")
    prof_stamp(a, 1, 30)
    trreads(n0)
    for n in range(n0, N):
        if n + 1 < N:
            a(f"s_waitcnt vmcnt({9*(last-(n+1)) + (pex if n == n0 else 0)})")
            trreads(n + 1)
            a("s_waitcnt lgkmcnt(8)")
        else:
            a("s_waitcnt lgkmcnt(0)")
        mfmas(n, (not k3) and n == 0)
        if n + D < N:
            issue(n + D); last = n + D
    prof_stamp(a, 2, 30)
    a(f"v_mul_u32_u24 v16, {PP}, v2")
    a("v_lshl_add_u32 v16, v3, 4, v16")
    a("v_add_u32 v16, s28, v16")
    a("s_nop 7")
    for rb in range(5):
        for nb in range(4):
            acc = (rb * 4 + nb) * 4
            a(f"ds_write_b128 v16, {ar(acc)} offset:{rb*16*PP + nb*64}")
    if k3:
        a("s_lshr_b32 s15, s12, 1")
        a(f"s_mul_i32 s15, s15, {16*PP}")
        a("s_and_b32 s35, s12, 1")
        a("s_lshl_b32 s42, s35, 7")
        a("s_add_u32 s15, s15, s42")
        a(f"v_mul_u32_u24 v17, {PP}, v2")
        a("v_lshl_add_u32 v17, v3, 4, v17")
        a("v_add_u32 v17, s15, v17")
        a("s_mul_i32 s42, s13, 5")
        a("s_lshr_b32 s15, s12, 1")
        a("s_add_u32 s42, s42, s15")
        a("s_mul_i32 s15, s42, 18")
        a("s_lshl_b32 s43, s14, 1")
        a("s_add_u32 s15, s15, s43")
        a("s_add_u32 s15, s15, s35")
        a("s_lshl_b32 s15, s15, 10")
        a("v_lshlrev_b32 v18, 4, v1")
        a("v_add_u32 v18, s15, v18")
        a("s_mul_i32 s15, s42, 9")
        a("s_add_u32 s15, s15, s14")
        a("s_lshl_b32 s15, s15, 8")
        a("s_lshl_b32 s43, s35, 3")
        a("s_add_u32 s15, s15, s43")
        a("v_lshlrev_b32 v19, 4, v2")
        a("v_add_u32 v19, s15, v19")
        a("v_lshl_add_u32 v19, v3, 28, v19")
        srd(a, 44, 8, 9, 294912, off_imm=HS_OFF)
        a("s_mov_b32 s43, 0x3f803f80")
        istr = 32 * PP
    else:
        a("v_lshrrev_b32 v17, 3, v0")
        a(f"v_mul_u32_u24 v17, {PP}, v17")
        a("v_lshl_add_u32 v17, v20, 5, v17")
        a("v_mul_u32_u24 v18, 1152, v19")
        a("v_lshl_add_u32 v18, v20, 4, v18")
        a("v_add_u32 v18, s30, v18")
        istr = 32 * PP
    a("s_waitcnt lgkmcnt(0)")
    a("s_barrier")
    T = XR
    HH = 64 if k3 else 16
    for i in range(3):
        if i == 2:
            a("s_cmp_ge_u32 s12, 2")
            a(f"s_cbranch_scc1 {L}_done")
        for p in range(4):
            for hh in range(2):
                a(f"ds_read_b128 {vr(T + p*8 + hh*4)}, v17 offset:{i*istr + hh*HH}") if p == 0 else None
        a(f"v_add_u32 v21, {2*WREG}, v17")
        for hh in range(2):
            a(f"ds_read_b128 {vr(T + 8 + hh*4)}, v17 offset:{WREG + i*istr + hh*HH}")
            a(f"ds_read_b128 {vr(T + 16 + hh*4)}, v21 offset:{i*istr + hh*HH}")
            a(f"ds_read_b128 {vr(T + 24 + hh*4)}, v21 offset:{WREG + i*istr + hh*HH}")
        a("s_waitcnt lgkmcnt(0)")
        for j in range(0, 8, 2):
            a(f"v_pk_add_f32 v[{T+j}:{T+j+1}], v[{T+j}:{T+j+1}], v[{T+8+j}:{T+9+j}]")
            a(f"v_pk_add_f32 v[{T+16+j}:{T+17+j}], v[{T+16+j}:{T+17+j}], v[{T+24+j}:{T+25+j}]")
        for j in range(0, 8, 2):
            a(f"v_pk_add_f32 v[{T+j}:{T+j+1}], v[{T+j}:{T+j+1}], v[{T+16+j}:{T+17+j}]")
        for j in range(4):
            a(f"v_cvt_pk_bf16_f32 v{T+8+j}, v{T+2*j}, v{T+2*j+1}")
        for j in range(4):
            a(f"v_lshlrev_b32 v{T+2*j}, 16, v{T+8+j}")
            a(f"v_and_b32 v{T+2*j+1}, 0xffff0000, v{T+8+j}")
            a(f"v_lshlrev_b32 v{T+16+2*j}, 16, v{RES+4*i+j}")
            a(f"v_and_b32 v{T+17+2*j}, 0xffff0000, v{RES+4*i+j}")
        for j in range(0, 8, 2):
            a(f"v_pk_add_f32 v[{T+j}:{T+j+1}], v[{T+j}:{T+j+1}], v[{T+16+j}:{T+17+j}]")
        O_ = T + 32 + 4 * i
        for j in range(4):
            a(f"v_cvt_pk_bf16_f32 v{O_+j}, v{T+2*j}, v{T+2*j+1}")
        if k3:
            a(f"buffer_store_dwordx4 {vr(O_)}, v18, s[36:39], 0 offen")
            S_ = T + 48 + 2 * i
            a(f"v_mov_b32 v{S_}, 0")
            a(f"v_mov_b32 v{S_+1}, 0")
            for j in range(4):
                a(f"v_dot2_f32_bf16 v{S_}, v{O_+j}, s43, v{S_}")
                a(f"v_dot2_f32_bf16 v{S_+1}, v{O_+j}, v{O_+j}, v{S_+1}")
            a("s_nop 1")
            xlane_sum_g(a, S_, 22)
            xlane_sum_g(a, S_ + 1, 22)
            a(f"buffer_store_dwordx2 v[{S_}:{S_+1}], v19, s[44:47], 0 offen")
            a(f"v_add_u32 v18, {2*18*1024}, v18")
            a(f"v_add_u32 v19, {2*9*256}, v19")
        else:
            a(f"buffer_store_dwordx4 {vr(O_)}, v18, s[24:27], 0 offen")
            a(f"v_add_u32 v18, {32*1152}, v18")
    a.label(L + "_done")
    if PROF:
        a("s_waitcnt vmcnt(0)")
    prof_stamp(a, 3, 30); prof_real(a, 5, 30)
    a("s_endpgm")
    if k3:
        a.label(L + "_colsum")
        a(f"s_sub_u32 s13, s2, {NMAIN}")
        a("v_lshrrev_b32 v4, 3, v0")
        a("v_mul_u32_u24 v5, 9216, v4")
        a("v_and_b32 v6, 7, v0")
        a("v_lshl_add_u32 v5, v6, 4, v5")
        a("s_lshl_b32 s14, s13, 7")
        a("s_mov_b32 s28, 0x00003f80")
        a("s_mov_b32 s29, 0x3f800000")
        a("s_waitcnt lgkmcnt(0)")
        srd(a, 16, 10, 11, 576 * 9216)
        srd(a, 20, 8, 9, 4608 * 4, off_imm=CS_OFF)
        for it in range(18):
            a(f"s_add_u32 s15, s14, {it*32*9216}")
            a(f"buffer_load_dwordx4 {vr(32+4*it)}, v5, s[16:19], s15 offen")
        for j in range(8):
            a(f"v_mov_b32 v{8+j}, 0")
        for it in range(18):
            a(f"s_waitcnt vmcnt({17-it})")
            for j in range(4):
                a(f"v_dot2_f32_bf16 v{8+2*j}, v{32+4*it+j}, s28, v{8+2*j}")
                a(f"v_dot2_f32_bf16 v{9+2*j}, v{32+4*it+j}, s29, v{9+2*j}")
        a("v_lshlrev_b32 v7, 5, v0")
        a("s_nop 1")
        a("ds_write_b128 v7, v[8:11]")
        a("ds_write_b128 v7, v[12:15] offset:16")
        a("s_waitcnt lgkmcnt(0)")
        a("s_barrier")
        a("s_cmp_lg_u32 s12, 0")
        a(f"s_cbranch_scc1 {L}_end")
        a("v_lshlrev_b32 v7, 2, v1")
        for r in range(32):
            a(f"ds_read_b32 v{32+r}, v7 offset:{r*256}")
        a("s_waitcnt lgkmcnt(0)")
        for st in (16, 8, 4, 2, 1):
            for r in range(st):
                a(f"v_add_f32 v{32+r}, v{32+r}, v{32+r+st}")
        a("s_lshl_b32 s14, s13, 8")
        a("buffer_store_dword v32, v7, s[20:23], s14 offen")
    a.label(L + "_end")
    a("s_endpgm")
    return a.text(), dict(vgpr=XR + D * 20, agpr=80, grid=NWG, block=256, lds=4 * WREG)
```

```python
from asmlib import *
from gen_common import *
NOROT = not os.environ.get('ROT')
def gen_k4():
    a = Asm()
    vm = VmTrack(a)
    KT = 9216; CH = 4 * KT
    WF = 32; ACC = 104; HOLD = 176
    R1 = 212; N1 = 214; R2 = 216; N2 = 224; CS2 = 232; VK0 = 242
    common_prologue(a, 256, "L_k4_end")
    a("s_load_dwordx2 s[6:7], s[0:1], 32")
    a("s_load_dwordx4 s[8:11], s[0:1], 72")
    a("s_and_b32 s13, s2, 7")
    a("s_lshr_b32 s14, s2, 3")
    a("s_and_b32 s15, s13, 1")
    a("s_lshl_b32 s15, s15, 3")
    a("s_and_b32 s28, s14, 7")
    a("s_add_u32 s28, s28, s15")
    a("s_lshr_b32 s15, s13, 1")
    a("s_lshl_b32 s15, s15, 2")
    a("s_lshr_b32 s29, s14, 3")
    a("s_add_u32 s29, s29, s15")
    a("v_lshlrev_b32 v4, 4, v1")
    m, sh = magic_div(18, 576)
    for i in range(9):
        a(f"v_add_u32 v16, {64*i}, v1")
        a(f"v_mul_u32_u24 v17, {m}, v16")
        a(f"v_lshrrev_b32 v17, {sh}, v17")
        a(f"v_lshlrev_b32 v16, 4, v16")
        a(f"v_mad_u32_u24 v{5+i}, v17, s30, v16") if False else None
        a(f"v_mul_u32_u24 v17, 8928, v17")
        a(f"v_add_u32 v{5+i}, v17, v16")
    a("s_mul_i32 s30, s29, 288")
    a("s_and_b32 s31, s28, 7")
    a("s_mul_i32 s31, s31, 9")
    a("s_lshr_b32 s31, s31, 2")
    a("s_and_b32 s15, s29, 3")
    a("s_mul_i32 s15, s15, 9")
    a("s_lshr_b32 s15, s15, 1")
    a("s_add_u32 s31, s31, s15")
    a("s_sub_u32 s15, s31, 18")
    a("s_cmp_ge_u32 s31, 18")
    a("s_cselect_b32 s31, s15, s31")
    if NOROT: a("s_mov_b32 s31, 0")
    a("s_add_u32 s66, s31, s12")
    a("s_add_u32 s67, s30, 4608")
    a(f"s_mul_i32 s32, s12, {KT}")
    a("s_lshl_b32 s33, s28, 2")
    a("s_add_u32 s33, s33, s12")
    a(f"s_mul_i32 s34, s33, {2*18*1024}")
    a("v_add_u32 v15, 18432, v4")
    a("v_lshrrev_b32 v14, 2, v1")
    a("v_mul_u32_u24 v14, 288, v14")
    a("v_and_b32 v16, 3, v1")
    a("v_lshl_add_u32 v14, v16, 3, v14")
    a("s_waitcnt lgkmcnt(0)")
    srd(a, 16, 10, 11, 128 * 18 * 1024, off_imm=H_OFF)
    srd(a, 20, 6, 7, 576 * 9216)
    prof_init(a, 10); prof_real(a, 14, 31); prof_stamp(a, 0, 31)
    def dma(c):
        u = []
        def head():
            if c == 4:
                a("s_add_u32 s35, s66, 16")
                a("s_sub_u32 s64, s66, 2")
                a("s_cmp_lt_u32 s12, 2")
                a("s_cselect_b32 s35, s35, s64")
                a("s_cselect_b32 s68, s67, s30")
            else:
                a(f"s_add_u32 s35, s66, {4*c if c < 4 else 4*c-18}")
            a("s_sub_u32 s64, s35, 18")
            a("s_cmp_ge_u32 s35, 18")
            a("s_cselect_b32 s35, s64, s35")
            a("s_mul_i32 s35, s35, 294912")
            a(f"s_add_u32 s35, s35, s{67 if c < 4 else (68 if c == 4 else 30)}")
        def one(i):
            if i == 0: head()
            a(f"s_add_u32 m0, s32, {(c%4)*CH + i*1024}")
            a("s_nop 0")
            a(f"buffer_load_dwordx4 v{5+i}, s[20:23], s35 offen lds")
            vm.op(f"W{c}")
        return [lambda i=i: one(i) for i in range(9)]
    def xload(ks0, ks1):
        def one(ks, rb):
            if rb == 0:
                a(f"s_add_u32 s65, s31, {ks}")
                a("s_sub_u32 s64, s65, 18")
                a("s_cmp_ge_u32 s65, 18")
                a("s_cselect_b32 s65, s64, s65")
                a("s_lshl_b32 s65, s65, 10")
                a("s_add_u32 s65, s65, s34")
            a(f"buffer_load_dwordx4 {ar((rb*18+ks)*4)}, v{4 if rb == 0 else 15}, s[16:19], s65 offen")
            vm.op(f"X{ks//4}")
        return [lambda ks=ks, rb=rb: one(ks, rb) for ks in range(ks0, ks1) for rb in range(2)]
    for f in dma(0) + xload(0, 4) + dma(1) + xload(4, 8): f()
    pend = dma(2) + xload(8, 12) + dma(3) + xload(12, 18)
    srd(a, 24, 10, 11, 294912, off_imm=HS_OFF)
    srd(a, 40, 10, 11, 4608 * 4, off_imm=CS_OFF)
    srd(a, 44, 10, 11, 262144, off_imm=ST_OFF)
    srd(a, 52, 10, 11, 2304 * 4096, off_imm=Z2T_OFF)
    srd(a, 56, 10, 11, 2304 * 4096, off_imm=Z1_OFF)
    a(f"s_mov_b32 s60, {f32bits(GK1):#x}")
    a("s_mov_b32 s61, s60")
    a("s_mov_b32 s62, 1.0")
    a("s_mov_b32 s63, 1.0")
    a(f"v_mov_b32 v{VK0}, {f32bits(GK0):#x}")
    a(f"v_mov_b32 v{VK0+1}, v{VK0}")
    def wreads(q):
        st = WF + (q & 1) * 36
        return [f"ds_read_b64_tr_b16 v[{st+nb*4+rd*2}:{st+nb*4+rd*2+1}], v16 offset:{(q%4)*KT + rd*16*288 + nb*32}" for nb in range(9) for rd in range(2)]
    def chunk_start(c):
        tags = [f"W{c}"] + ([f"X{c}"] if c <= 4 else [])
        vm.wait(*tags)
        a("s_waitcnt lgkmcnt(0)")
        a("s_barrier")
        prof_stamp(a, 1 + c + (2 if c > 4 else 0), 31)
        a(f"v_add_u32 v16, {(c%4)*CH}, v14")
    def stats_loads():
        a("s_mul_i32 s36, s33, 4608")
        a("v_lshlrev_b32 v17, 4, v1")
        a("v_lshl_add_u32 v18, v3, 28, v17")
        a("s_add_u32 s37, s36, 2304")
        for rb in range(2):
            for i in range(3):
                a(f"buffer_load_dwordx4 {vr(HOLD + (rb*3+i)*4)}, v{17 if i < 2 else 18}, s[24:27], s{36+rb} offen offset:{i*1024}")
                vm.op("HS")
        a("s_lshl_b32 s36, s30, 1")
        a("s_add_u32 s36, s36, 9216")
        a("v_lshlrev_b32 v17, 2, v2")
        for nb in range(9):
            a(f"buffer_load_dword v{CS2+nb}, v17, s[40:43], s36 offen offset:{nb*64}")
            vm.op("CS2")
    def stats_math():
        vm.wait("HS")
        for rb in range(2):
            b = HOLD + rb * 12
            a(f"v_pk_add_f32 v[{b}:{b+1}], v[{b}:{b+1}], v[{b+2}:{b+3}]")
            a(f"v_pk_add_f32 v[{b+4}:{b+5}], v[{b+4}:{b+5}], v[{b+6}:{b+7}]")
            a(f"v_pk_add_f32 v[{b+8}:{b+9}], v[{b+8}:{b+9}], v[{b+10}:{b+11}]")
            a(f"v_pk_add_f32 v[{b}:{b+1}], v[{b}:{b+1}], v[{b+4}:{b+5}]")
            a(f"v_pk_add_f32 v[{b}:{b+1}], v[{b}:{b+1}], v[{b+8}:{b+9}]")
            xlane_sum_g(a, b, 17)
            xlane_sum_g(a, b + 1, 17)
            a(f"v_mov_b32 v{N1+rb}, v{b}")
            a(f"v_mov_b32 v{R1+rb}, v{b+1}")
        ln_scalars(a, [(N1, R1), (N1 + 1, R1 + 1)], 576)
        a("v_lshlrev_b32 v17, 4, v3")
        for rb in range(2):
            for j in range(4):
                a(f"ds_bpermute_b32 v{R2+rb*4+j}, v17, v{R1+rb} offset:{4*j}")
                a(f"ds_bpermute_b32 v{N2+rb*4+j}, v17, v{N1+rb} offset:{4*j}")
    def kstep(q):
        st = WF + (q & 1) * 36
        ks = q % 18
        rd = wreads(q + 1) if q + 1 < 36 else []
        slot = 0
        for nb in range(9):
            for rb in range(2):
                acc = ACC + (rb * 9 + nb) * 4
                src = vr(acc) if ks else "0"
                if q < 18:
                    a(f"v_mfma_f32_16x16x32_bf16 {vr(acc)}, {ar((rb*18+ks)*4)}, {vr(st+nb*4)}, {src}")
                else:
                    a(f"v_mfma_f32_16x16x32_bf16 {vr(acc)}, {vr(st+nb*4)}, {ar((rb*18+ks)*4)}, {src}")
                for _ in range(2 - (slot & 1)):
                    if rd: a(rd.pop(0))
                if slot >= 6 and pend: pend.pop(0)()
                slot += 1
    def z2_epilogue():
        SS = 68; QQ = 76; T = 84
        vm.wait("CS2")
        pend.extend(dma(5) + dma(6) + dma(7))
        a("s_waitcnt lgkmcnt(0)")
        for i in range(16):
            a(f"v_mov_b32 v{SS+i}, 0")
        a("s_nop 4")
        for nb in range(9):
            cs, sel = bcast_sel(CS2 + nb, 1, 2)
            for rb in range(2):
                x = ACC + (rb * 9 + nb) * 4
                t = T + rb * 4
                for h in (0, 2):
                    a(f"v_pk_mul_f32 v[{t+h}:{t+h+1}], v[{N2+rb*4+h}:{N2+rb*4+h+1}], {cs} {sel}")
                for h in (0, 2):
                    a(f"v_pk_fma_f32 v[{x+h}:{x+h+1}], v[{x+h}:{x+h+1}], v[{R2+rb*4+h}:{R2+rb*4+h+1}], v[{t+h}:{t+h+1}]")
                if pend: pend.pop(0)()
                gelu_quad(a, x, t, 60, VK0, 62)
                if pend: pend.pop(0)()
                for h in (0, 2):
                    a(f"v_pk_add_f32 v[{SS+rb*4+h}:{SS+rb*4+h+1}], v[{SS+rb*4+h}:{SS+rb*4+h+1}], v[{x+h}:{x+h+1}]")
                    a(f"v_pk_fma_f32 v[{QQ+rb*4+h}:{QQ+rb*4+h+1}], v[{x+h}:{x+h+1}], v[{x+h}:{x+h+1}], v[{QQ+rb*4+h}:{QQ+rb*4+h+1}]")
                    a(f"v_cvt_pk_bf16_f32 v{HOLD+nb*4+rb*2+h//2}, v{x+h}, v{x+h+1}")
        a("s_nop 1")
        row16_sum(a, list(range(SS, SS + 16)))
        a("s_lshl_b32 s36, s28, 4")
        a("s_add_u32 s36, s36, s29")
        a("s_lshl_b32 s36, s36, 10")
        a("s_lshl_b32 s37, s12, 8")
        a("s_add_u32 s36, s36, s37")
        a("v_lshlrev_b32 v17, 5, v3")
        a("v_lshl_add_u32 v17, v2, 24, v17")
        for rb in range(2):
            a(f"buffer_store_dwordx4 {vr(SS+rb*4)}, v17, s[44:47], s36 offen offset:{rb*128} sc0 sc1")
            a(f"buffer_store_dwordx4 {vr(QQ+rb*4)}, v17, s[44:47], s36 offen offset:{rb*128+16} sc0 sc1")
            vm.op("ST"); vm.op("ST")
    chunk_start(0)
    for r in wreads(0): a(r)
    for q in range(36):
        if (q + 1) % 4 == 0 and q + 1 < 36:
            c = (q + 1) // 4
            assert c < 2 or not pend or c == 2, (c, len(pend))
            chunk_start(c)
            if c + 3 in (4, 8): pend.extend(dma(c + 3))
            if c == 2: pend.append(stats_loads)
        else:
            a("s_waitcnt lgkmcnt(0)")
        kstep(q)
        if q == 13: stats_math()
        if q == 17:
            prof_stamp(a, 6, 31)
            z2_epilogue()
            prof_stamp(a, 7, 31)
    prof_stamp(a, 12, 31)
    a("s_lshl_b32 s36, s30, 1")
    a("v_lshlrev_b32 v17, 4, v3")
    for nb in range(9):
        a(f"buffer_load_dwordx4 {vr(WF+nb*4)}, v17, s[40:43], s36 offen offset:{nb*64}")
        vm.op(f"CS1_{nb}")
    a("s_mul_i32 s36, s33, 144")
    a("s_mul_i32 s37, s29, 9")
    a("s_add_u32 s36, s36, s37")
    a("s_lshl_b32 s36, s36, 10")
    T = 84
    for nb in range(9):
        vm.wait(f"CS1_{nb}")
        for rb in range(2):
            x = ACC + (rb * 9 + nb) * 4
            t = T + rb * 4
            nm, sel = bcast_sel(N1 + rb, 1, 2)
            for h in (0, 2):
                a(f"v_pk_mul_f32 v[{t+h}:{t+h+1}], v[{WF+nb*4+h}:{WF+nb*4+h+1}], {nm} {sel}")
            rr, sel = bcast_sel(R1 + rb, 1, 3)
            for h in (0, 2):
                a(f"v_pk_fma_f32 v[{x+h}:{x+h+1}], v[{x+h}:{x+h+1}], {rr}, v[{t+h}:{t+h+1}] {sel}")
            gelu_quad(a, x, t, 60, VK0, 62)
        o = 92 + (nb & 1) * 4
        for rb in range(2):
            x = ACC + (rb * 9 + nb) * 4
            for h in (0, 2):
                a(f"v_cvt_pk_bf16_f32 v{o+rb*2+h//2}, v{x+h}, v{x+h+1}")
        a(f"s_add_u32 s37, s36, {nb*1024}")
        a(f"buffer_store_dwordx4 {vr(o)}, v4, s[56:59], s37 offen")
        vm.op("Z1")
    SS = 68; QQ = 76
    a("s_lshl_b32 s36, s28, 14")
    a("s_lshl_b32 s37, s12, 8")
    a("s_add_u32 s36, s36, s37")
    a("v_lshlrev_b32 v17, 5, v3")
    a("v_lshl_add_u32 v17, v2, 10, v17")
    a("s_mov_b32 s38, 0")
    a.label("L_k4_spin")
    for rb in range(2):
        a(f"buffer_load_dwordx4 {vr(SS+rb*4)}, v17, s[44:47], s36 offen offset:{rb*128} sc0 sc1")
        a(f"buffer_load_dwordx4 {vr(QQ+rb*4)}, v17, s[44:47], s36 offen offset:{rb*128+16} sc0 sc1")
    a("s_waitcnt vmcnt(0)")
    for i in range(0, 8, 2):
        a(f"v_pk_add_f32 v[{T+i}:{T+i+1}], v[{SS+i}:{SS+i+1}], v[{QQ+i}:{QQ+i+1}]")
    a(f"v_pk_add_f32 v[{T}:{T+1}], v[{T}:{T+1}], v[{T+2}:{T+3}]")
    a(f"v_pk_add_f32 v[{T+4}:{T+5}], v[{T+4}:{T+5}], v[{T+6}:{T+7}]")
    a(f"v_pk_add_f32 v[{T}:{T+1}], v[{T}:{T+1}], v[{T+4}:{T+5}]")
    a(f"v_cmp_u_f32 vcc, v{T}, v{T+1}")
    a("s_cmp_eq_u64 vcc, 0")
    a("s_cbranch_scc1 L_k4_go")
    a("s_add_u32 s38, s38, 1")
    a("s_cmp_lt_u32 s38, 0x20000")
    a("s_cbranch_scc0 L_k4_go")
    a("s_sleep 2")
    a("s_branch L_k4_spin")
    a.label("L_k4_go")
    row16_sum(a, list(range(SS, SS + 16)))
    ln_scalars(a, [(SS + i, QQ + i) for i in range(8)], 2304)
    a("s_mul_i32 s36, s29, 576")
    a("s_add_u32 s36, s36, s33")
    a("s_lshl_b32 s36, s36, 10")
    for nb in range(9):
        for p in range(4):
            t = T + 2 * p
            hreg = HOLD + nb * 4 + p
            a(f"v_lshlrev_b32 v{t}, 16, v{hreg}")
            a(f"v_and_b32 v{t+1}, 0xffff0000, v{hreg}")
        for p in range(4):
            t = T + 2 * p
            a(f"v_pk_fma_f32 v[{t}:{t+1}], v[{t}:{t+1}], v[{QQ+2*p}:{QQ+2*p+1}], v[{SS+2*p}:{SS+2*p+1}]")
        for p in range(4):
            t = T + 2 * p
            a(f"v_cvt_pk_bf16_f32 v{HOLD+nb*4+p}, v{t}, v{t+1}")
        a(f"s_add_u32 s37, s36, {nb*65536}")
        a(f"buffer_store_dwordx4 {vr(HOLD+nb*4)}, v4, s[52:55], s37 offen")
    if PROF:
        a("s_waitcnt vmcnt(0)")
    prof_stamp(a, 13, 31); prof_real(a, 15, 31)
    a.label("L_k4_end")
    a("s_endpgm")
    return a.text(), dict(vgpr=244, agpr=144, grid=256, block=256, lds=16 * KT)
```

```python
from asmlib import *
from gen_common import *
def gen_k5():
    a = Asm()
    ZS = 18432; WB = 4 * ZS
    AF = 32; BF = 104; ACC = 120; Z1 = 192
    common_prologue(a, 256, "L_k5_end")
    a("s_load_dwordx4 s[4:7], s[0:1], 40")
    a("s_load_dwordx2 s[8:9], s[0:1], 80")
    a("s_and_b32 s13, s2, 7")
    a("s_lshr_b32 s14, s2, 3")
    a("s_and_b32 s15, s13, 1")
    a("s_lshl_b32 s15, s15, 3")
    a("s_and_b32 s28, s14, 7")
    a("s_add_u32 s28, s28, s15")
    a("s_lshr_b32 s15, s13, 1")
    a("s_lshl_b32 s15, s15, 2")
    a("s_lshr_b32 s29, s14, 3")
    a("s_add_u32 s29, s29, s15")
    a("s_lshl_b32 s33, s28, 2")
    a("s_add_u32 s33, s33, s12")
    a("v_lshlrev_b32 v4, 4, v1")
    a("s_mul_i32 s30, s29, 589824")
    a("s_lshr_b32 s31, s12, 1")
    a("s_mul_i32 s31, s31, 9")
    a("s_and_b32 s32, s12, 1")
    a("s_mul_i32 s15, s32, 5")
    a("s_add_u32 s15, s15, s31")
    for i in range(5):
        if i < 4:
            a(f"s_add_u32 s34, s15, {i}")
        else:
            a("s_add_u32 s34, s31, 4")
        a("s_lshr_b32 s35, s34, 1")
        a("s_lshl_b32 s35, s35, 16")
        a("s_and_b32 s36, s34, 1")
        a("s_lshl_b32 s36, s36, 10")
        a("s_add_u32 s35, s35, s36")
        a(f"s_add_u32 s{40+i}, s35, s30")
        a(f"s_lshl_b32 s{45+i}, s34, 10")
        if i == 4:
            a("s_lshl_b32 s35, s32, 9")
            a("s_add_u32 s44, s44, s35")
            a("s_add_u32 s49, s49, s35")
    a("v_lshrrev_b32 v16, 3, v1")
    a("v_lshlrev_b32 v16, 12, v16")
    a("v_and_b32 v17, 7, v1")
    a("v_xor_b32 v17, v17, v3")
    a("v_lshl_add_u32 v5, v17, 4, v16")
    a("v_xor_b32 v6, 64, v5")
    a("s_lshl_b32 s37, s33, 17")
    a("s_lshl_b32 s38, s12, 14")
    a(f"s_add_u32 s38, s38, {WB}")
    a("v_lshrrev_b32 v16, 1, v3")
    a("v_lshrrev_b32 v17, 1, v2")
    a("v_xor_b32 v16, v16, v17")
    a("v_lshlrev_b32 v16, 4, v16")
    a("v_lshl_add_u32 v16, v2, 7, v16")
    a("v_and_b32 v17, 1, v3")
    a("v_lshl_add_u32 v16, v17, 3, v16")
    for kk in range(2):
        for p in range(2):
            a(f"v_xor_b32 v17, {kk*64 + p*32}, v16")
            a(f"v_add_u32 v{8+kk*2+p}, s38, v17")
    a("v_lshlrev_b32 v12, 4, v1")
    a(f"v_add_u32 v13, {2*ZS}, v12")
    a("s_waitcnt lgkmcnt(0)")
    srd(a, 16, 8, 9, 2304 * 4096, off_imm=Z2T_OFF)
    srd(a, 20, 4, 5, 2048 * 4096)
    prof_init(a); prof_real(a, 6, 31); prof_stamp(a, 0, 31)
    def dma(slot):
        u = []
        def w(i):
            a(f"s_add_u32 m0, s38, {slot*4096 + i*1024}")
            a(f"s_add_u32 s39, s37, {i*32768}")
            a(f"buffer_load_dwordx4 v{5+(i&1)}, s[20:23], s39 offen lds")
        def z(i):
            a(f"s_add_u32 m0, s{45+i}, {slot*ZS}")
            if i == 4: a("s_mov_b32 exec_hi, 0")
            else: a("s_nop 0")
            a(f"buffer_load_dwordx4 v4, s[16:19], s{40+i} offen lds")
            if i == 4:
                a("s_mov_b32 exec_hi, -1")
                a("v_add_u32 v4, 2048, v4")
                a("v_add_u32 v5, 128, v5")
                a("v_add_u32 v6, 128, v6")
        for i in range(4):
            u.append(lambda i=i: z(i)); u.append(lambda i=i: w(i))
        u.append(lambda: z(4))
        return u
    for s_ in range(3):
        for f in dma(s_): f()
    srd(a, 24, 8, 9, 2304 * 4096, off_imm=Z1_OFF)
    srd(a, 52, 8, 9, 2304 * 4096, off_imm=U_OFF)
    srd(a, 56, 6, 7, 4096)
    for i in range(72):
        a(f"v_mov_b32 v{ACC+i}, 0")
    def reads(q):
        slot = (q >> 1) & 3; kk = q & 1
        af = AF + (q & 1) * 36; bf = BF + (q & 1) * 8
        r = []
        for rb in range(2):
            for p in range(2):
                r.append(f"ds_read_b64 v[{bf+rb*4+p*2}:{bf+rb*4+p*2+1}], v{8+kk*2+p} offset:{slot*4096 + rb*2048}")
        for fb in range(9):
            r.append(f"ds_read_b128 {vr(af+fb*4)}, v{12 + (slot>>1)} offset:{(slot&1)*ZS + (fb*2+kk)*1024}")
        return r
    pend = []
    def kstep(q, pace, last=False):
        af = AF + (q & 1) * 36; bf = BF + (q & 1) * 8
        rd = [] if last else reads(q + 1)
        slot = 0
        for fb in range(9):
            for rb in range(2):
                acc = ACC + (rb * 9 + fb) * 4
                a(f"v_mfma_f32_16x16x32_bf16 {vr(acc)}, {vr(af+fb*4)}, {vr(bf+rb*4)}, {vr(acc)}")
                if rd: a(rd.pop(0))
                if slot % pace == 1 and pend: pend.pop(0)()
                slot += 1
    def tail_loads():
        def z1(fb):
            if fb == 0:
                a("s_mul_i32 s36, s33, 144")
                a("s_mul_i32 s35, s29, 9")
                a("s_add_u32 s36, s36, s35")
                a("s_lshl_b32 s36, s36, 10")
            a(f"s_add_u32 s35, s36, {fb*1024}")
            a(f"buffer_load_dwordx4 {vr(Z1+fb*4)}, v12, s[24:27], s35 offen")
        def b(rb):
            if rb == 0:
                a("v_lshlrev_b32 v16, 1, v2")
                a("s_lshl_b32 s34, s33, 6")
            a(f"buffer_load_ushort v{14+rb}, v16, s[56:59], s34 offen offset:{rb*32}")
        return [lambda: b(0), lambda: b(1)] + [lambda fb=fb: z1(fb) for fb in range(9)]
    a("s_waitcnt vmcnt(18)")
    a("s_barrier")
    prof_stamp(a, 1, 31)
    for r in reads(0): a(r)
    a("s_mov_b32 s50, 0")
    pend.extend(dma(3))
    a("s_waitcnt lgkmcnt(0)")
    kstep(0, 2)
    assert not pend
    a.label("L_k5_loop")
    for q in range(1, 9):
        if q & 1:
            a("s_waitcnt vmcnt(18) lgkmcnt(0)")
            a("s_barrier")
            pend.extend(dma((q - 1) // 2))
        else:
            a("s_waitcnt lgkmcnt(0)")
        if q == 8:
            a("s_add_u32 s50, s50, 1")
        kstep(q, 4)
        assert q & 1 or not pend
    a("s_cmp_lt_u32 s50, 7")
    a("s_cbranch_scc1 L_k5_loop")
    prof_stamp(a, 2, 31)
    for q in range(1, 8):
        if q & 1 and q < 7:
            a(f"s_waitcnt vmcnt({ {1: 18, 3: 20, 5: 11}[q] }) lgkmcnt(0)")
            a("s_barrier")
            if q == 1: pend.extend(tail_loads())
        else:
            a("s_waitcnt lgkmcnt(0)")
        kstep(q, 3, last=(q == 7))
        assert q & 1 or not pend
    prof_stamp(a, 3, 31)
    a("s_waitcnt vmcnt(0)")
    a("v_lshlrev_b32 v14, 16, v14")
    a("v_lshlrev_b32 v15, 16, v15")
    a("s_mul_i32 s36, s33, 144")
    a("s_lshr_b32 s35, s29, 1")
    a("s_mul_i32 s35, s35, 9")
    a("s_add_u32 s36, s36, s35")
    a("s_lshl_b32 s36, s36, 10")
    a("s_and_b32 s34, s29, 1")
    a("s_lshl_b32 s35, s34, 12")
    a("s_add_u32 s35, s35, s36")
    a("s_lshl_b32 s34, s34, 3")
    a("s_add_u32 s36, s36, s34")
    a("s_add_u32 s36, s36, 8192")
    T = AF
    for rb in range(2):
        bb, sel = bcast_sel(14 + rb, 1, 2)
        for fb in range(9):
            x = ACC + (rb * 9 + fb) * 4
            t = T + (fb & 1) * 4
            o = T + 8 + ((fb >> 1) & 1) * 4 + (fb & 1) * 2
            for h in (0, 2):
                a(f"v_pk_add_f32 v[{x+h}:{x+h+1}], v[{x+h}:{x+h+1}], {bb} {sel}")
                zr = Z1 + fb * 4 + rb * 2 + h // 2
                a(f"v_lshlrev_b32 v{t+h}, 16, v{zr}")
                a(f"v_and_b32 v{t+h+1}, 0xffff0000, v{zr}")
            for h in (0, 2):
                a(f"v_pk_mul_f32 v[{x+h}:{x+h+1}], v[{x+h}:{x+h+1}], v[{t+h}:{t+h+1}]")
            for h in (0, 2):
                a(f"v_cvt_pk_bf16_f32 v{o+h//2}, v{x+h}, v{x+h+1}")
            if fb & 1:
                a(f"s_add_u32 s34, s35, {rb*73728 + (fb>>1)*1024}")
                a(f"buffer_store_dwordx4 {vr(o-2)}, v12, s[52:55], s34 offen")
            elif fb == 8:
                a(f"s_add_u32 s34, s36, {rb*73728}")
                a(f"buffer_store_dwordx2 {vr(o,2)}, v12, s[52:55], s34 offen")
    if PROF:
        a("s_waitcnt vmcnt(0)")
    prof_stamp(a, 4, 31); prof_stamp(a, 5, 31); prof_real(a, 7, 31)
    a.label("L_k5_end")
    a("s_endpgm")
    return a.text(), dict(vgpr=228, agpr=0, grid=256, block=256, lds=WB + 65536)
```

```python
import sys
from asmlib import *
from gen_common import *
from k1 import gen_k1
from k2 import gen_k2
from k36 import gen_k36
from k4 import gen_k4
from k5 import gen_k5
KERNELS = [("k1_kernel", gen_k1), ("k2_kernel", gen_k2), ("k3_kernel", lambda: gen_k36(3)), ("k4_kernel", gen_k4), ("k5_kernel", gen_k5), ("k6_kernel", lambda: gen_k36(6))]

import os
if os.environ.get("NK"): KERNELS = KERNELS[:int(os.environ["NK"])]
def main(out):
    hdr = open("sequential_preLN__mha_block__mixer_gmlp__prompt.s.ref").read().split("; Override launch")[0]
    txt = hdr
    bodies = []
    for name, fn in KERNELS:
        body, info = fn()
        bodies.append((name, body, info))
        txt += f"; @launch kernel={name} grid=({info['grid']},1,1) block=({info['block']},1,1) lds={info['lds']}\n"
    txt += '.amdgcn_target "amdgcn-amd-amdhsa--gfx950"\n.text\n'
    for name, body, info in bodies:
        txt += kernel_header(name) + body
    txt += '.section .rodata,"a"\n'
    for name, body, info in bodies:
        txt += kernel_desc(name, info["vgpr"], info.get("agpr", 0))
    open(out, "w").write(txt)

if __name__ == "__main__":
    main(sys.argv[1] if len(sys.argv) > 1 else "sequential_preLN__mha_block__mixer_gmlp__prompt.s")
```

```python
from asmlib import *
from gen_common import *
PFG = int(os.environ.get('PFG', '0'))
NT = os.environ.get('K1NT', '')
def gen_k1():
    a = Asm()
    vm = VmTrack(a)
    SL = 32768; RS = 131072
    XF = 32; WF = 64; ACC = 96; ST = 212; RR = 176; NN = 192; CSR = 208; ONE = 160
    common_prologue(a, 224, "L_k1_end")
    a("s_load_dwordx4 s[4:7], s[0:1], 0")
    a("s_load_dwordx2 s[8:9], s[0:1], 80")
    a("s_and_b32 s13, s2, 7")
    a("s_lshr_b32 s14, s2, 3")
    a("s_lshr_b32 s10, s13, 1")
    a("s_lshl_b32 s10, s10, 2")
    a("s_and_b32 s15, s14, 3")
    a("s_add_u32 s10, s10, s15")
    a("s_and_b32 s11, s13, 1")
    a("s_mul_i32 s11, s11, 7")
    a("s_lshr_b32 s15, s14, 2")
    a("s_add_u32 s11, s11, s15")
    a("s_lshr_b32 s28, s12, 1")
    a("s_and_b32 s29, s12, 1")
    a("s_mov_b32 s30, 0x3f803f80")
    a("v_lshrrev_b32 v16, 3, v1")
    a("v_and_b32 v17, 7, v1")
    a("v_xor_b32 v17, v17, v16")
    a("v_mul_u32_u24 v4, 1152, v16")
    a("v_lshl_add_u32 v4, v17, 4, v4")
    a("v_bfe_u32 v16, v1, 1, 3")
    a("v_xor_b32 v16, v16, v3")
    a("v_and_b32 v17, 1, v1")
    a("v_lshl_or_b32 v16, v16, 1, v17")
    a("v_mul_u32_u24 v5, 3456, v3")
    a("v_lshlrev_b32 v16, 4, v16")
    a("v_xor_b32 v17, 128, v16")
    a("v_add_u32 v6, v5, v17")
    a("v_add_u32 v5, v5, v16")
    a("s_lshl_b32 s31, s10, 7")
    a("s_lshl_b32 s15, s12, 5")
    a("s_add_u32 s31, s31, s15")
    a("s_mul_i32 s31, s31, 1152")
    a("s_lshl_b32 s32, s28, 5")
    a("s_lshl_b32 s15, s29, 2")
    a("s_add_u32 s32, s32, s15")
    a("s_mul_i32 s32, s32, 3456")
    a("s_lshl_b32 s15, s11, 8")
    a("s_add_u32 s32, s32, s15")
    a("s_lshl_b32 s33, s12, 12")
    a("s_add_u32 s34, s33, 16384")
    a("s_waitcnt lgkmcnt(0)")
    srd(a, 16, 4, 5, 2048 * 1152)
    srd(a, 20, 6, 7, 576 * 3456)
    prof_init(a); prof_real(a, 14, 31); prof_stamp(a, 8, 31)
    def dma(c):
        def x(i):
            a(f"s_add_u32 m0, s33, {(c%5)*SL + i*1024}")
            a(f"s_add_u32 s35, s31, {i*8*1152 + c*128}")
            a("buffer_load_dwordx4 v4, s[16:19], s35 offen" + NT + " lds")
            vm.op(f"C{c}")
        def w(i):
            a(f"s_add_u32 m0, s34, {(c%5)*SL + i*1024}")
            a(f"s_add_u32 s35, s32, {(64*c + 8*i)*3456}")
            a(f"buffer_load_dwordx4 v{5+(i&1)}, s[20:23], s35 offen" + NT + " lds")
            vm.op(f"C{c}")
        u = []
        for i in range(4):
            u.append(lambda i=i: x(i)); u.append(lambda i=i: w(i))
        return u
    for c in range(4):
        for f in dma(c): f()
    srd(a, 24, 8, 9, 1728 * 4096, off_imm=QKVT_OFF)
    if os.environ.get("TLBPF"):
        G = int(os.environ["TLBPF"])
        a(f"v_mul_u32_u24 v17, {G}, v0")
        for j in range((2359296 // G + 255) // 256):
            a(f"s_mov_b32 s15, {j*256*G}")
            a("buffer_load_dword v30, v17, s[16:19], s15 offen"); vm.op("PF")
            a("buffer_load_dword v30, v17, s[20:23], s15 offen"); vm.op("PF")
    if PFG:
        G = PFG; per = 1792 // G
        a("s_lshl_b32 s15, s14, 8")
        a("v_add_u32 v16, s15, v0")
        a("s_lshr_b32 s15, s13, 1")
        a("s_mul_i32 s15, s15, 589824")
        nx = 589824 // G
        for j in range((nx + 7167) // 7168):
            a(f"v_add_u32 v17, {7168*j}, v16")
            a(f"v_cmp_gt_u32 vcc, {nx}, v17")
            a(f"v_mul_u32_u24 v17, {G}, v17")
            a("v_cndmask_b32 v17, -1, v17, vcc")
            a("buffer_load_dword v30, v17, s[16:19], s15 offen"); vm.op("PF")
        a("s_and_b32 s15, s13, 1")
        a("s_mul_i32 s15, s15, 1792")
        nw = 576 * per
        m, sh = magic_div(per, (nw + 7167) // 7168 * 7168)
        for j in range((nw + 7167) // 7168):
            a(f"v_add_u32 v17, {7168*j}, v16")
            a(f"v_mul_u32_u24 v18, {m}, v17")
            a(f"v_lshrrev_b32 v18, {sh}, v18")
            a(f"v_mul_u32_u24 v17, {G}, v17")
            a(f"v_mul_u32_u24 v18, {3456-1792}, v18")
            a("v_add_u32 v17, v17, v18")
            a("buffer_load_dword v30, v17, s[20:23], s15 offen"); vm.op("PF")
    a("v_and_b32 v16, 7, v2")
    a("v_xor_b32 v16, v16, v3")
    a("v_lshlrev_b32 v16, 4, v16")
    a("v_lshl_add_u32 v16, v2, 7, v16")
    a("s_lshl_b32 s15, s28, 13")
    a("s_lshl_b32 s35, s29, 12")
    a("s_add_u32 s36, s15, s35")
    a("s_xor_b32 s37, s36, 4096")
    for pair in range(2):
        for kk in range(2):
            a(f"v_xor_b32 v17, {kk*64}, v16")
            a(f"v_add_u32 v{8+pair*2+kk}, s{36+pair}, v17")
            a(f"v_add_u32 v{12+pair*2+kk}, 0x10000, v{8+pair*2+kk}")
            a(f"v_add_u32 v{164+pair*2+kk}, 0x20000, v{8+pair*2+kk}")
    a("v_lshrrev_b32 v16, 2, v1")
    a("v_and_b32 v17, 7, v16")
    a("v_lshlrev_b32 v16, 8, v16")
    a("v_and_b32 v18, 3, v1")
    a("v_lshl_add_u32 v16, v18, 3, v16")
    a("v_add_u32 v16, 16384, v16")
    a("s_lshl_b32 s15, s29, 2")
    a("s_lshl_b32 s35, s28, 1")
    a("s_add_u32 s38, s15, s35")
    for nb in range(4):
        a(f"s_xor_b32 s15, s38, {nb}")
        a("v_xor_b32 v18, s15, v17")
        a(f"v_lshl_add_u32 v{20+nb}, v18, 5, v16")
        a(f"v_add_u32 v{24+nb}, 0x10000, v{20+nb}")
        a(f"v_add_u32 v{168+nb}, 0x20000, v{20+nb}")
    for i in range(4):
        a(f"v_mov_b32 v{ONE+i}, 0x3f803f80")
    def reads(q):
        slot = (q >> 1) % 5; kk = q & 1; sp = slot >> 1; so = (slot & 1) * SL
        xf = XF + (q & 1) * 16; wf = WF + (q & 1) * 16
        r = []
        for i in range(4):
            r.append(f"ds_read_b128 {vr(xf+i*4)}, v{[8,12,164][sp]+(i>>1)*2+kk} offset:{so + (i&1)*2048}")
            for rd in range(2):
                r.append(f"ds_read_b64_tr_b16 v[{wf+i*4+rd*2}:{wf+i*4+rd*2+1}], v{[20,24,168][sp]+i} offset:{so + kk*8192 + rd*4096}")
        return r
    pend = []
    def kstep(q, pace):
        xf = XF + (q & 1) * 16; wf = WF + (q & 1) * 16
        rd = reads(q + 1) if q < 17 else []
        mf = []
        for nb in range(4):
            for rb in range(4):
                acc = ACC + (rb * 4 + nb) * 4
                mf.append(f"v_mfma_f32_16x16x32_bf16 {vr(acc)}, {vr(xf+rb*4)}, {vr(wf+nb*4)}, {vr(acc) if q else 0}")
        for b in range(2):
            mf.append(f"v_mfma_f32_16x16x32_bf16 {vr(ST+b*4)}, {vr(xf+b*4)}, {vr(ONE)}, {vr(ST+b*4) if q else 0}")
            mf.append(f"v_mfma_f32_16x16x32_bf16 {vr(ST+8+b*4)}, {vr(xf+b*4)}, {vr(xf+b*4)}, {vr(ST+8+b*4) if q else 0}")
            mf.append(f"v_mfma_f32_16x16x32_bf16 {vr(ST+16+b*4)}, {vr(ONE)}, {vr(wf+b*4)}, {vr(ST+16+b*4) if q else 0}")
        if q == 17: mf = mf[16:] + mf[:16]
        for slot, m_ in enumerate(mf):
            a(m_)
            if rd: a(rd.pop(0))
            if slot % pace == 1 and pend: pend.pop(0)()
    vm.wait("C0")
    a("s_barrier")
    prof_stamp(a, 9, 31)
    for r in reads(0): a(r)
    pend.extend(dma(4))
    for q in range(18):
        if q & 1 and q < 17:
            c = (q + 1) // 2
            vm.wait(f"C{c}")
            a("s_waitcnt lgkmcnt(0)")
            a("s_barrier")
            if c + 4 < 9: pend.extend(dma(c + 4))
        else:
            a("s_waitcnt lgkmcnt(0)")
        kstep(q, 2 if q == 0 else 5)
        assert q & 1 or not pend
    prof_stamp(a, 10, 31)
    a("v_and_b32 v16, 3, v2")
    for b in range(2):
        for j in range(1, 4):
            a(f"v_cmp_eq_u32 vcc, {j}, v16")
            a(f"v_cndmask_b32 v{ST+b*4}, v{ST+b*4}, v{ST+b*4+j}, vcc")
            a(f"v_cndmask_b32 v{ST+8+b*4}, v{ST+8+b*4}, v{ST+8+b*4+j}, vcc")
    ln_scalars(a, [(ST, ST + 8), (ST + 4, ST + 12)], 576)
    a("s_lshl_b32 s15, s28, 8")
    a("s_lshl_b32 s35, s29, 7")
    a("s_add_u32 s15, s15, s35")
    a("v_lshlrev_b32 v16, 2, v2")
    a(f"v_add_u32 v16, {RS}, v16")
    a("v_add_u32 v17, s15, v16")
    a("v_lshrrev_b32 v18, 2, v2")
    a("v_cmp_eq_u32 vcc, v18, v3")
    a(f"v_mov_b32 v18, {RS + 1536}")
    a("v_cndmask_b32 v17, v18, v17, vcc")
    a("s_lshl_b32 s15, s29, 8")
    a("s_lshl_b32 s35, s28, 7")
    a("s_add_u32 s15, s15, s35")
    a("v_add_u32 v18, s15, v16")
    for b in range(2):
        a(f"ds_write_b32 v17, v{ST+8+4*b} offset:{b*64}")
        a(f"ds_write_b32 v17, v{ST+4*b} offset:{512+b*64}")
        a(f"ds_write_b32 v18, v{ST+16+4*b} offset:{1024+b*64}")
    a("s_lshl_b32 s15, s28, 8")
    a("s_lshl_b32 s35, s29, 7")
    a("s_add_u32 s15, s15, s35")
    a("s_xor_b32 s35, s15, 128")
    a("v_lshlrev_b32 v17, 4, v3")
    a(f"v_add_u32 v17, {RS}, v17")
    a("v_add_u32 v19, s35, v17")
    a("v_add_u32 v17, s15, v17")
    a("v_xor_b32 v7, 128, v18")
    a("s_lshl_b32 s39, s11, 7")
    a("s_lshl_b32 s15, s29, 6")
    a("s_add_u32 s39, s39, s15")
    a("s_cmp_lt_u32 s39, 576")
    a(f"s_mov_b32 s40, {f32bits(QSCALE):#x}")
    a("s_cselect_b32 s40, s40, 1.0")
    a("s_waitcnt lgkmcnt(0)")
    a("s_barrier")
    for rb in range(4):
        a(f"ds_read_b128 {vr(RR+rb*4)}, v{17 if rb < 2 else 19} offset:{(rb&1)*64}")
        a(f"ds_read_b128 {vr(NN+rb*4)}, v{17 if rb < 2 else 19} offset:{512+(rb&1)*64}")
        a(f"ds_read_b32 v{CSR+rb}, v{18 if rb < 2 else 7} offset:{1024+(rb&1)*64}")
    a("s_mul_i32 s41, s12, 9216")
    a("v_mul_u32_u24 v16, 144, v2")
    a("v_lshl_add_u32 v16, v3, 3, v16")
    a("v_add_u32 v16, s41, v16")
    a(f"s_mul_i32 s15, s28, {32*144}")
    a(f"s_sub_u32 s35, {32*144}, s15")
    a("s_lshl_b32 s36, s29, 6")
    a("s_xor_b32 s37, s36, 64")
    for pn in range(2):
        for pr in range(2):
            a(f"s_add_u32 s42, s{15 if pn == 0 else 35}, s{36+pr}")
            a(f"v_add_u32 v{8+pn*2+pr}, s42, v16")
    a("s_waitcnt lgkmcnt(0)")
    for i in range(32):
        a(f"v_mul_f32 v{RR+i}, s40, v{RR+i}")
    for nb in range(4):
        cs, sel = bcast_sel(CSR + nb, 1, 2)
        for rb in range(4):
            x = ACC + (rb * 4 + nb) * 4
            t = XF + (rb & 1) * 8
            for h in (0, 2):
                a(f"v_pk_mul_f32 v[{t+h}:{t+h+1}], v[{NN+rb*4+h}:{NN+rb*4+h+1}], {cs} {sel}")
            for h in (0, 2):
                a(f"v_pk_fma_f32 v[{x+h}:{x+h+1}], v[{x+h}:{x+h+1}], v[{RR+rb*4+h}:{RR+rb*4+h+1}], v[{t+h}:{t+h+1}]")
            for h in (0, 2):
                a(f"v_cvt_pk_bf16_f32 v{t+4+h//2}, v{x+h}, v{x+h+1}")
            a(f"ds_write_b64 v{8+(nb>>1)*2+(rb>>1)}, v[{t+4}:{t+5}] offset:{(nb&1)*16*144 + (rb&1)*32}")
    prof_stamp(a, 11, 31)
    a("v_lshrrev_b32 v16, 3, v1")
    a("v_and_b32 v17, 7, v1")
    a("v_mul_u32_u24 v18, 144, v16")
    a("v_lshl_add_u32 v18, v17, 4, v18")
    a("v_add_u32 v18, s41, v18")
    a("v_add_u32 v16, s39, v16")
    a("v_lshlrev_b32 v16, 12, v16")
    a("v_lshl_add_u32 v16, v17, 4, v16")
    a("s_lshl_b32 s15, s10, 8")
    a("s_lshl_b32 s35, s28, 7")
    a("s_add_u32 s15, s15, s35")
    a("v_add_u32 v16, s15, v16")
    a("s_waitcnt lgkmcnt(0)")
    for i in range(8):
        a(f"ds_read_b128 {vr(ACC+i*4)}, v18 offset:{i*8*144}")
    for i in range(8):
        a(f"s_waitcnt lgkmcnt({7-i})")
        a(f"buffer_store_dwordx4 {vr(ACC+i*4)}, v16, s[24:27], 0 offen")
        if i < 7: a("v_add_u32 v16, 0x8000, v16")
    if PROF:
        a("s_waitcnt vmcnt(0)")
    prof_stamp(a, 12, 31); prof_stamp(a, 13, 31); prof_real(a, 15, 31)
    a.label("L_k1_end")
    a("s_endpgm")
    return a.text(), dict(vgpr=236, agpr=0, grid=224, block=256, lds=163840)
```

```python
from asmlib import *
from gen_common import *

import os
DEBUG = bool(os.environ.get('K2DEBUG'))
PREF = not os.environ.get('NOPREF')
def gen_k2():
    a = Asm()
    KP = 4160; ONES = 18 * KP; VB = 83296; VP = 4112
    LDS = 157440
    Q1 = 16; Q2 = 20
    KA = [24, 32]; KB = [28, 36]
    VF = [40, 48]
    SB_ = [64, 80]
    P = 56
    O = 96
    a(f"s_cmp_ge_u32 s2, 256")
    a(f"s_cbranch_scc1 L_k2_end")
    a("s_load_dwordx2 s[8:9], s[0:1], 80")
    a("s_load_dwordx2 s[60:61], s[0:1], 16")
    a("s_load_dwordx4 s[64:67], s[0:1], 32")
    a("s_load_dwordx2 s[62:63], s[0:1], 56")
    a("v_lshrrev_b32 v1, 6, v0")
    a("s_nop 0")
    a("v_readfirstlane_b32 s12, v1")
    a("v_and_b32 v1, 63, v0")
    a("s_and_b32 s13, s2, 7")
    a("s_lshr_b32 s14, s2, 3")
    a("s_lshl_b32 s10, s13, 2")
    a("s_and_b32 s15, s14, 3")
    a("s_add_u32 s10, s10, s15")
    a("s_lshr_b32 s11, s14, 2")
    a("s_mul_i32 s28, s10, 18")
    a("v_lshlrev_b32 v2, 4, v1")
    a("s_waitcnt lgkmcnt(0)")
    srd(a, 16, 8, 9, 1728 * 4096, off_imm=QKVT_OFF)
    srd(a, 24, 8, 9, 2048 * 1152, off_imm=O_OFF)
    prof_init(a); prof_real(a, 5, 116); prof_stamp(a, 0, 116)
    a("s_mul_i32 s29, s12, 9")
    for ch in range(2):
        for i in range(9):
            a(f"s_add_u32 s30, s29, {i}")
            a("s_lshr_b32 s31, s30, 1")
            a("s_and_b32 s30, s30, 1")
            a("s_lshl_b32 s30, s30, 10")
            a(f"s_add_u32 s30, s30, {ch*2048}")
            a(f"s_mul_i32 s32, s31, {KP}")
            a(f"s_mul_i32 s33, s31, {VP}")
            a(f"s_add_u32 s33, s33, {VB - 18*VP}")
            a("s_add_u32 s34, s31, 558")
            a("s_cmp_lt_u32 s31, 18")
            a("s_cselect_b32 s32, s32, s33")
            a("s_cselect_b32 s31, s31, s34")
            a("s_add_u32 m0, s32, s30")
            a("s_add_u32 s31, s31, s28")
            a("s_add_u32 s31, s31, 576")
            a("s_lshl_b32 s31, s31, 12")
            a("s_add_u32 s31, s31, s30")
            a("buffer_load_dwordx4 v2, s[16:19], s31 offen lds")
    a("v_and_b32 v3, 31, v1")
    a("v_lshrrev_b32 v4, 5, v1")
    a("s_lshl_b32 s30, s11, 8")
    a("s_lshl_b32 s31, s12, 5")
    a("s_add_u32 s30, s30, s31")
    a("v_add_u32 v5, s30, v3")
    a("v_lshlrev_b32 v6, 1, v5")
    a("v_lshl_add_u32 v7, v4, 15, v6")
    a("s_lshl_b32 s31, s28, 12")
    for j in range(8):
        a(f"s_add_u32 s32, s31, {j*4096}")
        a(f"buffer_load_ushort v{(Q1 if (j&1)==0 else SB_[0])+j//2}, v7, s[16:19], s32 offen")
    for j in range(2):
        a(f"s_add_u32 s32, s31, {(16+j)*4096}")
        a(f"buffer_load_ushort v{Q2 if j==0 else SB_[0]+4}, v6, s[16:19], s32 offen")
    a("v_mov_b32 v8, 0x3f803f80")
    for j in range(9, 12):
        a(f"v_mov_b32 v{j}, v8")
    a("v_lshlrev_b32 v12, 4, v0")
    a(f"v_add_u32 v12, {ONES}, v12")
    a(f"ds_write_b128 v12, v[8:11]")
    a("v_and_b32 v12, 7, v0")
    a("v_lshlrev_b32 v12, 4, v12")
    a(f"v_add_u32 v12, {ONES + 8192}, v12")
    a("ds_write_b128 v12, v[8:11]")
    a("v_bfe_u32 v8, v1, 2, 2")
    a("v_and_b32 v9, 1, v1")
    a("v_bfe_u32 v10, v1, 1, 1")
    a("v_lshl_or_b32 v9, v9, 1, v10")
    a("v_bfe_u32 v10, v1, 4, 1")
    a("v_lshl_add_u32 v9, v10, 2, v9")
    a("v_lshlrev_b32 v9, 3, v9")
    a("v_lshl_add_u32 v10, v4, 3, v8")
    a(f"v_mul_u32_u24 v10, {KP}, v10")
    a("v_add_u32 v112, v10, v9")
    a("v_add_u32 v10, 16, v8")
    a(f"v_mul_u32_u24 v10, {KP}, v10")
    a("v_add_u32 v113, v10, v9")
    a("v_mov_b32 v8, 4")
    a("v_subrev_u32 v9, 20, v3")
    a("v_cmp_gt_u32 vcc, 8, v9")
    a("s_nop 1")
    a("v_cndmask_b32 v8, v8, 0, vcc")
    a("v_cmp_gt_u32 vcc, 18, v3")
    a("s_nop 1")
    a("v_cndmask_b32 v8, v8, v3, vcc")
    a(f"v_mul_u32_u24 v8, {VP}, v8")
    a(f"v_add_u32 v8, {VB}, v8")
    a(f"v_mov_b32 v9, {ONES}")
    a("v_cmp_eq_u32 vcc, 18, v3")
    a("s_nop 1")
    a("v_cndmask_b32 v8, v8, v9, vcc")
    a("v_lshl_add_u32 v114, v4, 4, v8")
    a("v_xor_b32 v115, 32, v1")
    a("v_lshlrev_b32 v115, 2, v115")
    for b in range(2):
        a(f"v_mov_b32 v{KB[b]+2}, 0")
        a(f"v_mov_b32 v{KB[b]+3}, 0")
    a(f"v_mov_b32 v{Q2+2}, 0")
    a(f"v_mov_b32 v{Q2+3}, 0")
    a("v_cmp_eq_u32 s[40:41], 0, v4")
    a("s_waitcnt vmcnt(0)")
    for j in range(5):
        a(f"v_lshl_or_b32 v{Q1+j}, v{SB_[0]+j}, 16, v{Q1+j}")
    a(f"v_cndmask_b32 v{Q2}, 0, v{Q2}, s[40:41]")
    a("s_waitcnt lgkmcnt(0)")
    a("s_barrier")
    prof_stamp(a, 1, 116)
    if PREF:
        a("s_lshl_b32 s68, s2, 9")
        a("v_add_u32 v117, s68, v0")
        a("v_lshlrev_b32 v117, 6, v117")
        for (lo, size) in ((60, 576 * 1152), (64, 576 * 9216), (66, 2048 * 4096), (62, 2304 * 1152)):
            srd(a, 72, lo, lo + 1, size)
            a("buffer_load_dword v118, v117, s[72:75], 0 offen")
    a("s_mov_b32 s36, 1")
    a("s_mov_b32 s37, 0")
    a.label("L_k2_maxpass")
    a(f"v_mov_b32 v{Q2+1}, 0")
    a("v_mov_b32 v8, 0xff800000")
    a("v_mov_b32 v13, v112")
    a("v_mov_b32 v14, v113")
    a("s_mov_b32 s38, 0")
    a.label("L_k2_maxloop")
    a(f"ds_read_b64_tr_b16 v[{KA[0]}:{KA[0]+1}], v13")
    a(f"ds_read_b64_tr_b16 v[{KA[0]+2}:{KA[0]+3}], v13 offset:{4*KP}")
    a(f"ds_read_b64_tr_b16 v[{KB[0]}:{KB[0]+1}], v14")
    a("v_add_u32 v13, 64, v13")
    a("v_add_u32 v14, 64, v14")
    a("s_waitcnt lgkmcnt(0)")
    a(f"v_mfma_f32_32x32x16_bf16 {vr(SB_[0],16)}, {vr(KA[0])}, {vr(Q1)}, 0")
    a(f"v_mfma_f32_32x32x16_bf16 {vr(SB_[0],16)}, {vr(KB[0])}, {vr(Q2)}, {vr(SB_[0],16)}")
    a("s_nop 15")
    a("s_nop 3")
    for i in range(8):
        a(f"v_max3_f32 v8, v8, v{SB_[0]+2*i}, v{SB_[0]+2*i+1}")
    a("s_add_u32 s38, s38, 1")
    a("s_cmp_lt_u32 s38, s36")
    a("s_cbranch_scc1 L_k2_maxloop")
    if DEBUG:
        srd(a, 48, 8, 9, 1 << 20, off_imm=48 << 20)
        a("v_lshlrev_b32 v10, 2, v0")
        a("s_mul_i32 s52, s2, 0x10000")
        for i in range(16):
            a(f"buffer_store_dword v{SB_[0]+i}, v10, s[48:51], s52 offen offset:{i*2048 % 4096}") if i < 2 else None
        for i in range(16):
            a(f"s_add_u32 s53, s52, {i*2048}")
            a(f"buffer_store_dword v{SB_[0]+i}, v10, s[48:51], s53 offen")
        for i in range(4):
            a(f"s_add_u32 s53, s52, {(16+i)*2048}")
            a(f"buffer_store_dword v{KA[0]+i}, v10, s[48:51], s53 offen")
            a(f"s_add_u32 s53, s52, {(20+i)*2048}")
            a(f"buffer_store_dword v{Q1+i}, v10, s[48:51], s53 offen")
            a(f"s_add_u32 s53, s52, {(24+i)*2048}")
            a(f"buffer_store_dword v{KB[0]+i}, v10, s[48:51], s53 offen")
            a(f"s_add_u32 s53, s52, {(28+i)*2048}")
            a(f"buffer_store_dword v{Q2+i}, v10, s[48:51], s53 offen")
    a("ds_bpermute_b32 v9, v115, v8")
    a("s_waitcnt lgkmcnt(0)")
    a("v_max_f32 v8, v8, v9")
    a("v_sub_f32 v8, 0, v8")
    a("v_cvt_pk_bf16_f32 v9, v8, v8")
    a("v_lshlrev_b32 v9, 16, v9")
    a("v_sub_f32 v10, v8, v9")
    a("v_cvt_pk_bf16_f32 v9, v9, v10")
    a(f"v_cndmask_b32 v{Q2+1}, 0, v9, s[40:41]")
    a("v_mov_b32 v13, v112")
    a("v_mov_b32 v14, v113")
    a("v_mov_b32 v15, v114")
    def kreads(b, toff):
        a(f"ds_read_b64_tr_b16 v[{KA[b]}:{KA[b]+1}], v13 offset:{toff*64}")
        a(f"ds_read_b64_tr_b16 v[{KA[b]+2}:{KA[b]+3}], v13 offset:{4*KP + toff*64}")
        a(f"ds_read_b64_tr_b16 v[{KB[b]}:{KB[b]+1}], v14 offset:{toff*64}")
    def vreads(b, toff):
        a(f"ds_read_b128 {vr(VF[b])}, v15 offset:{toff*64}")
        a(f"ds_read_b128 {vr(VF[b]+4)}, v15 offset:{toff*64+32}")
    kreads(0, 0)
    for i in range(16):
        a(f"v_mov_b32 v{O+i}, 0")
    for i in range(8):
        a(f"v_mov_b32 v{P+i}, 0")
        a(f"v_mov_b32 v{VF[1]+i}, 0")
    a("s_waitcnt lgkmcnt(0)")
    a(f"v_mfma_f32_32x32x16_bf16 {vr(SB_[0],16)}, {vr(KA[0])}, {vr(Q1)}, 0")
    a(f"v_mfma_f32_32x32x16_bf16 {vr(SB_[0],16)}, {vr(KB[0])}, {vr(Q2)}, {vr(SB_[0],16)}")
    kreads(1, 1)
    vreads(0, 0)
    a("s_nop 15")
    prof_stamp(a, 2, 116)
    a("s_mov_b32 s38, 0")
    a.label("L_k2_loop")
    for par in range(2):
        Sx = SB_[par]; N = SB_[1 - par]
        kb = 1 - par
        a("s_waitcnt lgkmcnt(2)")
        a(f"v_mfma_f32_32x32x16_bf16 {vr(N,16)}, {vr(KA[kb])}, {vr(Q1)}, 0")
        a(f"v_mfma_f32_32x32x16_bf16 {vr(O,16)}, {vr(VF[1-par]+4)}, {vr(P+4)}, {vr(O,16)}")
        for i in range(0, 4):
            a(f"v_exp_f32 v{Sx+i}, v{Sx+i}")
        a(f"v_mfma_f32_32x32x16_bf16 {vr(N,16)}, {vr(KB[kb])}, {vr(Q2)}, {vr(N,16)}")
        kreads(par, par + 2)
        vreads(1 - par, par + 1)
        for i in range(4, 8):
            a(f"v_exp_f32 v{Sx+i}, v{Sx+i}")
        a(f"v_exp_f32 v{Sx+8}, v{Sx+8}")
        for i in range(4):
            a(f"v_cvt_pk_bf16_f32 v{P+i}, v{Sx+2*i}, v{Sx+2*i+1}")
        a(f"v_exp_f32 v{Sx+9}, v{Sx+9}")
        a("s_waitcnt lgkmcnt(5)")
        a(f"v_mfma_f32_32x32x16_bf16 {vr(O,16)}, {vr(VF[par])}, {vr(P)}, {vr(O,16)}")
        for i in range(10, 16):
            a(f"v_exp_f32 v{Sx+i}, v{Sx+i}")
        if par == 1:
            a("v_add_u32 v13, 128, v13")
            a("v_add_u32 v14, 128, v14")
            a("v_add_u32 v15, 128, v15")
            a("s_add_u32 s38, s38, 1")
            a("s_cmp_lt_u32 s38, 32")
        else:
            a("s_nop 0")
        for i in range(4, 8):
            a(f"v_cvt_pk_bf16_f32 v{P+i}, v{Sx+2*i}, v{Sx+2*i+1}")
    a("s_cbranch_scc1 L_k2_loop")
    a("s_nop 1")
    a(f"v_mfma_f32_32x32x16_bf16 {vr(O,16)}, {vr(VF[1]+4)}, {vr(P+4)}, {vr(O,16)}")
    a("s_waitcnt lgkmcnt(0)")
    a("s_nop 15")
    a("s_nop 3")
    prof_stamp(a, 3, 116)
    a(f"ds_bpermute_b32 v9, v115, v{O+10}")
    a("s_waitcnt lgkmcnt(0)")
    a(f"v_cndmask_b32 v9, v9, v{O+10}, s[40:41]")
    a("s_cmp_lg_u32 s37, 0")
    a("s_cbranch_scc1 L_k2_store")
    a(f"v_max3_f32 v10, abs(v{O}), abs(v{O+1}), abs(v{O+2})")
    for i in range(3, 15, 2):
        a(f"v_max3_f32 v10, v10, abs(v{O+i}), abs(v{O+i+1})")
    a(f"v_max_f32 v10, v10, abs(v{O+15})")
    a(f"v_mov_b32 v11, {f32bits(2.0**60):#x}")
    a(f"v_mov_b32 v12, {f32bits(2.0**120):#x}")
    a("v_cmp_lt_f32 s[42:43], v9, v11")
    a("v_cmp_lt_f32 s[44:45], v10, v12")
    for i in range(16):
        a(f"v_cmp_o_f32 vcc, v{O+i}, v{O+i}")
        a("s_and_b64 s[42:43], s[42:43], vcc")
    a("s_and_b64 s[42:43], s[42:43], s[44:45]")
    a("s_cmp_eq_u64 s[42:43], exec")
    a("s_cbranch_scc1 L_k2_store")
    a("s_mov_b32 s37, 1")
    a("s_mov_b32 s36, 64")
    a("s_branch L_k2_maxpass")
    a.label("L_k2_store")
    a("v_rcp_f32 v9, v9")
    a("s_nop 0")
    for i in range(10):
        a(f"v_mul_f32 v{O+i}, v{O+i}, v9")
    for i in range(5):
        a(f"v_cvt_pk_bf16_f32 v{P+i}, v{O+2*i}, v{O+2*i+1}")
    a("v_lshrrev_b32 v10, 4, v5")
    a("v_mul_u32_u24 v10, 18432, v10")
    a("v_and_b32 v11, 15, v5")
    a("v_lshl_add_u32 v10, v11, 4, v10")
    a("v_lshl_add_u32 v11, v4, 8, v10")
    a("s_lshl_b32 s31, s10, 9")
    a(f"buffer_store_dwordx4 {vr(P)}, v11, s[24:27], s31 offen")
    a("s_lshr_b32 s31, s10, 2")
    a("s_lshl_b32 s31, s31, 8")
    a("s_and_b32 s32, s10, 3")
    a("s_lshl_b32 s32, s32, 2")
    a("s_add_u32 s31, s31, s32")
    a("s_add_u32 s31, s31, 16384")
    a("v_mov_b32 v11, 0x7f000000")
    a("v_cndmask_b32 v10, v11, v10, s[40:41]")
    a(f"buffer_store_dword v{P+4}, v10, s[24:27], s31 offen")
    a("s_waitcnt vmcnt(0)")
    prof_stamp(a, 4, 116); prof_real(a, 6, 116)
    a.label("L_k2_end")
    a("s_endpgm")
    return a.text(), dict(vgpr=120, agpr=0, grid=256, block=512, lds=LDS)
```

```python
import sys, math
from asmlib import *

S, D, H, DH, F, FH = 2048, 576, 32, 18, 4608, 2304
QKVT_OFF = 0
O_OFF = 7077888
H_OFF = 9437184
Z1_OFF = 11796480
Z2T_OFF = 21233664
U_OFF = 30670848
CS_OFF = 40108032
WP_OFF = 39 << 20
WSPP_OFF = Z1_OFF
WOP_OFF = (177 << 18)
FL_OFF = 47 << 20
def wp_unit(z, ks, nb):
    return (0 if z == 2 else 162) + 54 * (nb // 3) + ks * 3 + nb % 3
QSCALE = (DH ** -0.5) * math.log2(math.e)

def common_prologue(a, nwg, end_label):
    a(f"s_cmp_ge_u32 s2, {nwg}")
    a(f"s_cbranch_scc1 {end_label}")
    a("v_lshrrev_b32 v1, 6, v0")
    a("s_nop 0")
    a("v_readfirstlane_b32 s12, v1")
    a("v_and_b32 v1, 63, v0")
    a("v_and_b32 v2, 15, v0")
    a("v_bfe_u32 v3, v0, 4, 2")

def dma_voffsets(a, vbase, ninstr, cpr, ldw_bytes, vt):
    m, sh = magic_div(cpr, ninstr * 64)
    for i in range(ninstr):
        a(f"v_add_u32 v{vt}, {i*64}, v1")
        a(f"v_mul_u32_u24 v{vt+1}, {m}, v{vt}")
        a(f"v_lshrrev_b32 v{vt+1}, {sh}, v{vt+1}")
        a(f"v_mul_u32_u24 v{vt+2}, {cpr}, v{vt+1}")
        a(f"v_sub_u32 v{vt+2}, v{vt}, v{vt+2}")
        a(f"v_bfe_u32 v{vt+3}, v{vt+1}, 2, 2")
        a(f"v_lshlrev_b32 v{vt+3}, 3, v{vt+3}")
        a(f"v_lshrrev_b32 v{vt}, 4, v{vt+1}")
        a(f"v_lshl_add_u32 v{vt+3}, v{vt}, 2, v{vt+3}")
        a(f"v_and_b32 v{vt}, 3, v{vt+1}")
        a(f"v_add_u32 v{vt+3}, v{vt+3}, v{vt}")
        a(f"v_mul_u32_u24 v{vt+3}, {ldw_bytes}, v{vt+3}")
        a(f"v_lshl_add_u32 v{vbase+i}, v{vt+2}, 4, v{vt+3}")

def bf16r(a, v):
    a(f"v_cvt_pk_bf16_f32 v{v}, v{v}, v{v}")
    a(f"v_lshlrev_b32 v{v}, 16, v{v}")

def layernorm_regs(a, xbase, nrb, nreg, vt, sones, ncols):
    a(f"v_xor_b32 v{vt+12}, 16, v1")
    a(f"v_lshlrev_b32 v{vt+12}, 2, v{vt+12}")
    a(f"v_xor_b32 v{vt+13}, 32, v1")
    a(f"v_lshlrev_b32 v{vt+13}, 2, v{vt+13}")
    for rb in range(nrb):
        xb = xbase + rb * nreg
        for i in range(4):
            a(f"v_mov_b32 v{vt+i}, 0")
        for i in range(nreg):
            a(f"v_dot2_f32_bf16 v{vt+(i&1)}, v{xb+i}, s{sones}, v{vt+(i&1)}")
            a(f"v_dot2_f32_bf16 v{vt+2+(i&1)}, v{xb+i}, v{xb+i}, v{vt+2+(i&1)}")
        a("s_nop 3")
        a(f"v_add_f32 v{vt}, v{vt}, v{vt+1}")
        a(f"v_add_f32 v{vt+2}, v{vt+2}, v{vt+3}")
        for x in (12, 13):
            a(f"ds_bpermute_b32 v{vt+1}, v{vt+x}, v{vt}")
            a(f"ds_bpermute_b32 v{vt+3}, v{vt+x}, v{vt+2}")
            a("s_waitcnt lgkmcnt(0)")
            a(f"v_add_f32 v{vt}, v{vt}, v{vt+1}")
            a(f"v_add_f32 v{vt+2}, v{vt+2}, v{vt+3}")
        inv = f32bits(1.0 / ncols)
        a(f"v_mul_f32 v{vt}, {inv:#x}, v{vt}")
        a(f"v_mul_f32 v{vt+2}, {inv:#x}, v{vt+2}")
        a(f"v_fma_f32 v{vt+2}, -v{vt}, v{vt}, v{vt+2}")
        a(f"v_max_f32 v{vt+2}, 0, v{vt+2}")
        bf16r(a, vt)
        bf16r(a, vt + 2)
        a(f"v_add_f32 v{vt+2}, {f32bits(1e-5):#x}, v{vt+2}")
        bf16r(a, vt + 2)
        a(f"v_sqrt_f32 v{vt+2}, v{vt+2}")
        a("s_nop 0")
        bf16r(a, vt + 2)
        a(f"v_rcp_f32 v{vt+4}, v{vt+2}")
        a("s_nop 0")
        a(f"v_mov_b32 v{vt+5}, v{vt+4}")
        a(f"v_mul_f32 v{vt+6}, v{vt}, v{vt+4}")
        a(f"v_sub_f32 v{vt+6}, 0, v{vt+6}")
        a(f"v_mov_b32 v{vt+7}, v{vt+6}")
        for i in range(nreg):
            t = vt + 8 + 2 * (i & 1)
            a(f"v_lshlrev_b32 v{t}, 16, v{xb+i}")
            a(f"v_and_b32 v{t+1}, 0xffff0000, v{xb+i}")
            a(f"v_pk_fma_f32 v[{t}:{t+1}], v[{t}:{t+1}], v[{vt+4}:{vt+5}], v[{vt+6}:{vt+7}]")
            a(f"v_cvt_pk_bf16_f32 v{xb+i}, v{t}, v{t+1}")


import os
PROF = bool(os.environ.get("PROF"))
PROF_OFF = 60 << 20
PROF_K = [0]
def prof_init(a, wsreg=8):
    if not PROF: return
    srd(a, 88, wsreg, wsreg + 1, 1 << 19, off_imm=PROF_OFF + PROF_K[0] * (1 << 19))
    a("s_lshl_b32 s92, s2, 4")
    a("s_add_u32 s92, s92, s12")
    a("s_lshl_b32 s92, s92, 6")
def prof_stamp(a, idx, vtmp):
    if not PROF: return
    a("s_memtime s[94:95]")
    a("s_waitcnt lgkmcnt(0)")
    a(f"v_mov_b32 v{vtmp}, s94")
    a(f"buffer_store_dword v{vtmp}, off, s[88:91], s92 offset:{idx*4}")

def prof_real(a, idx, vtmp):
    if not PROF: return
    a("s_memrealtime s[94:95]")
    a("s_waitcnt lgkmcnt(0)")
    a(f"v_mov_b32 v{vtmp}, s94")
    a(f"buffer_store_dword v{vtmp}, off, s[88:91], s92 offset:{idx*4}")

def xlane_sum_g(a, v, t):
    a(f"v_mov_b32 v{t}, v{v}")
    a("s_nop 1")
    a(f"v_permlane32_swap_b32 v{v}, v{t}")
    a("s_nop 1")
    a(f"v_add_f32 v{v}, v{v}, v{t}")
    a(f"v_mov_b32 v{t}, v{v}")
    a("s_nop 1")
    a(f"v_permlane16_swap_b32 v{v}, v{t}")
    a("s_nop 1")
    a(f"v_add_f32 v{v}, v{v}, v{t}")

def ln_scalars(a, pairs, n):
    inv = f32bits(1.0 / n)
    for s, q in pairs:
        a(f"v_mul_f32 v{s}, {inv:#x}, v{s}")
        a(f"v_mul_f32 v{q}, {inv:#x}, v{q}")
    for s, q in pairs:
        a(f"v_fma_f32 v{q}, -v{s}, v{s}, v{q}")
    for s, q in pairs:
        a(f"v_max_f32 v{q}, 0, v{q}")
    for s, q in pairs:
        bf16r(a, s); bf16r(a, q)
    for s, q in pairs:
        a(f"v_add_f32 v{q}, {f32bits(1e-5):#x}, v{q}")
    for s, q in pairs:
        bf16r(a, q)
    for s, q in pairs:
        a(f"v_sqrt_f32 v{q}, v{q}")
    a("s_nop 0")
    for s, q in pairs:
        bf16r(a, q)
    for s, q in pairs:
        a(f"v_rcp_f32 v{q}, v{q}")
    a("s_nop 0")
    for s, q in pairs:
        a(f"v_mul_f32 v{s}, v{s}, v{q}")
    for s, q in pairs:
        a(f"v_sub_f32 v{s}, 0, v{s}")

GK0 = -2.0 * 0.7978845608028654 * math.log2(math.e)
GK1 = GK0 * 0.044715
def gelu_quad(a, x, t, sK1, vK0, sONE):
    for h in (0, 2):
        a(f"v_pk_mul_f32 v[{t+h}:{t+h+1}], v[{x+h}:{x+h+1}], v[{x+h}:{x+h+1}]")
    for h in (0, 2):
        a(f"v_pk_fma_f32 v[{t+h}:{t+h+1}], v[{t+h}:{t+h+1}], s[{sK1}:{sK1+1}], v[{vK0}:{vK0+1}]")
    for h in (0, 2):
        a(f"v_pk_mul_f32 v[{t+h}:{t+h+1}], v[{t+h}:{t+h+1}], v[{x+h}:{x+h+1}]")
    for j in range(4):
        a(f"v_exp_f32 v{t+j}, v{t+j}")
    for h in (0, 2):
        a(f"v_pk_add_f32 v[{t+h}:{t+h+1}], v[{t+h}:{t+h+1}], s[{sONE}:{sONE+1}]")
    for j in range(4):
        a(f"v_rcp_f32 v{t+j}, v{t+j}")
    for h in (0, 2):
        a(f"v_pk_mul_f32 v[{x+h}:{x+h+1}], v[{x+h}:{x+h+1}], v[{t+h}:{t+h+1}]")

def bcast_sel(reg, pos, n):
    base = reg & ~1
    lo = [0] * n; hi = [1] * n
    lo[pos] = reg & 1; hi[pos] = reg & 1
    return f"v[{base}:{base+1}]", f"op_sel:[{','.join(map(str,lo))}] op_sel_hi:[{','.join(map(str,hi))}]"

def row16_sum(a, regs):
    for sh in (8, 4, 2, 1):
        for v in regs:
            a(f"v_add_f32_dpp v{v}, v{v}, v{v} row_ror:{sh} row_mask:0xf bank_mask:0xf")

def pk(op, dst, *srcs):
    txt = []; lo = []; hi = []
    for x in srcs:
        if isinstance(x, int):
            txt.append(f"v[{x}:{x+1}]"); lo.append(0); hi.append(1)
        elif x[0] == 'b':
            b = x[1] & ~1
            txt.append(f"v[{b}:{b+1}]"); lo.append(x[1] & 1); hi.append(x[1] & 1)
        else:
            txt.append(f"s[{x[1]}:{x[1]+1}]"); lo.append(0); hi.append(1)
    sel = ""
    if any(lo) or not all(hi):
        sel = f" op_sel:[{','.join(map(str,lo))}] op_sel_hi:[{','.join(map(str,hi))}]"
    return f"v_pk_{op}_f32 v[{dst}:{dst+1}], " + ", ".join(txt) + sel

class Buf:
    def __init__(self): self.l = []
    def __call__(self, s):
        for ln in s.split("\n"):
            if ln.strip(): self.l.append(ln.strip())

def icost(s):
    if callable(s): return 6
    op = s.split()[0]
    if op in ("v_exp_f32", "v_rcp_f32", "v_sqrt_f32", "v_rsq_f32"): return 8
    if op.startswith("v_"): return 4
    if op.startswith("ds_"): return 5
    if op.startswith("buffer_"): return 5
    if op == "s_nop": return 2 + int(s.split()[1])
    return 2

def ln_ms(a, pairs, n):
    inv = f32bits(1.0 / n)
    for s, q in pairs:
        a(f"v_mul_f32 v{s}, {inv:#x}, v{s}")
        a(f"v_mul_f32 v{q}, {inv:#x}, v{q}")
    for s, q in pairs:
        a(f"v_fma_f32 v{q}, -v{s}, v{s}, v{q}")
    for s, q in pairs:
        a(f"v_max_f32 v{q}, 0, v{q}")
    for s, q in pairs:
        bf16r(a, s); bf16r(a, q)
    for s, q in pairs:
        a(f"v_add_f32 v{q}, {f32bits(1e-5):#x}, v{q}")
        a(f"v_sub_f32 v{s}, 0, v{s}")
    for s, q in pairs:
        bf16r(a, q)
    for s, q in pairs:
        a(f"v_sqrt_f32 v{q}, v{q}")
    a("s_nop 0")
    for s, q in pairs:
        bf16r(a, q)
```

```python
from asmlib import *
from gen_common import *
PFG = int(os.environ.get('PFG', '0'))
NT = os.environ.get('K1NT', '')
def gen_k1():
    a = Asm()
    vm = VmTrack(a)
    SL = 32768; RS = 131072
    XF = 32; WF = 64; ACC = 96; ST = 212; RR = 176; NN = 192; CSR = 208; ONE = 160
    common_prologue(a, 256, "L_k1_end")
    a("s_load_dwordx4 s[4:7], s[0:1], 0")
    a("s_load_dwordx2 s[8:9], s[0:1], 80")
    a("s_cmp_ge_u32 s2, 224")
    a("s_cbranch_scc1 L_k1_colsum")
    a("s_and_b32 s13, s2, 7")
    a("s_lshr_b32 s14, s2, 3")
    a("s_lshr_b32 s10, s13, 1")
    a("s_lshl_b32 s10, s10, 2")
    a("s_and_b32 s15, s14, 3")
    a("s_add_u32 s10, s10, s15")
    a("s_and_b32 s11, s13, 1")
    a("s_mul_i32 s11, s11, 7")
    a("s_lshr_b32 s15, s14, 2")
    a("s_add_u32 s11, s11, s15")
    a("s_lshr_b32 s28, s12, 1")
    a("s_and_b32 s29, s12, 1")
    a("s_mov_b32 s30, 0x3f803f80")
    a("v_lshrrev_b32 v16, 3, v1")
    a("v_and_b32 v17, 7, v1")
    a("v_xor_b32 v17, v17, v16")
    a("v_mul_u32_u24 v4, 1152, v16")
    a("v_lshl_add_u32 v4, v17, 4, v4")
    a("v_bfe_u32 v16, v1, 1, 3")
    a("v_xor_b32 v16, v16, v3")
    a("v_and_b32 v17, 1, v1")
    a("v_lshl_or_b32 v16, v16, 1, v17")
    a("v_mul_u32_u24 v5, 3456, v3")
    a("v_lshlrev_b32 v16, 4, v16")
    a("v_xor_b32 v17, 128, v16")
    a("v_add_u32 v6, v5, v17")
    a("v_add_u32 v5, v5, v16")
    a("s_lshl_b32 s31, s10, 7")
    a("s_lshl_b32 s15, s12, 5")
    a("s_add_u32 s31, s31, s15")
    a("s_mul_i32 s31, s31, 1152")
    a("s_lshl_b32 s32, s28, 5")
    a("s_lshl_b32 s15, s29, 2")
    a("s_add_u32 s32, s32, s15")
    a("s_mul_i32 s32, s32, 3456")
    a("s_lshl_b32 s15, s11, 8")
    a("s_add_u32 s32, s32, s15")
    a("s_lshl_b32 s33, s12, 12")
    a("s_add_u32 s34, s33, 16384")
    a("s_waitcnt lgkmcnt(0)")
    srd(a, 16, 4, 5, 2048 * 1152)
    srd(a, 20, 6, 7, 576 * 3456)
    prof_init(a); prof_real(a, 14, 31); prof_stamp(a, 8, 31)
    def dma(c):
        def x(i):
            a(f"s_add_u32 m0, s33, {(c%5)*SL + i*1024}")
            a(f"s_add_u32 s35, s31, {i*8*1152 + c*128}")
            a("buffer_load_dwordx4 v4, s[16:19], s35 offen" + NT + " lds")
            vm.op(f"C{c}")
        def w(i):
            a(f"s_add_u32 m0, s34, {(c%5)*SL + i*1024}")
            a(f"s_add_u32 s35, s32, {(64*c + 8*i)*3456}")
            a(f"buffer_load_dwordx4 v{5+(i&1)}, s[20:23], s35 offen" + NT + " lds")
            vm.op(f"C{c}")
        u = []
        for i in range(4):
            u.append(lambda i=i: x(i)); u.append(lambda i=i: w(i))
        return u
    for c in range(4):
        for f in dma(c): f()
    srd(a, 24, 8, 9, 1728 * 4096, off_imm=QKVT_OFF)
    if os.environ.get("TLBPF"):
        G = int(os.environ["TLBPF"])
        a(f"v_mul_u32_u24 v17, {G}, v0")
        for j in range((2359296 // G + 255) // 256):
            a(f"s_mov_b32 s15, {j*256*G}")
            a("buffer_load_dword v30, v17, s[16:19], s15 offen"); vm.op("PF")
            a("buffer_load_dword v30, v17, s[20:23], s15 offen"); vm.op("PF")
    if PFG:
        G = PFG; per = 1792 // G
        a("s_lshl_b32 s15, s14, 8")
        a("v_add_u32 v16, s15, v0")
        a("s_lshr_b32 s15, s13, 1")
        a("s_mul_i32 s15, s15, 589824")
        nx = 589824 // G
        for j in range((nx + 7167) // 7168):
            a(f"v_add_u32 v17, {7168*j}, v16")
            a(f"v_cmp_gt_u32 vcc, {nx}, v17")
            a(f"v_mul_u32_u24 v17, {G}, v17")
            a("v_cndmask_b32 v17, -1, v17, vcc")
            a("buffer_load_dword v30, v17, s[16:19], s15 offen"); vm.op("PF")
        a("s_and_b32 s15, s13, 1")
        a("s_mul_i32 s15, s15, 1792")
        nw = 576 * per
        m, sh = magic_div(per, (nw + 7167) // 7168 * 7168)
        for j in range((nw + 7167) // 7168):
            a(f"v_add_u32 v17, {7168*j}, v16")
            a(f"v_mul_u32_u24 v18, {m}, v17")
            a(f"v_lshrrev_b32 v18, {sh}, v18")
            a(f"v_mul_u32_u24 v17, {G}, v17")
            a(f"v_mul_u32_u24 v18, {3456-1792}, v18")
            a("v_add_u32 v17, v17, v18")
            a("buffer_load_dword v30, v17, s[20:23], s15 offen"); vm.op("PF")
    a("v_and_b32 v16, 7, v2")
    a("v_xor_b32 v16, v16, v3")
    a("v_lshlrev_b32 v16, 4, v16")
    a("v_lshl_add_u32 v16, v2, 7, v16")
    a("s_lshl_b32 s15, s28, 13")
    a("s_lshl_b32 s35, s29, 12")
    a("s_add_u32 s36, s15, s35")
    a("s_xor_b32 s37, s36, 4096")
    for pair in range(2):
        for kk in range(2):
            a(f"v_xor_b32 v17, {kk*64}, v16")
            a(f"v_add_u32 v{8+pair*2+kk}, s{36+pair}, v17")
            a(f"v_add_u32 v{12+pair*2+kk}, 0x10000, v{8+pair*2+kk}")
            a(f"v_add_u32 v{164+pair*2+kk}, 0x20000, v{8+pair*2+kk}")
    a("v_lshrrev_b32 v16, 2, v1")
    a("v_and_b32 v17, 7, v16")
    a("v_lshlrev_b32 v16, 8, v16")
    a("v_and_b32 v18, 3, v1")
    a("v_lshl_add_u32 v16, v18, 3, v16")
    a("v_add_u32 v16, 16384, v16")
    a("s_lshl_b32 s15, s29, 2")
    a("s_lshl_b32 s35, s28, 1")
    a("s_add_u32 s38, s15, s35")
    for nb in range(4):
        a(f"s_xor_b32 s15, s38, {nb}")
        a("v_xor_b32 v18, s15, v17")
        a(f"v_lshl_add_u32 v{20+nb}, v18, 5, v16")
        a(f"v_add_u32 v{24+nb}, 0x10000, v{20+nb}")
        a(f"v_add_u32 v{168+nb}, 0x20000, v{20+nb}")
    for i in range(4):
        a(f"v_mov_b32 v{ONE+i}, 0x3f803f80")
    def reads(q):
        slot = (q >> 1) % 5; kk = q & 1; sp = slot >> 1; so = (slot & 1) * SL
        xf = XF + (q & 1) * 16; wf = WF + (q & 1) * 16
        r = []
        for i in range(4):
            r.append(f"ds_read_b128 {vr(xf+i*4)}, v{[8,12,164][sp]+(i>>1)*2+kk} offset:{so + (i&1)*2048}")
            for rd in range(2):
                r.append(f"ds_read_b64_tr_b16 v[{wf+i*4+rd*2}:{wf+i*4+rd*2+1}], v{[20,24,168][sp]+i} offset:{so + kk*8192 + rd*4096}")
        return r
    pend = []
    def kstep(q, pace):
        xf = XF + (q & 1) * 16; wf = WF + (q & 1) * 16
        rd = reads(q + 1) if q < 17 else []
        mf = []
        for nb in range(4):
            for rb in range(4):
                acc = ACC + (rb * 4 + nb) * 4
                mf.append(f"v_mfma_f32_16x16x32_bf16 {vr(acc)}, {vr(xf+rb*4)}, {vr(wf+nb*4)}, {vr(acc) if q else 0}")
        for b in range(2):
            mf.append(f"v_mfma_f32_16x16x32_bf16 {vr(ST+b*4)}, {vr(xf+b*4)}, {vr(ONE)}, {vr(ST+b*4) if q else 0}")
            mf.append(f"v_mfma_f32_16x16x32_bf16 {vr(ST+8+b*4)}, {vr(xf+b*4)}, {vr(xf+b*4)}, {vr(ST+8+b*4) if q else 0}")
            mf.append(f"v_mfma_f32_16x16x32_bf16 {vr(ST+16+b*4)}, {vr(ONE)}, {vr(wf+b*4)}, {vr(ST+16+b*4) if q else 0}")
        if q == 17: mf = mf[16:] + mf[:16]
        for slot, m_ in enumerate(mf):
            a(m_)
            if rd: a(rd.pop(0))
            if slot % pace == 1 and pend: pend.pop(0)()
    vm.wait("C0")
    a("s_barrier")
    prof_stamp(a, 9, 31)
    for r in reads(0): a(r)
    pend.extend(dma(4))
    for q in range(18):
        if q & 1 and q < 17:
            c = (q + 1) // 2
            vm.wait(f"C{c}")
            a("s_waitcnt lgkmcnt(0)")
            a("s_barrier")
            if c + 4 < 9: pend.extend(dma(c + 4))
        else:
            a("s_waitcnt lgkmcnt(0)")
        kstep(q, 2 if q == 0 else 5)
        assert q & 1 or not pend
    prof_stamp(a, 10, 31)
    a("v_and_b32 v16, 3, v2")
    for b in range(2):
        for j in range(1, 4):
            a(f"v_cmp_eq_u32 vcc, {j}, v16")
            a(f"v_cndmask_b32 v{ST+b*4}, v{ST+b*4}, v{ST+b*4+j}, vcc")
            a(f"v_cndmask_b32 v{ST+8+b*4}, v{ST+8+b*4}, v{ST+8+b*4+j}, vcc")
    ln_scalars(a, [(ST, ST + 8), (ST + 4, ST + 12)], 576)
    a("s_lshl_b32 s15, s28, 8")
    a("s_lshl_b32 s35, s29, 7")
    a("s_add_u32 s15, s15, s35")
    a("v_lshlrev_b32 v16, 2, v2")
    a(f"v_add_u32 v16, {RS}, v16")
    a("v_add_u32 v17, s15, v16")
    a("v_lshrrev_b32 v18, 2, v2")
    a("v_cmp_eq_u32 vcc, v18, v3")
    a(f"v_mov_b32 v18, {RS + 1536}")
    a("v_cndmask_b32 v17, v18, v17, vcc")
    a("s_lshl_b32 s15, s29, 8")
    a("s_lshl_b32 s35, s28, 7")
    a("s_add_u32 s15, s15, s35")
    a("v_add_u32 v18, s15, v16")
    for b in range(2):
        a(f"ds_write_b32 v17, v{ST+8+4*b} offset:{b*64}")
        a(f"ds_write_b32 v17, v{ST+4*b} offset:{512+b*64}")
        a(f"ds_write_b32 v18, v{ST+16+4*b} offset:{1024+b*64}")
    a("s_lshl_b32 s15, s28, 8")
    a("s_lshl_b32 s35, s29, 7")
    a("s_add_u32 s15, s15, s35")
    a("s_xor_b32 s35, s15, 128")
    a("v_lshlrev_b32 v17, 4, v3")
    a(f"v_add_u32 v17, {RS}, v17")
    a("v_add_u32 v19, s35, v17")
    a("v_add_u32 v17, s15, v17")
    a("v_xor_b32 v7, 128, v18")
    a("s_lshl_b32 s39, s11, 7")
    a("s_lshl_b32 s15, s29, 6")
    a("s_add_u32 s39, s39, s15")
    a("s_cmp_lt_u32 s39, 576")
    a(f"s_mov_b32 s40, {f32bits(QSCALE):#x}")
    a("s_cselect_b32 s40, s40, 1.0")
    a("s_waitcnt lgkmcnt(0)")
    a("s_barrier")
    for rb in range(4):
        a(f"ds_read_b128 {vr(RR+rb*4)}, v{17 if rb < 2 else 19} offset:{(rb&1)*64}")
        a(f"ds_read_b128 {vr(NN+rb*4)}, v{17 if rb < 2 else 19} offset:{512+(rb&1)*64}")
        a(f"ds_read_b32 v{CSR+rb}, v{18 if rb < 2 else 7} offset:{1024+(rb&1)*64}")
    a("s_mul_i32 s41, s12, 9216")
    a("v_mul_u32_u24 v16, 144, v2")
    a("v_lshl_add_u32 v16, v3, 3, v16")
    a("v_add_u32 v16, s41, v16")
    a(f"s_mul_i32 s15, s28, {32*144}")
    a(f"s_sub_u32 s35, {32*144}, s15")
    a("s_lshl_b32 s36, s29, 6")
    a("s_xor_b32 s37, s36, 64")
    for pn in range(2):
        for pr in range(2):
            a(f"s_add_u32 s42, s{15 if pn == 0 else 35}, s{36+pr}")
            a(f"v_add_u32 v{8+pn*2+pr}, s42, v16")
    a("s_waitcnt lgkmcnt(0)")
    for i in range(32):
        a(f"v_mul_f32 v{RR+i}, s40, v{RR+i}")
    for nb in range(4):
        cs, sel = bcast_sel(CSR + nb, 1, 2)
        for rb in range(4):
            x = ACC + (rb * 4 + nb) * 4
            t = XF + (rb & 1) * 8
            for h in (0, 2):
                a(f"v_pk_mul_f32 v[{t+h}:{t+h+1}], v[{NN+rb*4+h}:{NN+rb*4+h+1}], {cs} {sel}")
            for h in (0, 2):
                a(f"v_pk_fma_f32 v[{x+h}:{x+h+1}], v[{x+h}:{x+h+1}], v[{RR+rb*4+h}:{RR+rb*4+h+1}], v[{t+h}:{t+h+1}]")
            for h in (0, 2):
                a(f"v_cvt_pk_bf16_f32 v{t+4+h//2}, v{x+h}, v{x+h+1}")
            a(f"ds_write_b64 v{8+(nb>>1)*2+(rb>>1)}, v[{t+4}:{t+5}] offset:{(nb&1)*16*144 + (rb&1)*32}")
    prof_stamp(a, 11, 31)
    a("v_lshrrev_b32 v16, 3, v1")
    a("v_and_b32 v17, 7, v1")
    a("v_mul_u32_u24 v18, 144, v16")
    a("v_lshl_add_u32 v18, v17, 4, v18")
    a("v_add_u32 v18, s41, v18")
    a("v_add_u32 v16, s39, v16")
    a("v_lshlrev_b32 v16, 12, v16")
    a("v_lshl_add_u32 v16, v17, 4, v16")
    a("s_lshl_b32 s15, s10, 8")
    a("s_lshl_b32 s35, s28, 7")
    a("s_add_u32 s15, s15, s35")
    a("v_add_u32 v16, s15, v16")
    a("s_waitcnt lgkmcnt(0)")
    for i in range(8):
        a(f"ds_read_b128 {vr(ACC+i*4)}, v18 offset:{i*8*144}")
    for i in range(8):
        a(f"s_waitcnt lgkmcnt({7-i})")
        a(f"buffer_store_dwordx4 {vr(ACC+i*4)}, v16, s[24:27], 0 offen")
        if i < 7: a("v_add_u32 v16, 0x8000, v16")
    if PROF:
        a("s_waitcnt vmcnt(0)")
    prof_stamp(a, 12, 31); prof_stamp(a, 13, 31); prof_real(a, 15, 31)
    a("s_endpgm")
    a.label("L_k1_colsum")
    a("s_load_dwordx2 s[10:11], s[0:1], 32")
    a("s_sub_u32 s13, s2, 224")
    a("s_and_b32 s14, s13, 15")
    a("s_mul_i32 s28, s14, 288")
    a("s_add_u32 s29, s28, 4608")
    a("s_cmp_lt_u32 s13, 16")
    a("s_cselect_b32 s28, s29, s28")
    a(f"s_cselect_b32 s31, 0, {162*1024}")
    for nb in range(9):
        a(f"s_add_u32 s{40+nb}, s31, {wp_unit(2, 0, nb)*1024}")
    a("s_mov_b32 s29, 3072")
    a("s_mul_i32 s30, s14, 331776")
    a("s_mul_i32 s31, s12, s29")
    a("s_add_u32 s30, s30, s31")
    a("s_lshl_b32 s29, s29, 2")
    m, sh = magic_div(18, 576)
    for i in range(9):
        a(f"v_add_u32 v16, {64*i}, v1")
        a(f"v_mul_u32_u24 v17, {m}, v16")
        a(f"v_lshrrev_b32 v17, {sh}, v17")
        a(f"v_lshlrev_b32 v16, 4, v16")
        a(f"v_mul_u32_u24 v17, 8928, v17")
        a(f"v_add_u32 v{5+i}, v17, v16")
    a("s_mul_i32 s32, s12, 36864")
    a("s_mul_i32 s33, s12, 294912")
    a("s_add_u32 s33, s33, s28")
    a("v_lshrrev_b32 v14, 2, v1")
    a("v_mul_u32_u24 v14, 288, v14")
    a("v_and_b32 v16, 3, v1")
    a("v_lshl_add_u32 v14, v16, 3, v14")
    a("v_add_u32 v14, s32, v14")
    a("v_lshlrev_b32 v4, 4, v1")
    for i in range(4): a(f"v_mov_b32 v{20+i}, 0x3f803f80")
    for i in range(36): a(f"v_mov_b32 v{32+i}, 0")
    a("s_waitcnt lgkmcnt(0)")
    srd(a, 16, 10, 11, 576 * 9216)
    srd(a, 20, 8, 9, 4608 * 4, off_imm=CS_OFF)
    srd(a, 24, 8, 9, 16 * 324 * 1024, off_imm=WP_OFF)
    def hdma(n):
        a(f"s_add_u32 s15, s33, {n*4*294912}")
        for i in range(9):
            a(f"s_add_u32 m0, s32, {(n%4)*9216 + i*1024}")
            a("s_nop 0")
            a(f"buffer_load_dwordx4 v{5+i}, s[16:19], s15 offen lds")
    for n in range(4): hdma(n)
    for n in range(5):
        if n == 4:
            a("s_cmp_ge_u32 s12, 2")
            a("s_cbranch_scc1 L_k1_h5")
        a(f"s_waitcnt vmcnt({[27, 36, 36, 36, 36][n]})")
        fb = 72 + (n & 1) * 36
        for nb in range(9):
            for rd in range(2):
                a(f"ds_read_b64_tr_b16 v[{fb+nb*4+rd*2}:{fb+nb*4+rd*2+1}], v14 offset:{(n%4)*9216 + rd*16*288 + nb*32}")
        a("s_waitcnt lgkmcnt(0)")
        if n == 0: hdma(4)
        for nb in range(9):
            a(f"v_mfma_f32_16x16x32_bf16 {vr(32+nb*4)}, v[20:23], {vr(fb+nb*4)}, {vr(32+nb*4)}")
            a(f"s_add_u32 s15, s30, s{40+nb}")
            a(f"buffer_store_dwordx4 {vr(fb+nb*4)}, v4, s[24:27], s15 offen")
        a("s_add_u32 s30, s30, s29")
    a.label("L_k1_h5")
    a("s_mul_i32 s15, s12, 576")
    a("v_lshlrev_b32 v7, 2, v2")
    a("v_add_u32 v7, s15, v7")
    a("v_add_u32 v7, 147456, v7")
    a("s_nop 7")
    for nb in range(9):
        a(f"ds_write_b32 v7, v{32+nb*4} offset:{nb*64}")
    a("s_waitcnt lgkmcnt(0)")
    a("s_barrier")
    a("v_lshlrev_b32 v7, 2, v0")
    a("v_add_u32 v8, 147456, v7")
    for r in range(4):
        a(f"ds_read_b32 v{32+r}, v8 offset:{r*576}")
    a("s_waitcnt lgkmcnt(0)")
    a("v_add_f32 v32, v32, v33")
    a("v_add_f32 v34, v34, v35")
    a("v_add_f32 v32, v32, v34")
    a("v_mov_b32 v30, 0x7f000000")
    a("v_cmp_gt_u32 vcc, 144, v0")
    a("v_cndmask_b32 v7, v30, v7, vcc")
    a("s_lshl_b32 s14, s28, 1")
    a("buffer_store_dword v32, v7, s[20:23], s14 offen")
    a.label("L_k1_end")
    a("s_endpgm")
    return a.text(), dict(vgpr=236, agpr=0, grid=256, block=256, lds=163840)
```

```python
from asmlib import *
from gen_common import *

import os
DEBUG = bool(os.environ.get('K2DEBUG'))
PREF = not os.environ.get('NOPREF')
def gen_k2():
    a = Asm()
    KP = 4160; ONES = 18 * KP; VB = 83296; VP = 4112
    LDS = 157440
    Q1 = 16; Q2 = 20
    KA = [24, 32]; KB = [28, 36]
    VF = [40, 48]
    SB_ = [64, 80]
    P = 56
    O = 96
    RP = 120
    a(f"s_cmp_ge_u32 s2, 256")
    a(f"s_cbranch_scc1 L_k2_end")
    a("s_load_dwordx2 s[8:9], s[0:1], 80")
    a("s_load_dwordx2 s[60:61], s[0:1], 16")
    a("s_load_dwordx4 s[64:67], s[0:1], 32")
    a("s_load_dwordx2 s[62:63], s[0:1], 56")
    a("v_lshrrev_b32 v1, 6, v0")
    a("s_nop 0")
    a("v_readfirstlane_b32 s12, v1")
    a("v_and_b32 v1, 63, v0")
    a("s_and_b32 s13, s2, 7")
    a("s_lshr_b32 s14, s2, 3")
    a("s_lshl_b32 s10, s13, 2")
    a("s_and_b32 s15, s14, 3")
    a("s_add_u32 s10, s10, s15")
    a("s_lshr_b32 s11, s14, 2")
    a("s_mul_i32 s28, s10, 18")
    a("v_lshlrev_b32 v2, 4, v1")
    a("s_waitcnt lgkmcnt(0)")
    srd(a, 16, 8, 9, 1728 * 4096, off_imm=QKVT_OFF)
    srd(a, 24, 8, 9, 2048 * 1152, off_imm=O_OFF)
    prof_init(a); prof_real(a, 5, 116); prof_stamp(a, 0, 116)
    a("s_mul_i32 s29, s12, 9")
    for ch in range(2):
        for i in range(9):
            a(f"s_add_u32 s30, s29, {i}")
            a("s_lshr_b32 s31, s30, 1")
            a("s_and_b32 s30, s30, 1")
            a("s_lshl_b32 s30, s30, 10")
            a(f"s_add_u32 s30, s30, {ch*2048}")
            a(f"s_mul_i32 s32, s31, {KP}")
            a(f"s_mul_i32 s33, s31, {VP}")
            a(f"s_add_u32 s33, s33, {VB - 18*VP}")
            a("s_add_u32 s34, s31, 558")
            a("s_cmp_lt_u32 s31, 18")
            a("s_cselect_b32 s32, s32, s33")
            a("s_cselect_b32 s31, s31, s34")
            a("s_add_u32 m0, s32, s30")
            a("s_add_u32 s31, s31, s28")
            a("s_add_u32 s31, s31, 576")
            a("s_lshl_b32 s31, s31, 12")
            a("s_add_u32 s31, s31, s30")
            a("buffer_load_dwordx4 v2, s[16:19], s31 offen lds")
    a("v_and_b32 v3, 31, v1")
    a("v_lshrrev_b32 v4, 5, v1")
    a("s_lshl_b32 s30, s11, 8")
    a("s_lshl_b32 s31, s12, 5")
    a("s_add_u32 s30, s30, s31")
    a("v_add_u32 v5, s30, v3")
    a("v_lshlrev_b32 v6, 1, v5")
    a("v_lshl_add_u32 v7, v4, 15, v6")
    a("s_lshl_b32 s31, s28, 12")
    for j in range(8):
        a(f"s_add_u32 s32, s31, {j*4096}")
        a(f"buffer_load_ushort v{(Q1 if (j&1)==0 else SB_[0])+j//2}, v7, s[16:19], s32 offen")
    for j in range(2):
        a(f"s_add_u32 s32, s31, {(16+j)*4096}")
        a(f"buffer_load_ushort v{Q2 if j==0 else SB_[0]+4}, v6, s[16:19], s32 offen")
    PS = 124; PO = 140
    a("v_and_b32 v120, 15, v1")
    a("v_lshrrev_b32 v121, 4, v1")
    a("v_lshlrev_b32 v122, 12, v120")
    a("v_lshl_add_u32 v122, v121, 3, v122")
    a(f"v_mul_u32_u24 v123, {4*1152}, v121")
    a("v_lshl_add_u32 v123, v120, 1, v123")
    a("s_lshl_b32 s76, s2, 3")
    a("s_add_u32 s76, s76, s12")
    a("s_lshr_b32 s77, s76, 5")
    a("s_lshl_b32 s77, s77, 17")
    a("s_and_b32 s78, s76, 31")
    a("s_lshl_b32 s78, s78, 7")
    a("s_add_u32 s77, s77, s78")
    a("s_add_u32 s78, s77, 65536")
    srd(a, 48, 66, 67, 2048 * 4096)
    side = []
    for rb in range(2):
        for kk in range(2):
            side.append([f"buffer_load_dwordx2 {vr(PS+(kk*2+rb)*4+h*2,2)}, v122, s[48:51], s{77+rb} offen offset:{kk*64+h*32}" for h in range(2)])
    srd(a, 80, 62, 63, 2304 * 1152)
    def wo_loads(sf, dst, so):
        a(f"s_mul_i32 s84, s{sf}, 7282")
        a("s_lshr_b32 s84, s84, 16")
        a("s_mul_i32 s85, s84, 9")
        a(f"s_sub_u32 s85, s{sf}, s85")
        a("s_mul_i32 s86, s84, 3641")
        a("s_lshr_b32 s86, s86, 16")
        a("s_mul_i32 s87, s86, 18")
        a("s_sub_u32 s84, s84, s87")
        a("s_and_b32 s87, s86, 3")
        a("s_mul_i32 s87, s87, 288")
        a("s_lshl_b32 s85, s85, 5")
        a("s_add_u32 s85, s85, s87")
        a("s_lshr_b32 s86, s86, 2")
        a("s_mul_i32 s86, s86, 576")
        a("s_lshr_b32 s87, s84, 2")
        a("s_mul_i32 s87, s87, 144")
        a("s_and_b32 s70, s84, 3")
        a("s_lshl_b32 s71, s70, 5")
        a("s_add_u32 s87, s87, s71")
        a("s_mul_i32 s70, s70, 288")
        a("s_add_u32 s70, s70, 128")
        a("s_cmp_lt_u32 s84, 16")
        a("s_cselect_b32 s87, s87, s70")
        a("s_cselect_b32 s71, 16, 144")
        a("s_mul_i32 s71, s71, 1152")
        a("s_add_u32 s86, s86, s87")
        a("s_mul_i32 s86, s86, 1152")
        a(f"s_add_u32 s{so}, s86, s85")
        a(f"s_add_u32 s{so+1}, s{so}, s71")
        return [[f"buffer_load_ushort v{dst+h*4+jj}, v123, s[80:83], s{so+h} offen offset:{jj*1152}" for jj in range(4)] for h in range(2)]
    assert all((f * 7282) >> 16 == f // 9 for f in range(2816)) and all((f * 3641) >> 16 == f // 18 for f in range(320))
    side += wo_loads(76, PO, 52)
    a("s_mul_i32 s79, s2, 3")
    a("s_add_u32 s79, s79, s12")
    a("s_add_u32 s79, s79, 2048")
    a("s_cmp_lt_u32 s12, 3")
    a("s_cselect_b32 s79, s79, 2700")
    for h, l_ in enumerate(wo_loads(79, PO + 8, 54)):
        side.append(["s_cmp_ge_u32 s79, 2592", f"s_cbranch_scc1 L_k2_nof{h}"] + l_ + [f"L_k2_nof{h}:"])
    a("v_mov_b32 v8, 0x3f803f80")
    for j in range(9, 12):
        a(f"v_mov_b32 v{j}, v8")
    a("v_lshlrev_b32 v12, 4, v0")
    a(f"v_add_u32 v12, {ONES}, v12")
    a(f"ds_write_b128 v12, v[8:11]")
    a("v_and_b32 v12, 7, v0")
    a("v_lshlrev_b32 v12, 4, v12")
    a(f"v_add_u32 v12, {ONES + 8192}, v12")
    a("ds_write_b128 v12, v[8:11]")
    a("v_bfe_u32 v8, v1, 2, 2")
    a("v_and_b32 v9, 1, v1")
    a("v_bfe_u32 v10, v1, 1, 1")
    a("v_lshl_or_b32 v9, v9, 1, v10")
    a("v_bfe_u32 v10, v1, 4, 1")
    a("v_lshl_add_u32 v9, v10, 2, v9")
    a("v_lshlrev_b32 v9, 3, v9")
    a("v_lshl_add_u32 v10, v4, 3, v8")
    a(f"v_mul_u32_u24 v10, {KP}, v10")
    a("v_add_u32 v112, v10, v9")
    a("v_add_u32 v10, 16, v8")
    a(f"v_mul_u32_u24 v10, {KP}, v10")
    a("v_add_u32 v113, v10, v9")
    a("v_mov_b32 v8, 4")
    a("v_subrev_u32 v9, 20, v3")
    a("v_cmp_gt_u32 vcc, 8, v9")
    a("s_nop 1")
    a("v_cndmask_b32 v8, v8, 0, vcc")
    a("v_cmp_gt_u32 vcc, 18, v3")
    a("s_nop 1")
    a("v_cndmask_b32 v8, v8, v3, vcc")
    a(f"v_mul_u32_u24 v8, {VP}, v8")
    a(f"v_add_u32 v8, {VB}, v8")
    a(f"v_mov_b32 v9, {ONES}")
    a("v_cmp_eq_u32 vcc, 18, v3")
    a("s_nop 1")
    a("v_cndmask_b32 v8, v8, v9, vcc")
    a("v_lshl_add_u32 v114, v4, 4, v8")
    a("v_xor_b32 v115, 32, v1")
    a("v_lshlrev_b32 v115, 2, v115")
    for b in range(2):
        a(f"v_mov_b32 v{KB[b]+2}, 0")
        a(f"v_mov_b32 v{KB[b]+3}, 0")
    a(f"v_mov_b32 v{Q2+2}, 0")
    a(f"v_mov_b32 v{Q2+3}, 0")
    a("v_cmp_eq_u32 s[40:41], 0, v4")
    a("s_waitcnt vmcnt(0)")
    for j in range(5):
        a(f"v_lshl_or_b32 v{Q1+j}, v{SB_[0]+j}, 16, v{Q1+j}")
    a(f"v_cndmask_b32 v{Q2}, 0, v{Q2}, s[40:41]")
    a("s_waitcnt lgkmcnt(0)")
    a("s_barrier")
    prof_stamp(a, 1, 116)
    if PREF:
        a("s_lshl_b32 s68, s2, 9")
        a("v_add_u32 v117, s68, v0")
        a("v_lshlrev_b32 v117, 6, v117")
        for (lo, size) in ((60, 576 * 1152),):
            srd(a, 72, lo, lo + 1, size)
            a("buffer_load_dword v118, v117, s[72:75], 0 offen")
    a("s_lshl_b32 s68, s2, 9")
    a("v_add_u32 v117, s68, v0")
    a("v_lshlrev_b32 v117, 2, v117")
    a("v_mov_b32 v119, -1")
    srd(a, 72, 8, 9, 256 * 36864, off_imm=P_OFF)
    a("s_mov_b32 s69, 0")
    a("s_mov_b32 s36, 1")
    a("s_mov_b32 s37, 0")
    a.label("L_k2_maxpass")
    a(f"v_mov_b32 v{Q2+1}, 0")
    a("v_mov_b32 v8, 0xff800000")
    a("v_mov_b32 v13, v112")
    a("v_mov_b32 v14, v113")
    a("s_mov_b32 s38, 0")
    a.label("L_k2_maxloop")
    a(f"ds_read_b64_tr_b16 v[{KA[0]}:{KA[0]+1}], v13")
    a(f"ds_read_b64_tr_b16 v[{KA[0]+2}:{KA[0]+3}], v13 offset:{4*KP}")
    a(f"ds_read_b64_tr_b16 v[{KB[0]}:{KB[0]+1}], v14")
    a("v_add_u32 v13, 64, v13")
    a("v_add_u32 v14, 64, v14")
    a("s_waitcnt lgkmcnt(0)")
    a(f"v_mfma_f32_32x32x16_bf16 {vr(SB_[0],16)}, {vr(KA[0])}, {vr(Q1)}, 0")
    a(f"v_mfma_f32_32x32x16_bf16 {vr(SB_[0],16)}, {vr(KB[0])}, {vr(Q2)}, {vr(SB_[0],16)}")
    a("s_nop 15")
    a("s_nop 3")
    for i in range(8):
        a(f"v_max3_f32 v8, v8, v{SB_[0]+2*i}, v{SB_[0]+2*i+1}")
    a("s_add_u32 s38, s38, 1")
    a("s_cmp_lt_u32 s38, s36")
    a("s_cbranch_scc1 L_k2_maxloop")
    if DEBUG:
        srd(a, 48, 8, 9, 1 << 20, off_imm=48 << 20)
        a("v_lshlrev_b32 v10, 2, v0")
        a("s_mul_i32 s52, s2, 0x10000")
        for i in range(16):
            a(f"buffer_store_dword v{SB_[0]+i}, v10, s[48:51], s52 offen offset:{i*2048 % 4096}") if i < 2 else None
        for i in range(16):
            a(f"s_add_u32 s53, s52, {i*2048}")
            a(f"buffer_store_dword v{SB_[0]+i}, v10, s[48:51], s53 offen")
        for i in range(4):
            a(f"s_add_u32 s53, s52, {(16+i)*2048}")
            a(f"buffer_store_dword v{KA[0]+i}, v10, s[48:51], s53 offen")
            a(f"s_add_u32 s53, s52, {(20+i)*2048}")
            a(f"buffer_store_dword v{Q1+i}, v10, s[48:51], s53 offen")
            a(f"s_add_u32 s53, s52, {(24+i)*2048}")
            a(f"buffer_store_dword v{KB[0]+i}, v10, s[48:51], s53 offen")
            a(f"s_add_u32 s53, s52, {(28+i)*2048}")
            a(f"buffer_store_dword v{Q2+i}, v10, s[48:51], s53 offen")
    a("ds_bpermute_b32 v9, v115, v8")
    a("s_waitcnt lgkmcnt(0)")
    a("v_max_f32 v8, v8, v9")
    a("v_sub_f32 v8, 0, v8")
    a("v_cvt_pk_bf16_f32 v9, v8, v8")
    a("v_lshlrev_b32 v9, 16, v9")
    a("v_sub_f32 v10, v8, v9")
    a("v_cvt_pk_bf16_f32 v9, v9, v10")
    a(f"v_cndmask_b32 v{Q2+1}, 0, v9, s[40:41]")
    a("v_mov_b32 v13, v112")
    a("v_mov_b32 v14, v113")
    a("v_mov_b32 v15, v114")
    def kreads(b, toff):
        a(f"ds_read_b64_tr_b16 v[{KA[b]}:{KA[b]+1}], v13 offset:{toff*64}")
        a(f"ds_read_b64_tr_b16 v[{KA[b]+2}:{KA[b]+3}], v13 offset:{4*KP + toff*64}")
        a(f"ds_read_b64_tr_b16 v[{KB[b]}:{KB[b]+1}], v14 offset:{toff*64}")
    def vreads(b, toff):
        a(f"ds_read_b128 {vr(VF[b])}, v15 offset:{toff*64}")
        a(f"ds_read_b128 {vr(VF[b]+4)}, v15 offset:{toff*64+32}")
    kreads(0, 0)
    for i in range(16):
        a(f"v_mov_b32 v{O+i}, 0")
    for i in range(8):
        a(f"v_mov_b32 v{P+i}, 0")
        a(f"v_mov_b32 v{VF[1]+i}, 0")
    a("s_waitcnt lgkmcnt(0)")
    a(f"v_mfma_f32_32x32x16_bf16 {vr(SB_[0],16)}, {vr(KA[0])}, {vr(Q1)}, 0")
    a(f"v_mfma_f32_32x32x16_bf16 {vr(SB_[0],16)}, {vr(KB[0])}, {vr(Q2)}, {vr(SB_[0],16)}")
    kreads(1, 1)
    vreads(0, 0)
    a("s_nop 15")
    prof_stamp(a, 2, 116)
    a("s_mov_b32 s38, 0")
    NS = len(side); UNR = NS + 5
    for lp in range(UNR + 1):
        lend = 32
        if lp == UNR: a.label("L_k2_loop")
        for par in range(2):
            Sx = SB_[par]; N = SB_[1 - par]
            kb = 1 - par
            a("s_waitcnt lgkmcnt(2)")
            a(f"v_mfma_f32_32x32x16_bf16 {vr(N,16)}, {vr(KA[kb])}, {vr(Q1)}, 0")
            a(f"v_mfma_f32_32x32x16_bf16 {vr(O,16)}, {vr(VF[1-par]+4)}, {vr(P+4)}, {vr(O,16)}")
            for i in range(0, 4):
                a(f"v_exp_f32 v{Sx+i}, v{Sx+i}")
            a(f"v_mfma_f32_32x32x16_bf16 {vr(N,16)}, {vr(KB[kb])}, {vr(Q2)}, {vr(N,16)}")
            kreads(par, par + 2)
            vreads(1 - par, par + 1)
            for i in range(4, 8):
                a(f"v_exp_f32 v{Sx+i}, v{Sx+i}")
            a(f"v_exp_f32 v{Sx+8}, v{Sx+8}")
            for i in range(4):
                a(f"v_cvt_pk_bf16_f32 v{P+i}, v{Sx+2*i}, v{Sx+2*i+1}")
            a(f"v_exp_f32 v{Sx+9}, v{Sx+9}")
            a("s_waitcnt lgkmcnt(5)")
            a(f"v_mfma_f32_32x32x16_bf16 {vr(O,16)}, {vr(VF[par])}, {vr(P)}, {vr(O,16)}")
            for i in range(10, 16):
                a(f"v_exp_f32 v{Sx+i}, v{Sx+i}")
            if par == 1:
                a("v_add_u32 v13, 128, v13")
                a("v_add_u32 v14, 128, v14")
                a("v_add_u32 v15, 128, v15")
                a("s_add_u32 s38, s38, 1")
                a(f"s_cmp_lt_u32 s38, {lend}")
            else:
                a("buffer_store_dword v119, v117, s[72:75], s69 offen sc0 sc1")
                a("s_add_u32 s69, s69, 0x80000")
                if lp < NS:
                    for l_ in side[lp]:
                        if l_.endswith(":"): a.label(l_[:-1])
                        else: a(l_)
            for i in range(4, 8):
                a(f"v_cvt_pk_bf16_f32 v{P+i}, v{Sx+2*i}, v{Sx+2*i+1}")
        if lp == UNR: a("s_cbranch_scc1 L_k2_loop")
        if lp == UNR - 1:
            a("s_waitcnt vmcnt(4)")
            srd(a, 56, 8, 9, 2048 * 4096, off_imm=WSPP_OFF)
            a("s_lshl_b32 s84, s76, 12")
            for i in range(4):
                a(f"buffer_store_dwordx4 {vr(PS+i*4)}, v2, s[56:59], s84 offen offset:{i*1024} sc0 sc1")
            srd(a, 56, 8, 9, 2592 * 1024, off_imm=WOP_OFF)
            for f2, sf in enumerate((76, 79)):
                for j in range(4):
                    a(f"v_lshl_or_b32 v{156+f2*4+j}, v{PO+f2*8+2*j+1}, 16, v{PO+f2*8+2*j}")
                a(f"s_lshl_b32 s84, s{sf}, 10")
                a(f"buffer_store_dwordx4 {vr(156+f2*4)}, v2, s[56:59], s84 offen sc0 sc1")
    a("s_nop 1")
    a(f"v_mfma_f32_32x32x16_bf16 {vr(O,16)}, {vr(VF[1]+4)}, {vr(P+4)}, {vr(O,16)}")
    a("s_waitcnt lgkmcnt(0)")
    a("s_nop 15")
    a("s_nop 3")
    prof_stamp(a, 3, 116)
    a(f"ds_bpermute_b32 v9, v115, v{O+10}")
    a("s_waitcnt lgkmcnt(0)")
    a(f"v_cndmask_b32 v9, v9, v{O+10}, s[40:41]")
    a("s_cmp_lg_u32 s37, 0")
    a("s_cbranch_scc1 L_k2_store")
    a(f"v_max3_f32 v10, abs(v{O}), abs(v{O+1}), abs(v{O+2})")
    for i in range(3, 15, 2):
        a(f"v_max3_f32 v10, v10, abs(v{O+i}), abs(v{O+i+1})")
    a(f"v_max_f32 v10, v10, abs(v{O+15})")
    a(f"v_mov_b32 v11, {f32bits(2.0**60):#x}")
    a(f"v_mov_b32 v12, {f32bits(2.0**120):#x}")
    a("v_cmp_lt_f32 s[42:43], v9, v11")
    a("v_cmp_lt_f32 s[44:45], v10, v12")
    for i in range(16):
        a(f"v_cmp_o_f32 vcc, v{O+i}, v{O+i}")
        a("s_and_b64 s[42:43], s[42:43], vcc")
    a("s_and_b64 s[42:43], s[42:43], s[44:45]")
    a("s_cmp_eq_u64 s[42:43], exec")
    a("s_cbranch_scc1 L_k2_store")
    a("s_mov_b32 s37, 1")
    a("s_mov_b32 s36, 64")
    a("s_branch L_k2_maxpass")
    a.label("L_k2_store")
    a("v_rcp_f32 v9, v9")
    a("s_nop 0")
    for i in range(10):
        a(f"v_mul_f32 v{O+i}, v{O+i}, v9")
    for i in range(5):
        a(f"v_cvt_pk_bf16_f32 v{P+i}, v{O+2*i}, v{O+2*i+1}")
    a("v_lshrrev_b32 v10, 4, v5")
    a("v_mul_u32_u24 v10, 18432, v10")
    a("v_and_b32 v11, 15, v5")
    a("v_lshl_add_u32 v10, v11, 4, v10")
    a("v_lshl_add_u32 v11, v4, 8, v10")
    a("s_lshl_b32 s31, s10, 9")
    a(f"buffer_store_dwordx4 {vr(P)}, v11, s[24:27], s31 offen")
    a("s_lshr_b32 s31, s10, 2")
    a("s_lshl_b32 s31, s31, 8")
    a("s_and_b32 s32, s10, 3")
    a("s_lshl_b32 s32, s32, 2")
    a("s_add_u32 s31, s31, s32")
    a("s_add_u32 s31, s31, 16384")
    a("v_mov_b32 v11, 0x7f000000")
    a("v_cndmask_b32 v10, v11, v10, s[40:41]")
    a(f"buffer_store_dword v{P+4}, v10, s[24:27], s31 offen")
    if PROF: a("s_waitcnt vmcnt(0)")
    prof_stamp(a, 4, 116); prof_real(a, 6, 116)
    a.label("L_k2_end")
    a("s_endpgm")
    return a.text(), dict(vgpr=164, agpr=0, grid=256, block=512, lds=LDS)
```

```python
from asmlib import *
from gen_common import *
def gen_k36(mode):
    a = Asm()
    k3 = mode == 3
    L = f"L_k{mode}"
    KS = 18 if k3 else 72
    NMAIN = 234
    NWG = NMAIN
    D = 5 if k3 else 6
    WREG = 24576
    PP = 272
    RES = 32; WF = 44; XR = 76
    common_prologue(a, NWG, L + "_end")
    if k3:
        a("s_load_dwordx2 s[4:5], s[0:1], 0")
        a("s_load_dwordx2 s[6:7], s[0:1], 16")
        a("s_load_dwordx2 s[10:11], s[0:1], 32")
    else:
        a("s_load_dwordx2 s[4:5], s[0:1], 64")
        a("s_load_dwordx2 s[6:7], s[0:1], 56")
    a("s_load_dwordx2 s[8:9], s[0:1], 80")
    a("s_and_b32 s13, s2, 7")
    a("s_lshr_b32 s14, s2, 3")
    a("s_mul_i32 s15, s13, 29")
    a("s_min_u32 s13, s13, 2")
    a("s_add_u32 s15, s15, s13")
    a("s_add_u32 s15, s15, s14")
    a("s_mul_i32 s13, s15, 57")
    a("s_lshr_b32 s13, s13, 9")
    a("s_mul_i32 s14, s13, 9")
    a("s_sub_u32 s14, s15, s14")
    assert all((t * 57) >> 9 == t // 9 for t in range(240))
    a("v_lshlrev_b32 v4, 4, v1")
    for rb in range(1, 5):
        a(f"v_add_u32 v{4+rb}, {rb*KS*1024}, v4")
    a("v_bfe_u32 v16, v1, 1, 2")
    a("v_xor_b32 v16, v16, v3")
    a("v_and_b32 v17, 1, v1")
    a("v_lshl_or_b32 v16, v16, 1, v17")
    a("v_lshlrev_b32 v16, 4, v16")
    a("v_lshrrev_b32 v17, 3, v1")
    a("v_mul_u32_u24 v9, 1152, v17")
    a("v_add_u32 v9, v9, v16")
    if k3:
        a("v_bfe_u32 v18, v1, 3, 1")
        a("v_bfe_u32 v19, v1, 4, 1")
        a("v_mad_u32_u24 v18, v19, 18, v18")
        a("v_bfe_u32 v19, v1, 5, 1")
        a("v_mul_u32_u24 v19, 72, v19")
        a("v_add_u32 v18, v18, v19")
        a("v_mul_u32_u24 v10, 1152, v18")
        a("v_add_u32 v10, v10, v16")
    a(f"s_mul_i32 s28, s12, {WREG}")
    a("v_lshrrev_b32 v16, 2, v1")
    a("v_lshlrev_b32 v16, 7, v16")
    a("v_and_b32 v17, 3, v1")
    a("v_lshl_add_u32 v16, v17, 3, v16")
    a("v_add_u32 v16, s28, v16")
    a("v_bfe_u32 v17, v1, 3, 2")
    for nb in range(4):
        a(f"v_xor_b32 v18, {nb}, v17")
        a(f"v_lshl_add_u32 v{11+nb}, v18, 5, v16")
    a(f"s_mul_i32 s29, s13, {5*KS*1024}")
    a("s_lshl_b32 s30, s14, 7")
    if k3:
        a("s_lshl_b32 s15, s12, 10")
        a("s_add_u32 s29, s29, s15")
        a(f"s_mul_i32 s15, s12, {36*1152}")
        a("s_add_u32 s31, s30, s15")
        a(f"s_mul_i32 s15, s12, {288*1152}")
        a("s_add_u32 s32, s30, s15")
    else:
        a(f"s_mul_i32 s15, s12, {18*1024}")
        a("s_add_u32 s29, s29, s15")
        a(f"s_mul_i32 s15, s12, {576*1152}")
        a("s_add_u32 s31, s30, s15")
    a("s_mul_i32 s33, s13, 80")
    if k3:
        a("s_lshr_b32 s15, s12, 1")
        a("s_lshl_b32 s15, s15, 4")
        a("s_add_u32 s34, s33, s15")
        a("v_add_u32 v16, s34, v2")
        a("v_mul_u32_u24 v16, 1152, v16")
        a("s_and_b32 s15, s12, 1")
        a("s_lshl_b32 s15, s15, 6")
        a("s_add_u32 s15, s15, s30")
        a("v_lshl_add_u32 v16, v3, 3, v16")
        a("v_add_u32 v16, s15, v16")
        a(f"v_add_u32 v17, {32*1152}, v16")
        a(f"v_add_u32 v18, {64*1152}, v16")
    else:
        a("v_lshrrev_b32 v19, 3, v0")
        a("v_add_u32 v19, s33, v19")
        a("v_and_b32 v20, 7, v0")
        a("v_lshrrev_b32 v16, 4, v19")
        a("v_mul_u32_u24 v16, 18, v16")
        a("v_lshrrev_b32 v17, 2, v20")
        a("v_add_u32 v16, v16, v17")
        a("s_lshl_b32 s15, s14, 1")
        a("v_add_u32 v16, s15, v16")
        a("v_lshlrev_b32 v16, 10, v16")
        a("v_and_b32 v17, 1, v20")
        a("v_lshl_add_u32 v16, v17, 9, v16")
        a("v_bfe_u32 v17, v20, 1, 1")
        a("v_lshl_add_u32 v16, v17, 3, v16")
        a("v_and_b32 v17, 15, v19")
        a("v_lshl_add_u32 v16, v17, 4, v16")
        a(f"v_add_u32 v17, {2*18*1024}, v16")
        a(f"v_add_u32 v18, {4*18*1024}, v16")
    a("s_waitcnt lgkmcnt(0)")
    srd(a, 16, 8, 9, 128 * KS * 1024, off_imm=(O_OFF if k3 else U_OFF))
    srd(a, 20, 6, 7, KS * 32 * 1152)
    srd(a, 24, 4, 5, 2048 * 1152)
    srd(a, 36, 8, 9, 128 * 18 * 1024, off_imm=H_OFF)
    prof_init(a); prof_real(a, 4, 30); prof_stamp(a, 0, 30)
    for i in range(3):
        a(f"buffer_load_dwordx2 {vr(RES+4*i,2)}, v{16+i}, s[{24 if k3 else 36}:{27 if k3 else 39}], 0 offen")
        a(f"buffer_load_dwordx2 {vr(RES+4*i+2,2)}, v{16+i}, s[{24 if k3 else 36}:{27 if k3 else 39}], 0 offen offset:{32 if k3 else 256}")
    if k3:
        srd(a, 44, 8, 9, 262144, off_imm=ST_OFF)
        a("v_lshlrev_b32 v21, 4, v0")
        a("s_lshl_b32 s15, s2, 12")
        a("v_add_u32 v21, s15, v21")
        for j in range(4):
            a(f"v_mov_b32 v{24+j}, -1")
        a("buffer_store_dwordx4 v[24:27], v21, s[44:47], 0 offen")
        srd(a, 44, 8, 9, 4096, off_imm=FL_OFF)
        for j in range(4):
            a(f"v_mov_b32 v{24+j}, 0")
        a("buffer_store_dwordx4 v[24:27], v21, s[44:47], 0 offen")
    steps = []
    if k3:
        steps.append((16 * 1024, 32, 10, [16 + 144 * (i & 1) + 36 * (i >> 1) for i in range(4)]))
        for n in range(4):
            steps.append((n * 4096, 31, 9, [144 * n + 18 * (i & 1) + 8 * (i >> 1) for i in range(4)]))
    else:
        for cc in range(2):
            for i9 in range(9):
                rc = 32 * i9 if i9 < 4 else (144 + 32 * (i9 - 4) if i9 < 8 else 128)
                ch = 16 if i9 < 8 else 144
                steps.append(((9 * cc + i9) * 1024, 31, 9, [288 * cc + rc + 8 * (i & 1) + ch * (i >> 1) for i in range(4)]))
    N = len(steps)
    def issue(n):
        xoff, wb, wv, rows = steps[n]
        sl = n % D
        a(f"s_add_u32 s40, s29, {xoff}")
        for rb in range(5):
            a(f"buffer_load_dwordx4 {vr(XR + sl*20 + rb*4)}, v{4+rb}, s[16:19], s40 offen")
        for i in range(4):
            a(f"s_add_u32 m0, s28, {sl*4096 + i*1024}")
            a(f"s_add_u32 s41, s{wb}, {rows[i]*1152}")
            a(f"buffer_load_dwordx4 v{wv}, s[20:23], s41 offen lds")
    def trreads(n):
        sl = n % D; st = WF + (n & 1) * 16
        for nb in range(4):
            for rd in range(2):
                a(f"ds_read_b64_tr_b16 v[{st+nb*4+rd*2}:{st+nb*4+rd*2+1}], v{11+nb} offset:{sl*4096 + rd*2048}")
    def mfmas(n, first):
        sl = n % D; st = WF + (n & 1) * 16
        for nb in range(4):
            for rb in range(5):
                acc = (rb * 4 + nb) * 4
                a(f"v_mfma_f32_16x16x32_bf16 {ar(acc)}, {vr(st+nb*4)}, {vr(XR+sl*20+rb*4)}, {ar(acc) if not first else 0}")
    pex = 1 if PROF else 0
    if k3:
        for i in range(80):
            a(f"v_accvgpr_write_b32 a{i}, 0")
        a("s_cmp_ge_u32 s12, 2")
        a(f"s_cbranch_scc1 {L}_skip1")
        issue(0)
        a.label(L + "_skip1")
        for n in range(1, 5): issue(n)
        a("s_cmp_ge_u32 s12, 2")
        a(f"s_cbranch_scc1 {L}_skip2")
        a("s_waitcnt vmcnt(36)")
        trreads(0)
        a("s_waitcnt lgkmcnt(0)")
        mfmas(0, False)
        a.label(L + "_skip2")
        n0 = 1
    else:
        for n in range(D): issue(n)
        n0 = 0
    last = min(D, N) - 1
    a(f"s_waitcnt vmcnt({9*(last-n0)})")
    prof_stamp(a, 1, 30)
    trreads(n0)
    for n in range(n0, N):
        if n + 1 < N:
            a(f"s_waitcnt vmcnt({9*(last-(n+1)) + (pex if n == n0 else 0)})")
            trreads(n + 1)
            a("s_waitcnt lgkmcnt(8)")
        else:
            a("s_waitcnt lgkmcnt(0)")
        mfmas(n, (not k3) and n == 0)
        if n + D < N:
            issue(n + D); last = n + D
    prof_stamp(a, 2, 30)
    a(f"v_mul_u32_u24 v16, {PP}, v2")
    a("v_lshl_add_u32 v16, v3, 4, v16")
    a("v_add_u32 v16, s28, v16")
    a("s_nop 7")
    for rb in range(5):
        for nb in range(4):
            acc = (rb * 4 + nb) * 4
            a(f"ds_write_b128 v16, {ar(acc)} offset:{rb*16*PP + nb*64}")
    if k3:
        a("s_lshr_b32 s15, s12, 1")
        a(f"s_mul_i32 s15, s15, {16*PP}")
        a("s_and_b32 s35, s12, 1")
        a("s_lshl_b32 s42, s35, 7")
        a("s_add_u32 s15, s15, s42")
        a(f"v_mul_u32_u24 v17, {PP}, v2")
        a("v_lshl_add_u32 v17, v3, 4, v17")
        a("v_add_u32 v17, s15, v17")
        a("s_mul_i32 s42, s13, 5")
        a("s_lshr_b32 s15, s12, 1")
        a("s_add_u32 s42, s42, s15")
        a("s_mul_i32 s15, s42, 18")
        a("s_lshl_b32 s43, s14, 1")
        a("s_add_u32 s15, s15, s43")
        a("s_add_u32 s15, s15, s35")
        a("s_lshl_b32 s15, s15, 10")
        a("v_lshlrev_b32 v18, 4, v1")
        a("v_add_u32 v18, s15, v18")
        a("s_mul_i32 s15, s42, 9")
        a("s_add_u32 s15, s15, s14")
        a("s_lshl_b32 s15, s15, 8")
        a("s_lshl_b32 s43, s35, 3")
        a("s_add_u32 s15, s15, s43")
        a("v_lshlrev_b32 v19, 4, v2")
        a("v_add_u32 v19, s15, v19")
        a("v_lshl_add_u32 v19, v3, 28, v19")
        srd(a, 44, 8, 9, 294912, off_imm=HS_OFF)
        a("s_mov_b32 s43, 0x3f803f80")
        istr = 32 * PP
    else:
        a("v_lshrrev_b32 v17, 3, v0")
        a(f"v_mul_u32_u24 v17, {PP}, v17")
        a("v_lshl_add_u32 v17, v20, 5, v17")
        a("v_mul_u32_u24 v18, 1152, v19")
        a("v_lshl_add_u32 v18, v20, 4, v18")
        a("v_add_u32 v18, s30, v18")
        istr = 32 * PP
    a("s_waitcnt lgkmcnt(0)")
    a("s_barrier")
    T = XR
    HH = 64 if k3 else 16
    for i in range(3):
        if i == 2:
            a("s_cmp_ge_u32 s12, 2")
            a(f"s_cbranch_scc1 {L}_done")
        for p in range(4):
            for hh in range(2):
                a(f"ds_read_b128 {vr(T + p*8 + hh*4)}, v17 offset:{i*istr + hh*HH}") if p == 0 else None
        a(f"v_add_u32 v21, {2*WREG}, v17")
        for hh in range(2):
            a(f"ds_read_b128 {vr(T + 8 + hh*4)}, v17 offset:{WREG + i*istr + hh*HH}")
            a(f"ds_read_b128 {vr(T + 16 + hh*4)}, v21 offset:{i*istr + hh*HH}")
            a(f"ds_read_b128 {vr(T + 24 + hh*4)}, v21 offset:{WREG + i*istr + hh*HH}")
        a("s_waitcnt lgkmcnt(0)")
        for j in range(0, 8, 2):
            a(f"v_pk_add_f32 v[{T+j}:{T+j+1}], v[{T+j}:{T+j+1}], v[{T+8+j}:{T+9+j}]")
            a(f"v_pk_add_f32 v[{T+16+j}:{T+17+j}], v[{T+16+j}:{T+17+j}], v[{T+24+j}:{T+25+j}]")
        for j in range(0, 8, 2):
            a(f"v_pk_add_f32 v[{T+j}:{T+j+1}], v[{T+j}:{T+j+1}], v[{T+16+j}:{T+17+j}]")
        for j in range(4):
            a(f"v_cvt_pk_bf16_f32 v{T+8+j}, v{T+2*j}, v{T+2*j+1}")
        for j in range(4):
            a(f"v_lshlrev_b32 v{T+2*j}, 16, v{T+8+j}")
            a(f"v_and_b32 v{T+2*j+1}, 0xffff0000, v{T+8+j}")
            a(f"v_lshlrev_b32 v{T+16+2*j}, 16, v{RES+4*i+j}")
            a(f"v_and_b32 v{T+17+2*j}, 0xffff0000, v{RES+4*i+j}")
        for j in range(0, 8, 2):
            a(f"v_pk_add_f32 v[{T+j}:{T+j+1}], v[{T+j}:{T+j+1}], v[{T+16+j}:{T+17+j}]")
        O_ = T + 32 + 4 * i
        for j in range(4):
            a(f"v_cvt_pk_bf16_f32 v{O_+j}, v{T+2*j}, v{T+2*j+1}")
        if k3:
            a(f"buffer_store_dwordx4 {vr(O_)}, v18, s[36:39], 0 offen")
            S_ = T + 48 + 2 * i
            a(f"v_mov_b32 v{S_}, 0")
            a(f"v_mov_b32 v{S_+1}, 0")
            for j in range(4):
                a(f"v_dot2_f32_bf16 v{S_}, v{O_+j}, s43, v{S_}")
                a(f"v_dot2_f32_bf16 v{S_+1}, v{O_+j}, v{O_+j}, v{S_+1}")
            a("s_nop 1")
            xlane_sum_g(a, S_, 22)
            xlane_sum_g(a, S_ + 1, 22)
            a(f"buffer_store_dwordx2 v[{S_}:{S_+1}], v19, s[44:47], 0 offen")
            a(f"v_add_u32 v18, {2*18*1024}, v18")
            a(f"v_add_u32 v19, {2*9*256}, v19")
        else:
            a(f"buffer_store_dwordx4 {vr(O_)}, v18, s[24:27], 0 offen")
            a(f"v_add_u32 v18, {32*1152}, v18")
    a.label(L + "_done")
    if PROF:
        a("s_waitcnt vmcnt(0)")
    prof_stamp(a, 3, 30); prof_real(a, 5, 30)
    a.label(L + "_end")
    a("s_endpgm")
    return a.text(), dict(vgpr=XR + D * 20, agpr=80, grid=NWG, block=256, lds=4 * WREG)
```

```python
from asmlib import *
from gen_common import *
BUD = float(os.environ.get("K4BUD", "8"))
VPACE = int(os.environ.get("K4VP", "3"))
DLA = int(os.environ.get("K4D", "8"))
NPRO = int(os.environ.get("K4PRO", "7"))
class LgTrack:
    def __init__(self, a): self.a = a; self.ops = []; self.done = -1
    def op(self, tag): self.ops.append(tag)
    def wait(self, tag):
        idx = max(i for i, t in enumerate(self.ops) if t == tag)
        if idx <= self.done: return
        n = min(len(self.ops) - 1 - idx, 15)
        self.a(f"s_waitcnt lgkmcnt({n})")
        self.done = len(self.ops) - 1 - n
    def wait_all(self):
        self.a("s_waitcnt lgkmcnt(0)"); self.done = len(self.ops) - 1
    def completed(self, tag):
        return tag in self.ops[:self.done + 1]

def k4_body(a, vm, fused, hook_late=None, hook_end=None):
    R = 144; NBUF = 18
    ACCB = [32, 56]; HOLD2 = 80; Z1P = 116
    NM2 = 152; C02 = 160; C12 = 168; RI2 = 176
    NM1 = 184; C01 = 186; C11 = 188; RI1 = 190
    CS2 = 192; CS1 = 204; SS = 240; QQ = 248
    VA = 201; VB = 202; VC = 203; PV = 1
    T0 = 8
    WFA = 144
    lg = LgTrack(a)
    if not fused: a("s_load_dwordx4 s[8:11], s[0:1], 72")
    a("s_and_b32 s13, s2, 7")
    a("s_lshr_b32 s14, s2, 3")
    a("s_and_b32 s15, s13, 1")
    a("s_lshl_b32 s15, s15, 3")
    a("s_and_b32 s28, s14, 7")
    a("s_add_u32 s28, s28, s15")
    a("s_lshr_b32 s15, s13, 1")
    a("s_lshl_b32 s15, s15, 2")
    a("s_lshr_b32 s29, s14, 3")
    a("s_add_u32 s29, s29, s15")
    a("v_lshlrev_b32 v4, 4, v1")
    a("v_add_u32 v5, 0x10000, v4")
    a("v_add_u32 v6, 0x20000, v4")
    a("v_add_u32 v7, 18432, v4")
    a("s_mul_i32 s30, s29, 288")
    a("s_mul_i32 s31, s29, 331776")
    a("s_mul_i32 s64, s12, 3072")
    a("s_mul_i32 s65, s12, 9216")
    a("s_add_u32 s66, s31, s64")
    a("s_add_u32 s67, s31, s65")
    a("s_lshl_b32 s33, s28, 2")
    a("s_add_u32 s33, s33, s12")
    a(f"s_mul_i32 s34, s33, {2*18*1024}")
    a("s_waitcnt lgkmcnt(0)")
    srd(a, 16, 10, 11, 128 * 18 * 1024, off_imm=H_OFF)
    srd(a, 20, 10, 11, 16 * 324 * 1024, off_imm=WP_OFF)
    prof_init(a, 10); prof_real(a, 14, PV); prof_stamp(a, 0, PV)
    chunks = [(c, c + 12) for c in range(0, 72, 12)] + [(c, c + 36) for c in range(72, 324, 36)]
    chunk_of = {}
    for ci, (c0, c1) in enumerate(chunks):
        for u in range(c0, c1): chunk_of[u] = ci
    def dma(ci):
        c0, c1 = chunks[ci]; n = (c1 - c0) // 4
        def one(i):
            G = int(os.environ.get("K4G", "4"))
            if i % G == 0:
                a(f"s_add_u32 m0, s{64 if n == 3 else 65}, {((c0 % R) + i) * 1024}")
                a(f"s_add_u32 s35, s{66 if n == 3 else 67}, {(c0 + i) * 1024}")
            a(f"buffer_load_dwordx4 v4, s[20:23], s35 offen offset:{(i % G) * 1024} lds")
            vm.op(f"W{ci}")
        return [(f'W{ci}', lambda i=i: one(i)) for i in range(n)]
    def xload(ks):
        def one(rb):
            if rb == 0 and ks % 4 == 0: a(f"s_add_u32 s36, s34, {ks * 1024}")
            a(f"buffer_load_dwordx4 {ar((rb*18+ks)*4)}, v{4 if rb == 0 else 7}, s[16:19], s36 offen offset:{(ks % 4) * 1024}")
            vm.op(f"X{ks}")
        return [(f'X{ks}', lambda rb=rb: one(rb)) for rb in range(2)]
    HSB = Z1P
    def stats_loads():
        u = []
        def hs(rb, i):
            if rb == 0 and i == 0:
                srd(a, 24, 10, 11, 294912, off_imm=HS_OFF)
                srd(a, 40, 10, 11, 4608 * 4, off_imm=CS_OFF)
                a("s_mul_i32 s37, s33, 4608")
                a(f"v_lshl_add_u32 v{VA}, v3, 28, v4")
                a("s_add_u32 s38, s37, 2304")
            a(f"buffer_load_dwordx4 {vr(HSB + (rb*3+i)*4)}, v{4 if i < 2 else VA}, s[24:27], s{37+rb} offen offset:{i*1024}")
            vm.op("HS")
        def cs2(nb):
            if nb == 0:
                a("s_lshl_b32 s39, s30, 1")
                a("s_add_u32 s37, s39, 9216")
                a(f"v_lshlrev_b32 v{VB}, 2, v2")
                a(f"v_lshlrev_b32 v{VC}, 4, v3")
            a(f"buffer_load_dword v{CS2+nb}, v{VB}, s[40:43], s37 offen offset:{nb*64}")
            vm.op("CS")
        def cs1(nb):
            a(f"buffer_load_dwordx4 {vr(CS1+nb*4)}, v{VC}, s[40:43], s39 offen offset:{nb*64}")
            vm.op("CS")
        return [('HS', lambda rb=rb, i=i: hs(rb, i)) for rb in range(2) for i in range(3)], \
               [('CS', lambda nb=nb: cs2(nb)) for nb in range(9)] + [('CS', lambda nb=nb: cs1(nb)) for nb in range(9)]
    vq = []
    def need(tag):
        while any(t == tag for t, _ in vq): vq.pop(0)[1]()
        vm.wait(tag)
    nxt_chunk = 0
    hsl, csl = stats_loads()
    def push_chunks(limit):
        nonlocal nxt_chunk
        while nxt_chunk < len(chunks) and chunks[nxt_chunk][0] < limit and chunks[nxt_chunk][1] - R <= udone[0]:
            vq.extend(dma(nxt_chunk)); nxt_chunk += 1
    udone = [0]
    npro = 0
    for ks in range(18):
        push_chunks(3 * ks + 3)
        vq.extend(xload(ks))
        if ks == 2: vq.extend(hsl)
        if ks == 11: vq.extend(csl)
        if ks == NPRO: npro = len(vq)
    push_chunks(10000)
    for _ in range(npro): vq.pop(0)[1]()
    srd(a, 44, 10, 11, 262144, off_imm=ST_OFF)
    srd(a, 52, 10, 11, 2304 * 4096, off_imm=Z2T_OFF)
    if not fused: srd(a, 56, 10, 11, 2304 * 4096, off_imm=Z1_OFF)
    def atomic(lst):
        def f():
            for x in lst: a(x)
            credit[0] = 6
        return f
    def stats_math():
        b_ = Buf()
        b_.l.append(lambda: need("HS"))
        x = Buf()
        for rb in range(2):
            b = HSB + rb * 12
            x(pk("add", b, b, b + 2)); x(pk("add", b + 4, b + 4, b + 6)); x(pk("add", b + 8, b + 8, b + 10))
            x(pk("add", b, b, b + 4)); x(pk("add", b, b, b + 8))
        for rb in range(2):
            b = HSB + rb * 12
            xlane_sum_g(x, b, 24); xlane_sum_g(x, b + 1, 24)
        b_.l.append(atomic(x.l))
        for rb in range(2):
            b = HSB + rb * 12
            b_(f"v_mov_b32 v{NM1+rb}, v{b}"); b_(f"v_mov_b32 v{RI1+rb}, v{b+1}")
        ln_ms(b_, [(NM1, RI1), (NM1 + 1, RI1 + 1)], 576)
        b_("v_lshlrev_b32 v24, 4, v3")
        def bp(rb, j):
            a(f"ds_bpermute_b32 v{RI2+rb*4+j}, v24, v{RI1+rb} offset:{4*j}"); lg.op("BP")
            a(f"ds_bpermute_b32 v{NM2+rb*4+j}, v24, v{NM1+rb} offset:{4*j}"); lg.op("BP")
        for rb in range(2):
            for j in range(4): b_.l.append(lambda rb=rb, j=j: bp(rb, j))
        def derive(ri, c0, c1, n):
            for i in range(n): b_(f"v_rcp_f32 v{c0+i}, v{ri+i}")
            b_("s_nop 0")
            for i in range(n): b_(f"v_mul_f32 v{c1+i}, v{c0+i}, v{c0+i}")
            for i in range(n): b_(f"v_mul_f32 v{c1+i}, v{c1+i}, v{c0+i}")
            for i in range(n):
                b_(f"v_mul_f32 v{c0+i}, {f32bits(GK0):#x}, v{c0+i}")
                b_(f"v_mul_f32 v{c1+i}, {f32bits(GK1):#x}, v{c1+i}")
        derive(RI1, C01, C11, 2)
        for i in range(16): b_(f"v_mov_b32 v{SS+i}, 0")
        b_.l.append(lambda: lg.wait("BP"))
        derive(RI2, C02, C12, 8)
        b_.l.append(lambda: need("CS"))
        return b_.l
    def epi(p, tail=False):
        z2 = p < 3
        b_ = Buf()
        Q = [(il, rb) for il in range(3) for rb in range(2)]
        X = lambda q: ACCB[p & 1] + q * 4
        T = lambda q: T0 + q * 4
        def c(base2, base1, rb, h): return base2 + rb * 4 + h if z2 else ('b', base1 + rb)
        def cv(base2, base1, rb, j): return base2 + rb * 4 + j if z2 else base1 + rb
        A = Buf()
        for q, (il, rb) in enumerate(Q):
            nb = 3 * (p % 3) + il
            for h in (0, 2):
                if z2: A(pk("fma", X(q) + h, NM2 + rb * 4 + h, ('b', CS2 + nb), X(q) + h))
                else: A(pk("fma", X(q) + h, CS1 + nb * 4 + h, ('b', NM1 + rb), X(q) + h))
        for q, (il, rb) in enumerate(Q):
            for h in (0, 2): A(pk("mul", T(q) + h, X(q) + h, X(q) + h))
        for q, (il, rb) in enumerate(Q):
            for h in (0, 2): A(pk("fma", T(q) + h, T(q) + h, c(C12, C11, rb, h), c(C02, C01, rb, h)))
        for q, (il, rb) in enumerate(Q):
            for h in (0, 2): A(pk("mul", T(q) + h, T(q) + h, X(q) + h))
        b_.l.append(atomic(A.l))
        for i in range(24): b_(f"v_exp_f32 v{T0+i}, v{T0+i}")
        for q, (il, rb) in enumerate(Q):
            if tail:
                for h in (0, 2): b_(pk("fma", T(q) + h, T(q) + h, c(RI2, RI1, rb, h), c(RI2, RI1, rb, h)))
            else:
                for j in range(4): b_(f"v_fma_f32 v{T(q)+j}, v{T(q)+j}, v{cv(RI2, RI1, rb, j)}, v{cv(RI2, RI1, rb, j)}")
        for i in range(24): b_(f"v_rcp_f32 v{T0+i}, v{T0+i}")
        if z2 or tail:
            E = Buf()
            for q in range(6):
                for h in (0, 2): E(pk("mul", X(q) + h, X(q) + h, T(q) + h))
            if z2:
                for q, (il, rb) in enumerate(Q):
                    for h in (0, 2):
                        E(pk("add", SS + rb * 4 + h, SS + rb * 4 + h, X(q) + h))
                        E(pk("fma", QQ + rb * 4 + h, X(q) + h, X(q) + h, QQ + rb * 4 + h))
            b_.l.append(atomic(E.l))
        else:
            for i in range(24): b_(f"v_mul_f32 v{X(0)+i}, v{X(0)+i}, v{T0+i}")
        if p == 2:
            b_("s_nop 1")
            row16_sum(b_, list(range(SS, SS + 16)))
            b_.l.append(st_publish)
        for q, (il, rb) in enumerate(Q):
            nb = 3 * (p % 3) + il
            for h in (0, 2):
                b_(f"v_cvt_pk_bf16_f32 v{(HOLD2 if z2 else Z1P)+nb*4+rb*2+h//2}, v{X(q)+h}, v{X(q)+h+1}")
            if not z2 and not fused and rb == 1:
                def st(nb=nb):
                    if nb == 0:
                        a("s_mul_i32 s69, s33, 144")
                        a("s_mul_i32 s37, s29, 9")
                        a("s_add_u32 s69, s69, s37")
                        a("s_lshl_b32 s69, s69, 10")
                    a(f"s_add_u32 s37, s69, {nb*1024}")
                    a(f"buffer_store_dwordx4 {vr(Z1P+nb*4)}, v4, s[56:59], s37 offen")
                    vm.op("Z1")
                b_.l.append(st)
        b_.l.append(f"MARK_E{p}")
        return b_.l
    def st_publish():
        a("s_lshl_b32 s36, s28, 4")
        a("s_add_u32 s36, s36, s29")
        a("s_lshl_b32 s36, s36, 10")
        a("s_lshl_b32 s37, s12, 8")
        a("s_add_u32 s36, s36, s37")
        a(f"v_lshlrev_b32 v{VA}, 5, v3")
        a(f"v_lshl_add_u32 v{VB}, v2, 24, v{VA}")
        a(f"v_lshl_add_u32 v{VA}, v2, 10, v{VA}")
        for rb in range(2):
            a(f"buffer_store_dwordx4 {vr(SS+rb*4)}, v{VB}, s[44:47], s36 offen offset:{rb*128} sc0 sc1")
            a(f"buffer_store_dwordx4 {vr(QQ+rb*4)}, v{VB}, s[44:47], s36 offen offset:{rb*128+16} sc0 sc1")
            vm.op("ST"); vm.op("ST")
        a("s_lshl_b32 s68, s28, 14")
        a("s_add_u32 s68, s68, s37")
        prof_stamp(a, 8, PV)
    def poll_loads(track=True):
        for rb in range(2):
            a(f"buffer_load_dwordx4 {vr(SS+rb*4)}, v{VA}, s[44:47], s68 offen offset:{rb*128} sc0 sc1")
            a(f"buffer_load_dwordx4 {vr(QQ+rb*4)}, v{VA}, s[44:47], s68 offen offset:{rb*128+16} sc0 sc1")
            if track: vm.op("PL"); vm.op("PL")
    def poll_check():
        T = T0
        prof_stamp(a, 9, PV)
        vm.wait("PL")
        a("s_mov_b32 s38, 0")
        a.label("L_k4_spin")
        for i in range(0, 8, 2): a(pk("add", T + i, SS + i, QQ + i))
        a(pk("add", T, T, T + 2)); a(pk("add", T + 4, T + 4, T + 6)); a(pk("add", T, T, T + 4))
        a(f"v_cmp_u_f32 vcc, v{T}, v{T+1}")
        a("s_cmp_eq_u64 vcc, 0")
        a("s_cbranch_scc1 L_k4_go")
        a("s_add_u32 s38, s38, 1")
        a("s_cmp_lt_u32 s38, 0x20000")
        a("s_cbranch_scc0 L_k4_go")
        a("s_sleep 1")
        poll_loads(False)
        a("s_waitcnt vmcnt(0)")
        a("s_branch L_k4_spin")
        a.label("L_k4_go")
        prof_stamp(a, 10, PV)
    def norm_z2():
        b_ = Buf()
        b_.l.append(poll_check)
        row16_sum(b_, list(range(SS, SS + 16)))
        ln_scalars(b_, [(SS + i, QQ + i) for i in range(8)], 2304)
        b_("s_mul_i32 s70, s29, 576")
        b_("s_lshr_b32 s37, s33, 1")
        b_("s_mul_i32 s37, s37, 18")
        b_("s_add_u32 s70, s70, s37")
        b_("s_and_b32 s37, s33, 1")
        b_("s_add_u32 s70, s70, s37")
        b_("s_lshl_b32 s70, s70, 10")
        for nb in range(9):
            T = T0 + (nb & 1) * 8
            for p in range(4):
                t = T + 2 * p; hreg = HOLD2 + nb * 4 + p
                b_(f"v_lshlrev_b32 v{t}, 16, v{hreg}")
                b_(f"v_and_b32 v{t+1}, 0xffff0000, v{hreg}")
            for p in range(4): b_(pk("fma", T + 2 * p, T + 2 * p, QQ + 2 * p, SS + 2 * p))
            for p in range(4): b_(f"v_cvt_pk_bf16_f32 v{HOLD2+nb*4+p}, v{T+2*p}, v{T+2*p+1}")
            def st(nb=nb):
                a(f"s_add_u32 s37, s70, {nb*2048}")
                a(f"buffer_store_dwordx4 {vr(HOLD2+nb*4)}, v4, s[52:55], s37 offen" + (" sc0 sc1" if fused else ""))
                vm.op("Z2")
            b_.l.append(st)
        b_.l.append(lambda: prof_stamp(a, 11, PV))
        return b_.l
    units = [(p, ks, il) for p in range(6) for ks in range(18) for il in range(3)]
    for u, (p, ks, il) in enumerate(units): assert wp_unit(2 if p < 3 else 1, ks, 3 * (p % 3) + il) == u
    marks = set()
    valu = []
    def read(u):
        ci = chunk_of[u]
        if chunks[ci][0] == u:
            need(f"W{ci}")
            a("s_barrier")
            d = u - 1
            while d >= 0 and not lg.completed(f"R{d}"): d -= 1
            udone[0] = d + 1
            push_chunks(10000)
        pos = (u % R) * 1024
        a(f"ds_read_b128 {ar(WFA + (u % NBUF) * 4)}, v{4 + (pos >> 16)} offset:{pos & 0xffff}")
        lg.op(f"R{u}")
        credit[0] -= 5
    def emit_valu(budget, until=None):
        credit[0] += budget
        while valu and (credit[0] > 0 or (until and until not in marks)):
            it = valu.pop(0)
            if callable(it): it()
            elif it.startswith("MARK"): marks.add(it); continue
            else: a(it)
            credit[0] -= icost(it)
        if not valu: credit[0] = min(credit[0], 0)
    credit = [0.0]
    for u in range(DLA): read(u)
    credit[0] = 0
    prof_stamp(a, 1, PV)
    slot = 0
    for u, (p, ks, il) in enumerate(units):
        if u % 54 == 0 and p >= 2:
            emit_valu(0, until=f"MARK_E{p-2}"); credit[0] = 0
        if u % 54 == 0 and p >= 1: prof_stamp(a, 1 + p, PV)
        if p == 0 and il == 0: need(f"X{ks}")
        if u % 3 == 0: lg.wait(f"R{u+2}")
        if u == 15: valu.extend(stats_math())
        if u % 54 == 1 and p >= 1:
            valu.extend(epi(p - 1))
        if u == 300:
            poll_loads()
            if hook_late:
                vq.extend(hook_late())
        wf = ar(WFA + (u % NBUF) * 4)
        for rb in range(2):
            xa = ar((rb * 18 + ks) * 4)
            acc = ACCB[p & 1] + (il * 2 + rb) * 4
            if p < 3: a(f"v_mfma_f32_16x16x32_bf16 {vr(acc)}, {xa}, {wf}, {vr(acc) if ks else 0}")
            else: a(f"v_mfma_f32_16x16x32_bf16 {vr(acc)}, {wf}, {xa}, {vr(acc) if ks else 0}")
            if rb == 0 and u + DLA < 324: read(u + DLA)
            if slot % (VPACE if p else 2) == 1 and vq: vq.pop(0)[1](); credit[0] -= 5
            emit_valu(BUD)
            slot += 1
    assert not vq
    prof_stamp(a, 7, PV)
    if hook_end: hook_end()
    valu.extend(["s_nop 7"] + norm_z2() + epi(5, tail=True))
    while valu: emit_valu(1e9)
    return Z1P

def gen_k4():
    a = Asm()
    vm = VmTrack(a)
    common_prologue(a, 256, "L_k4_end")
    k4_body(a, vm, False)
    if PROF:
        a("s_waitcnt vmcnt(0)")
    for i in range(12, 14): prof_stamp(a, i, 1)
    prof_real(a, 15, 1)
    a.label("L_k4_end")
    a("s_endpgm")
    return a.text(), dict(vgpr=256, agpr=216, grid=256, block=256, lds=144 * 1024)
```

```python
from asmlib import *
from gen_common import *
from k4n import k4_body, LgTrack
F4_OFF = 0
F5_OFF = 65536
F6_OFF = 131072
EXP = int(os.environ.get("EXP", "0"))
STAG = int(os.environ.get("STAG", "0"))
INL = [False]
PMODE = int(os.environ.get("PMODE", "1"))
PSC = os.environ.get("PSC", " sc0 sc1")
PLD = os.environ.get("PLD", " sc0 sc1")
USC = os.environ.get("USC", " sc0 sc1")
FSC = os.environ.get("FSC", " sc0 sc1")
FLD = os.environ.get("FLD", " sc0 sc1")
def poll(a, vaddr, vt, srdn, soff, sc=" sc0 sc1"):
    a(f"buffer_load_dword v{vt}, v{vaddr}, s[{srdn}:{srdn+3}], {soff} offen" + sc)
def spin_flags(a, name, vaddr, vt, srdn, soff, sc=38, orm=None, pre=False, ld=" sc0 sc1"):
    a(f"s_mov_b32 s{sc}, 0")
    if pre: a(f"s_branch L_{name}_chk")
    a.label(f"L_{name}_spin")
    poll(a, vaddr, vt, srdn, soff, ld)
    a.label(f"L_{name}_chk")
    a("s_waitcnt vmcnt(0)")
    if orm is not None: a(f"v_or_b32 v{vt}, v{vt}, v{orm}")
    a(f"v_cmp_eq_u32 vcc, 0, v{vt}")
    a("s_cmp_eq_u64 vcc, 0")
    a(f"s_cbranch_scc1 L_{name}_go")
    a(f"s_add_u32 s{sc}, s{sc}, 1")
    a(f"s_cmp_lt_u32 s{sc}, 0x40000")
    a(f"s_cbranch_scc0 L_{name}_go")
    a("s_sleep 1")
    a(f"s_branch L_{name}_spin")
    a.label(f"L_{name}_go")

def k5_parts(a, vm, Z1):
    ZS = 18432
    AF = 0; BR = 88; ACC = 32
    BI = 196
    ZU = 160
    TB = 236
    OW = Z1
    zslot = lambda G: {29: 0, 30: 1, 31: 2}.get(G, G % 8)
    def bload(G, i):
        a(f"buffer_load_dwordx4 {ar(BR + (G % 8) * 16 + i * 4)}, v4, s[60:63], s71 offen offset:{i*1024}"); vm.op(f"G{G}")
    def badv(): a("s_add_u32 s71, s71, 4096")
    def early():
        def bias():
            srd(a, 56, 80, 81, 4096)
            a(f"v_lshlrev_b32 v{BI+2}, 1, v2")
            a("s_lshl_b32 s73, s33, 6")
            for rb in range(2):
                a(f"buffer_load_ushort v{BI+rb}, v{BI+2}, s[56:59], s73 offen offset:{rb*32}"); vm.op("WSP")
        return [("WSP", bias)]
    def late():
        srd(a, 60, 10, 11, 2048 * 4096, off_imm=WSPP_OFF)
        a("s_lshl_b32 s71, s33, 17")
        for G in range(2):
            for i in range(4): bload(G, i)
            badv()
    TOP = 8 * ZS
    POS = [s_ * ZS + h * 9216 for s_ in (5, 6, 7, 3, 4, 0, 1, 2) for h in range(2)] + [TOP, 5 * ZS]
    def blk5(pos, srdn, ss, tag):
        def ld(i):
            if i < 4: a(f"buffer_load_dwordx4 v4, s[{srdn}:{srdn+3}], s{ss} offen offset:{i*1024} lds")
            else: a(f"buffer_load_dwordx4 v7, s[{srdn}:{srdn+3}], s{ss} offen lds")
            vm.op(tag)
        return [('s', lambda: a(f"s_add_u32 m0, s72, {pos}"))] + [('v', lambda i=i: ld(i)) for i in range(4)] + \
               [('s', lambda: a(f"s_add_u32 m0, s72, {pos + 4096}")), ('v', lambda: ld(4))]
    def p6_pair(n):
        return [('s', lambda: a(f"s_add_u32 s70, s{64 + n//4}, {(n % 4) * 9216}"))] + blk5(POS[n], 20, 70, f"W{n+1}")
    def p6_single(n):
        def one(k):
            if k == 2: a("s_mov_b64 exec, 0xffff")
            a(f"buffer_load_dwordx4 v4, s[20:23], s70 offen offset:{k*1024} lds"); vm.op(f"W{n}")
            if k == 2: a("s_mov_b64 exec, -1")
        return [('s', lambda: a(f"s_add_u32 s70, s68, {(n - 16) * 9216}")), ('s', lambda: a(f"s_add_u32 m0, s69, {POS[n]}"))] + \
               [('v', lambda k=k: one(k)) for k in range(3)]
    def main():
        a("v_lshrrev_b32 v1, 4, v4")
        srd(a, 24, 10, 11, 196608, off_imm=FL_OFF)
        a("v_lshlrev_b32 v16, 2, v2")
        a("s_mul_i32 s36, s29, 1280")
        a(f"s_add_u32 s36, s36, {F4_OFF}")
        a("s_lshl_b32 s37, s28, 2")
        a("s_add_u32 s37, s37, s36")
        a("v_mov_b32 v17, 1")
        a("v_lshlrev_b32 v18, 24, v0")
        vm.wait("Z2")
        a("s_barrier")
        a("buffer_store_dword v17, v18, s[24:27], s37 offen sc0 sc1")
        prof_stamp(a, 12, 17)
        a("s_lshr_b32 s31, s12, 1")
        a("s_mul_i32 s31, s31, 9")
        a("s_and_b32 s32, s12, 1")
        a("s_lshl_b32 s32, s32, 2")
        a("s_add_u32 s72, s31, s32")
        a("s_lshl_b32 s72, s72, 10")
        a("s_mul_i32 s40, s29, 589824")
        a("s_add_u32 s40, s40, s72")
        a("v_add_u32 v7, 4096, v4")
        a("v_mov_b32 v12, v4")
        srd(a, 16, 10, 11, 2304 * 4096, off_imm=Z2T_OFF)
        srd(a, 52, 10, 11, 2304 * 4096, off_imm=U_OFF)
        srd(a, 20, 10, 11, 2592 * 1024, off_imm=WOP_OFF)
        for rb in range(2): a(f"v_lshlrev_b32 v{BI+rb}, 16, v{BI+rb}")
        for i in range(72): a(f"v_mov_b32 v{ACC+i}, v{BI + i // 36}")
        a("s_and_b32 s74, s29, 3")
        a("s_lshr_b32 s75, s29, 2")
        a("s_mul_i32 s69, s12, 2304")
        for pp in range(4):
            a(f"s_add_u32 s35, s75, {pp}")
            a("s_and_b32 s35, s35, 3")
            a("s_lshl_b32 s35, s35, 11")
            for wd in range(3): a(f"v_add_u32 v{TB+pp*3+wd}, s35, v{4+wd}")
        a(f"s_mul_i32 s34, s29, {18*9216}")
        for b in range(4):
            a(f"s_add_u32 s35, s74, {b}")
            a("s_and_b32 s35, s35, 3")
            a(f"s_mul_i32 s35, s35, {4*9216}")
            a("s_add_u32 s35, s35, s34")
            a(f"s_add_u32 s{64+b}, s35, s72")
        a(f"s_add_u32 s68, s34, {16*9216}")
        a("s_add_u32 s68, s68, s69")
        spin_flags(a, "f4", 16, 17, 24, "s36")
        prof_stamp(a, 13, 17)
        def group(G, withb=True):
            u = blk5(zslot(G) * ZS, 16, 40, f"G{G}") + [('s', lambda: a(f"s_add_u32 s40, s40, {ZS}"))]
            if withb: u += [('v', lambda i=i: bload(G, i)) for i in range(4)] + [('s', badv)]
            return u
        vm.ops.clear()
        for G in range(4):
            for k, f_ in group(G, G >= 2):
                f_()
                if k == 's': a("s_nop 0")
        def reads(q):
            r = []
            for fb in range(9):
                pos = zslot(q >> 1) * ZS + (fb * 2 + (q & 1)) * 1024
                r.append(f"ds_read_b128 {ar(AF + (q & 1) * 36 + fb * 4)}, v{4 + (pos >> 16)} offset:{pos & 0xffff}")
            return r
        pend = []; valu = []
        def kstep(q, vs):
            af = AF + (q & 1) * 36; bf = BR + ((q >> 1) % 8) * 16 + (q & 1) * 8
            rd = reads(q + 1) if q < 63 else []
            slot = 0
            for fb in range(9):
                for rb in range(2):
                    acc = ACC + (rb * 9 + fb) * 4
                    a(f"v_mfma_f32_16x16x32_bf16 {vr(acc)}, {ar(af+fb*4)}, {ar(bf+rb*4)}, {vr(acc)}")
                    if slot in vs and pend and pend[0][0] == 'v': pend.pop(0)[1]()
                    else:
                        if rd: a(rd.pop(0))
                        elif valu: a(valu.pop(0))
                        if pend and pend[0][0] == 's' and (not rd or slot + 1 in vs or (slot + 2 in vs and len(pend) > 1 and pend[1][0] == 's')): pend.pop(0)[1]()
                        elif valu and not rd: a(valu.pop(0))
                    slot += 1
            assert not rd
        VA = (3, 7, 11, 15); VB = (1, 5, 9, 13, 16)
        vm.wait("G0")
        a("s_barrier")
        PROF_K[0] += 1
        prof_init(a, 10); prof_real(a, 6, 17); prof_stamp(a, 0, 17); prof_stamp(a, 1, 17)
        for r in reads(0): a(r)
        a("s_mov_b32 s50, 0")
        a("s_waitcnt lgkmcnt(0)")
        kstep(0, ())
        a.label("L_k5_loop")
        for q in range(1, 17):
            if q & 1:
                a("s_waitcnt vmcnt(18) lgkmcnt(0)")
                a("s_barrier")
                pend.extend(group((q - 1) // 2 + 4))
            else:
                a("s_waitcnt lgkmcnt(0)")
            if q == 16: a("s_add_u32 s50, s50, 1")
            kstep(q, VA if q & 1 else VB)
            assert q & 1 or not pend, pend
        a("s_cmp_lt_u32 s50, 3")
        a("s_cbranch_scc1 L_k5_loop")
        prof_stamp(a, 2, 17)
        vm.ops[:] = ["G25"] * 9 + ["G26"] * 9 + ["G27"] * 9
        for q in range(49, 64):
            G = q >> 1
            vs = VA if q & 1 else VB
            if q & 1:
                if G < 31: vm.wait(f"G{G+1}")
                a("s_waitcnt lgkmcnt(0)")
                a("s_barrier")
                if G < 28: pend.extend(group(G + 4))
                elif G < 31: pend.extend(p6_pair(4 * (G - 28)) + p6_pair(4 * (G - 28) + 2))
                else: pend.extend(p6_pair(12) + p6_single(16))
                if q == 51:
                    for fb in range(9):
                        for rb in range(2):
                            for h in range(2):
                                zr = Z1 + fb * 4 + rb * 2 + h; t = ZU + (rb * 9 + fb) * 4 + 2 * h
                                valu.append(f"v_lshlrev_b32 v{t}, 16, v{zr}")
                                valu.append(f"v_and_b32 v{t+1}, 0xffff0000, v{zr}")
            else:
                a("s_waitcnt lgkmcnt(0)")
            if q >= 57: vs = (3, 6, 9, 12, 15) if q & 1 else (1, 4, 7, 10, 13, 16)
            if q == 63: vs = (2, 3, 4, 5, 7, 10, 12, 14)
            kstep(q, vs)
            assert q & 1 and q < 63 or not pend, (q, pend)
        assert not valu
        prof_stamp(a, 3, 17); prof_stamp(a, 4, 17); prof_stamp(a, 5, 17); prof_real(a, 7, 17)
        PROF_K[0] += 1
        prof_init(a, 10); prof_real(a, 10, 17); prof_stamp(a, 0, 17)
        a("s_mul_i32 s40, s33, 144")
        a("s_lshl_b32 s40, s40, 10")
        for b in range(4):
            a(f"s_add_u32 s35, s74, {b}")
            a("s_and_b32 s35, s35, 3")
            a("s_lshl_b32 s39, s75, 2")
            a("s_add_u32 s35, s35, s39")
            a("s_lshr_b32 s39, s35, 1")
            a("s_mul_i32 s39, s39, 9")
            a("s_and_b32 s35, s35, 1")
            a("s_lshl_b32 s35, s35, 2")
            a("s_add_u32 s35, s35, s39")
            a("s_lshl_b32 s35, s35, 10")
            a(f"s_add_u32 s{41+b}, s40, s35")
            if b == 0:
                a("s_lshl_b32 s39, s39, 10")
                a("s_add_u32 s45, s40, s39")
                a("s_and_b32 s39, s29, 1")
                a("s_lshl_b32 s39, s39, 9")
                a("s_add_u32 s45, s45, s39")
                a("s_add_u32 s45, s45, 8192")
                a(f"v_add_u32 v13, 73728, v12")
                a("v_lshrrev_b32 v14, 1, v12")
                a(f"v_add_u32 v15, 73728, v14")
        for i in range(5):
            for rb in range(2):
                for fb in ((2 * i, 2 * i + 1) if i < 4 else (8,)):
                    x = ACC + (rb * 9 + fb) * 4; t = ZU + (rb * 9 + fb) * 4
                    o = OW + i * 8 + rb * 4 + (fb & 1) * 2 if i < 4 else OW + 32 + rb * 2
                    for h in (0, 2): a(pk("mul", x + h, x + h, t + h))
                    for h in (0, 2): a(f"v_cvt_pk_bf16_f32 v{o+h//2}, v{x+h}, v{x+h+1}")
                if i < 4: a(f"buffer_store_dwordx4 {vr(OW+i*8+rb*4)}, v{12+rb}, s[52:55], s41 offen offset:{i*1024}" + USC)
                else: a(f"buffer_store_dwordx2 {vr(OW+32+rb*2,2)}, v{14+rb}, s[52:55], s45 offen" + USC)
                vm.op("U")
        vm.wait("W7")
        a("s_barrier")
        WF = 112; XF = 0
        def wread(n, f, d):
            full = POS[n] + (f & 1 if f < 8 else 8) * 1024
            base = (TB + (f >> 1) * 3 if f < 8 else 4) + (full >> 16)
            return f"ds_read_b128 {ar(d)}, v{base} offset:{full & 0xffff}"
        def trreads(n, fl): return [wread(n, f, WF + (n & 1) * 36 + f * 4) for f in fl]
        ALL = list(range(9)); FOR = list(range(2, 9))
        for r in trreads(0, ALL): a(r)
        pend.extend(p6_pair(14))
        a("s_lshl_b32 s46, s33, 2")
        a("s_add_u32 s46, s46, s75")
        a("s_lshl_b32 s46, s46, 8")
        a(f"s_add_u32 s46, s46, {F5_OFF}")
        a("s_lshl_b32 s35, s74, 2")
        a("s_add_u32 s47, s46, s35")
        a("v_and_b32 v16, 3, v1")
        a("v_cmp_eq_u32 vcc, s74, v16")
        a("v_cndmask_b32 v19, 0, 1, vcc")
        a("v_lshlrev_b32 v16, 2, v16")
        a("v_mov_b32 v17, 1")
        a("v_lshlrev_b32 v18, 24, v1")
        a(f"s_mul_i32 s35, s75, {18*1024}")
        a("s_add_u32 s45, s40, s35")
        a("s_add_u32 s45, s45, 8192")
        prof_stamp(a, 1, 21)
        def xfrag(n, rb): return vr(OW + n * 8 + rb * 4) if n < 4 else ar(XF + (n - 4) * 8 + rb * 4)
        def pop_pend():
            x = pend.pop(0)
            x[1]() if isinstance(x, tuple) else x()
        def p6step(n, fl, rd):
            a("s_waitcnt lgkmcnt(0)")
            slot = 0
            for f in fl:
                for rb in range(2):
                    acc = ACC + (f * 2 + rb) * 4
                    a(f"v_mfma_f32_16x16x32_bf16 {vr(acc)}, {ar(WF+(n&1)*36+f*4)}, {xfrag(n, rb)}, {vr(acc) if n else 0}")
                    if slot % 3 == 2 and pend: pop_pend()
                    elif rd: a(rd.pop(0))
                    elif pend and slot % 2: pop_pend()
                    slot += 1
            assert not rd
        p6step(0, ALL, trreads(1, ALL)); p6step(1, ALL, trreads(2, ALL))
        prof_stamp(a, 2, 21)
        if PROF: vm.op("P"); vm.op("P")
        vm.wait("U")
        prof_stamp(a, 3, 21)
        a("buffer_store_dword v17, v18, s[24:27], s47 offen" + FSC); vm.op("F5")
        p6step(2, ALL, trreads(3, ALL))
        poll(a, 16, 21, 24, "s46", FLD)
        p6step(3, ALL, trreads(4, FOR))
        assert not pend
        prof_stamp(a, 4, 27)
        spin_flags(a, "f5", 16, 21, 24, "s46", sc=39, orm=19, pre=True, ld=FLD)
        vm.ops.clear()
        if os.environ.get("UFAKE"): srd(a, 52, 10, 11, 2304 * 4096, off_imm=eval(os.environ["UFAKE"]))
        def xload(n):
            def one(rb):
                d = XF + (n - 4) * 8 + rb * 4
                if n < 16:
                    a(f"buffer_load_dwordx4 {ar(d)}, v{12+rb}, s[52:55], s{41 + n//4} offen offset:{(n%4)*1024}"); vm.op(f"X{n}")
                else:
                    if n == 17 and rb == 0: a(f"s_add_u32 s45, s45, {9*1024}")
                    for h in range(2):
                        a(f"buffer_load_dwordx2 {ar(d+2*h,2)}, v{14+rb}, s[52:55], s45 offen offset:{h*512}"); vm.op(f"X{n}")
            return [lambda rb=rb: one(rb) for rb in range(2)] if not EXP & 4 else []
        XA = int(os.environ.get("XA", "5"))
        for n in range(4, 4 + XA):
            for f_ in xload(n): f_()
        prof_stamp(a, 5, 21)
        RES = 104
        srd(a, 16, 10, 11, 128 * 18 * 1024, off_imm=H_OFF)
        srd(a, 60, 10, 11, 256 * 36864, off_imm=P_OFF)
        srd(a, 56, 84, 85, 2048 * 1152)
        a(f"s_mul_i32 s48, s33, {32*1152}")
        a("s_mul_i32 s39, s74, 288")
        a("s_add_u32 s48, s48, s39")
        a("s_lshl_b32 s39, s75, 6")
        a("s_add_u32 s49, s48, s39")
        a(f"s_mul_i32 s35, s33, {36*1024}")
        a("s_mul_i32 s34, s74, 9")
        a("v_add_u32 v20, 18432, v12")
        def res(i):
            if i < 2:
                a("s_lshl_b32 s39, s75, 1")
                a("s_add_u32 s39, s39, s34")
                a(f"s_add_u32 s39, s39, {i}")
            else: a("s_add_u32 s39, s34, 8")
            a("s_lshr_b32 s50, s39, 1")
            a("s_lshl_b32 s50, s50, 10")
            a("s_and_b32 s39, s39, 1")
            a("s_lshl_b32 s39, s39, 3")
            a("s_add_u32 s50, s50, s39")
            a("s_add_u32 s50, s50, s35")
            for rb in range(2):
                a(f"buffer_load_dwordx2 {vr(RES+4*i+2*rb,2)}, v{20 if rb else 12}, s[16:19], s50 offen"); vm.op("RES")
        a("s_lshl_b32 s51, s28, 2")
        a("s_add_u32 s51, s51, s74")
        a("s_lshl_b32 s51, s51, 2")
        a("s_add_u32 s51, s51, s12")
        a("s_mul_i32 s51, s51, 36864")
        a("v_mul_u32_u24 v26, 1152, v2")
        a("v_lshl_add_u32 v26, v3, 3, v26")
        a(f"v_add_u32 v27, {16*1152}, v26")
        a("v_cmp_eq_u32 vcc, s75, v3")
        a("v_mov_b32 v31, 0x40000000")
        a("v_cndmask_b32 v31, v31, 0, vcc")
        a("v_add_u32 v28, v31, v26")
        a("v_add_u32 v29, v31, v27")
        a("v_add_u32 v30, v31, v12")
        for n in range(4, 18):
            if n + XA < 18: pend.extend(xload(n + XA))
            if n == 7:
                if not EXP & 2: a("s_barrier")
            if n == 9 and not EXP & 8: pend.extend(p6_single(17))
            if n == 14 and not EXP & 8: pend.extend([lambda i=i: res(i) for i in range(3)])
            if n == 16:
                if not EXP & 1: vm.wait("W17")
                if not EXP & 2: a("s_barrier")
            if not EXP & 1: vm.wait(f"X{n}")
            W2 = 184
            own = lambda n_: [wread(n_, f, W2 + ((n_ - 4) % 4) * 8 + f * 4) for f in range(2)]
            p6step(n, FOR, trreads(n + 1, FOR) if n < 17 else own(4) + own(5) + own(6))
        assert not pend
        prof_stamp(a, 6, 21)
        PT = 160
        snd = []
        for f in FOR:
            t0 = PT + (f - 2) * 4
            for rb in range(2):
                x = ACC + (f * 2 + rb) * 4
                for h in (0, 2): snd.append(f"v_cvt_pk_bf16_f32 v{t0+rb*2+h//2}, v{x+h}, v{x+h+1}")
            if f < 8:
                snd.append(f"s_lshl_b32 s39, s75, 1\ns_add_u32 s39, s39, {f}\ns_and_b32 s39, s39, 7\ns_lshl_b32 s39, s39, 2\ns_add_u32 s39, s39, s75")
            else: snd.append("s_add_u32 s39, s75, 32")
            snd.append(f"s_lshl_b32 s39, s39, 10\ns_add_u32 s39, s39, s51\nbuffer_store_dwordx4 {vr(t0)}, v12, s[60:63], s39 offen" + PSC)
        lg = LgTrack(a)
        for n_ in (4, 5, 6):
            for _ in range(2): lg.op(f"O{n_}")
        for n in range(4, 18):
            rd = own(n + 3) if n + 3 < 18 else []
            lg.wait(f"O{n}")
            for f in range(2):
                for rb in range(2):
                    acc = ACC + (f * 2 + rb) * 4
                    a(f"v_mfma_f32_16x16x32_bf16 {vr(acc)}, {ar(W2+((n-4)%4)*8+f*4)}, {xfrag(n, rb)}, {vr(acc)}")
                    for _ in range(3):
                        if snd: a(snd.pop(0))
                    if rd: a(rd.pop(0)); lg.op(f"O{n+3}")
        assert not snd
        for di in range(4):
            a(f"s_add_u32 s39, s75, {di}")
            a("s_and_b32 s39, s39, 3")
            a("s_lshl_b32 s35, s75, 3")
            a("s_add_u32 s39, s39, s35")
            a("s_lshl_b32 s39, s39, 10")
            a(f"s_add_u32 s{64+di}, s39, s51")
            a(f"s_add_u32 s{40+di}, s{64+di}, 4096")
        a("s_add_u32 s68, s51, 32768")
        prof_stamp(a, 7, 21)
        RC = 48; T = 116
        a("s_mov_b32 s39, 0")
        def chk(name, regs, nxt):
            a("s_waitcnt vmcnt(0)")
            a(f"v_max3_u32 v21, v{regs[0]}, v{regs[1]}, v{regs[2]}")
            for i in range(3, len(regs) - 1, 2): a(f"v_max3_u32 v21, v21, v{regs[i]}, v{regs[i+1]}")
            a(f"v_max_u32 v21, v21, v{regs[-1]}")
            a("v_cmp_eq_u32 vcc, -1, v21")
            a("s_cmp_eq_u64 vcc, 0")
            a(f"s_cbranch_scc1 {nxt}")
            a("s_add_u32 s39, s39, 1")
            a("s_cmp_lt_u32 s39, 0x4000")
            a(f"s_cbranch_scc0 {nxt}")
            a("s_sleep 1")
            a(f"s_branch {name}")
        def ld8():
            for sidx in range(4):
                a(f"buffer_load_dwordx4 {vr(RC+24+sidx*4)}, v30, s[60:63], s68 offen offset:{sidx*1024}" + PLD)
        def ld6():
            for di in range(1, 4):
                for f in range(2):
                    a(f"buffer_load_dwordx4 {vr(RC+(di-1)*8+f*4)}, v12, s[60:63], s{(40 if f else 64)+di} offen" + PLD)
        if PMODE == 0:
            a.label("L_p6_spin")
            ld6(); ld8()
            chk("L_p6_spin", list(range(RC, RC + 40)), "L_p6_go")
        else:
            a.label("L_p6_spin")
            ld8()
            chk("L_p6_spin", list(range(RC + 24, RC + 40)), "L_p6_spin2")
            a.label("L_p6_spin2")
            ld6()
            chk("L_p6_spin2", list(range(RC, RC + 24)), "L_p6_go")
        a.label("L_p6_go")
        prof_stamp(a, 8, 21)
        def unpack(dst, src, cnt):
            for i in range(cnt):
                a(f"v_lshlrev_b32 v{dst+2*i}, 16, v{src+i}")
                a(f"v_and_b32 v{dst+2*i+1}, 0xffff0000, v{src+i}")
        B8 = 88
        unpack(B8, RC + 24, 4)
        for di in range(3):
            unpack(T, RC + di * 8, 8); unpack(T + 16, RC + 28 + di * 4, 4)
            for i in range(0, 16, 2): a(pk("add", ACC + i, ACC + i, T + i))
            for i in range(0, 8, 2): a(pk("add", B8 + i, B8 + i, T + 16 + i))
        for i in range(8): a(f"v_cvt_pk_bf16_f32 v{RC+i}, v{ACC+2*i}, v{ACC+2*i+1}")
        for i in range(4): a(f"v_cvt_pk_bf16_f32 v{RC+8+i}, v{B8+2*i}, v{B8+2*i+1}")
        unpack(T, RC, 12); unpack(160, RES, 12)
        for i in range(0, 24, 2): a(pk("add", T + i, T + i, 160 + i))
        for i in range(3):
            for rb in range(2):
                o = RC + i * 4 + rb * 2
                for h in range(2): a(f"v_cvt_pk_bf16_f32 v{o+h}, v{T+i*8+rb*4+2*h}, v{T+i*8+rb*4+2*h+1}")
                if i < 2: a(f"buffer_store_dwordx2 {vr(o,2)}, v{26+rb}, s[56:59], s49 offen offset:{i*32}")
                else: a(f"buffer_store_dwordx2 {vr(o,2)}, v{28+rb}, s[56:59], s48 offen offset:256")
        if PROF: a("s_waitcnt vmcnt(0)")
        prof_stamp(a, 9, 21); prof_real(a, 11, 21)
    return early, late, main

def gen_kb():
    a = Asm()
    vm = VmTrack(a)
    common_prologue(a, 256, "L_kb_end")
    a("s_load_dwordx2 s[10:11], s[0:1], 80")
    a("s_load_dwordx4 s[76:79], s[0:1], 32")
    a("s_load_dwordx4 s[80:83], s[0:1], 48")
    a("s_load_dwordx2 s[84:85], s[0:1], 64")
    early, late, main = k5_parts(a, vm, 116)
    Z1 = k4_body(a, vm, True, hook_late=early, hook_end=late)
    assert Z1 == 116
    prof_real(a, 15, 1)
    main()
    a.label("L_kb_end")
    a("s_endpgm")
    return a.text(), dict(vgpr=256, agpr=216, grid=256, block=256, lds=160 * 1024)
```

```python
import sys
from asmlib import *
from gen_common import *
from k1 import gen_k1
import os
if os.environ.get("OLDK2"): from k2 import gen_k2
else: from k2n import gen_k2
from k36 import gen_k36
from k4n import gen_k4
from k5 import gen_k5
from kb import gen_kb
KERNELS_OLD = [("k1_kernel", gen_k1), ("k2_kernel", gen_k2), ("k3_kernel", lambda: gen_k36(3)), ("k4_kernel", gen_k4), ("k5_kernel", gen_k5), ("k6_kernel", lambda: gen_k36(6))]

import os
KERNELS = KERNELS_OLD if os.environ.get("OLD") else [("k1_kernel", gen_k1), ("k2_kernel", gen_k2), ("kb_kernel", gen_kb)]
if os.environ.get("NK"): KERNELS = KERNELS[:int(os.environ["NK"])]
def main(out):
    hdr = open("sequential_preLN__mha_block__mixer_gmlp__prompt.s.ref").read().split("; Override launch")[0]
    txt = hdr
    bodies = []
    for ki, (name, fn) in enumerate(KERNELS):
        PROF_K[0] = {'k1_kernel': 0, 'k2_kernel': 1, 'k3_kernel': 2, 'k4_kernel': 3, 'kb_kernel': 3, 'k5_kernel': 4, 'k6_kernel': 5}[name]
        body, info = fn()
        bodies.append((name, body, info))
        txt += f"; @launch kernel={name} grid=({info['grid']},1,1) block=({info['block']},1,1) lds={info['lds']}\n"
    txt += '.amdgcn_target "amdgcn-amd-amdhsa--gfx950"\n.text\n'
    for name, body, info in bodies:
        txt += kernel_header(name) + body
    txt += '.section .rodata,"a"\n'
    for name, body, info in bodies:
        txt += kernel_desc(name, info["vgpr"], info.get("agpr", 0))
    open(out, "w").write(txt)

if __name__ == "__main__":
    main(sys.argv[1] if len(sys.argv) > 1 else "sequential_preLN__mha_block__mixer_gmlp__prompt.s")
```

```python
from asmlib import *
from gen_common import *

import os
DEBUG = bool(os.environ.get('K2DEBUG'))
PREF = False
def gen_k2():
    a = Asm()
    KP = 4160; ONES = 18 * KP; VB = 83296; VP = 4112
    LDS = 157440
    Q1 = 16; Q2 = 20
    KA = [24, 32]; KB = [28, 36]
    VF = [40, 48]
    SB_ = [64, 80]
    P = 56
    O = 96
    RP = 120
    a(f"s_cmp_ge_u32 s2, 256")
    a(f"s_cbranch_scc1 L_k2_end")
    a("s_load_dwordx2 s[8:9], s[0:1], 80")
    a("s_load_dwordx2 s[60:61], s[0:1], 16")
    a("s_load_dwordx4 s[64:67], s[0:1], 32")
    a("s_load_dwordx2 s[62:63], s[0:1], 56")
    a("v_lshrrev_b32 v1, 6, v0")
    a("s_nop 0")
    a("v_readfirstlane_b32 s12, v1")
    a("v_and_b32 v1, 63, v0")
    a("s_and_b32 s13, s2, 7")
    a("s_lshr_b32 s14, s2, 3")
    a("s_lshl_b32 s10, s13, 2")
    a("s_and_b32 s15, s14, 3")
    a("s_add_u32 s10, s10, s15")
    a("s_lshr_b32 s11, s14, 2")
    a("s_mul_i32 s28, s10, 18")
    a("v_lshlrev_b32 v2, 4, v1")
    a("s_waitcnt lgkmcnt(0)")
    srd(a, 16, 8, 9, 1728 * 4096, off_imm=QKVT_OFF)
    srd(a, 24, 8, 9, 2048 * 1152, off_imm=O_OFF)
    prof_init(a); prof_real(a, 5, 116); prof_stamp(a, 0, 116)
    a("s_mul_i32 s29, s12, 9")
    for ch in range(2):
        for i in range(9):
            a(f"s_add_u32 s30, s29, {i}")
            a("s_lshr_b32 s31, s30, 1")
            a("s_and_b32 s30, s30, 1")
            a("s_lshl_b32 s30, s30, 10")
            a(f"s_add_u32 s30, s30, {ch*2048}")
            a(f"s_mul_i32 s32, s31, {KP}")
            a(f"s_mul_i32 s33, s31, {VP}")
            a(f"s_add_u32 s33, s33, {VB - 18*VP}")
            a("s_add_u32 s34, s31, 558")
            a("s_cmp_lt_u32 s31, 18")
            a("s_cselect_b32 s32, s32, s33")
            a("s_cselect_b32 s31, s31, s34")
            a("s_add_u32 m0, s32, s30")
            a("s_add_u32 s31, s31, s28")
            a("s_add_u32 s31, s31, 576")
            a("s_lshl_b32 s31, s31, 12")
            a("s_add_u32 s31, s31, s30")
            a("buffer_load_dwordx4 v2, s[16:19], s31 offen lds")
    a("v_and_b32 v3, 31, v1")
    a("v_lshrrev_b32 v4, 5, v1")
    a("s_lshl_b32 s30, s11, 8")
    a("s_lshl_b32 s31, s12, 5")
    a("s_add_u32 s30, s30, s31")
    a("v_add_u32 v5, s30, v3")
    a("v_lshlrev_b32 v6, 1, v5")
    a("v_lshl_add_u32 v7, v4, 15, v6")
    a("s_lshl_b32 s31, s28, 12")
    for j in range(8):
        a(f"s_add_u32 s32, s31, {j*4096}")
        a(f"buffer_load_ushort v{(Q1 if (j&1)==0 else SB_[0])+j//2}, v7, s[16:19], s32 offen")
    for j in range(2):
        a(f"s_add_u32 s32, s31, {(16+j)*4096}")
        a(f"buffer_load_ushort v{Q2 if j==0 else SB_[0]+4}, v6, s[16:19], s32 offen")
    PS = 124; PO = 140
    a("v_and_b32 v120, 15, v1")
    a("v_lshrrev_b32 v121, 4, v1")
    a("v_lshlrev_b32 v122, 12, v120")
    a("v_lshl_add_u32 v122, v121, 3, v122")
    a(f"v_mul_u32_u24 v123, {4*1152}, v121")
    a("v_lshl_add_u32 v123, v120, 1, v123")
    a("s_lshl_b32 s76, s2, 3")
    a("s_add_u32 s76, s76, s12")
    a("s_lshr_b32 s77, s76, 5")
    a("s_lshl_b32 s77, s77, 17")
    a("s_and_b32 s78, s76, 31")
    a("s_lshl_b32 s78, s78, 7")
    a("s_add_u32 s77, s77, s78")
    a("s_add_u32 s78, s77, 65536")
    srd(a, 48, 66, 67, 2048 * 4096)
    side = []
    for rb in range(2):
        for kk in range(2):
            side.append([f"buffer_load_dwordx2 {vr(PS+(kk*2+rb)*4+h*2,2)}, v122, s[48:51], s{77+rb} offen offset:{kk*64+h*32}" for h in range(2)])
    srd(a, 80, 62, 63, 2304 * 1152)
    def wo_loads(sf, dst, so):
        a(f"s_mul_i32 s84, s{sf}, 7282")
        a("s_lshr_b32 s84, s84, 16")
        a("s_mul_i32 s85, s84, 9")
        a(f"s_sub_u32 s85, s{sf}, s85")
        a("s_mul_i32 s86, s84, 3641")
        a("s_lshr_b32 s86, s86, 16")
        a("s_mul_i32 s87, s86, 18")
        a("s_sub_u32 s84, s84, s87")
        a("s_and_b32 s87, s86, 3")
        a("s_mul_i32 s87, s87, 288")
        a("s_lshl_b32 s85, s85, 5")
        a("s_add_u32 s85, s85, s87")
        a("s_lshr_b32 s86, s86, 2")
        a("s_mul_i32 s86, s86, 576")
        a("s_lshr_b32 s87, s84, 2")
        a("s_mul_i32 s87, s87, 144")
        a("s_and_b32 s70, s84, 3")
        a("s_lshl_b32 s71, s70, 5")
        a("s_add_u32 s87, s87, s71")
        a("s_mul_i32 s70, s70, 288")
        a("s_add_u32 s70, s70, 128")
        a("s_cmp_lt_u32 s84, 16")
        a("s_cselect_b32 s87, s87, s70")
        a("s_cselect_b32 s71, 16, 144")
        a("s_mul_i32 s71, s71, 1152")
        a("s_add_u32 s86, s86, s87")
        a("s_mul_i32 s86, s86, 1152")
        a(f"s_add_u32 s{so}, s86, s85")
        a(f"s_add_u32 s{so+1}, s{so}, s71")
        return [[f"buffer_load_ushort v{dst+h*4+jj}, v123, s[80:83], s{so+h} offen offset:{jj*1152}" for jj in range(4)] for h in range(2)]
    assert all((f * 7282) >> 16 == f // 9 for f in range(2816)) and all((f * 3641) >> 16 == f // 18 for f in range(320))
    side += wo_loads(76, PO, 52)
    a("s_mul_i32 s79, s2, 3")
    a("s_add_u32 s79, s79, s12")
    a("s_add_u32 s79, s79, 2048")
    a("s_cmp_lt_u32 s12, 3")
    a("s_cselect_b32 s79, s79, 2700")
    for h, l_ in enumerate(wo_loads(79, PO + 8, 54)):
        side.append(["s_cmp_ge_u32 s79, 2592", f"s_cbranch_scc1 L_k2_nof{h}"] + l_ + [f"L_k2_nof{h}:"])
    a("s_cmp_lt_u32 s79, 2592")
    a("s_cselect_b32 s79, s79, 4000")
    a("s_mul_i32 s84, s2, 3")
    a("s_add_u32 s84, s84, s12")
    a("s_sub_u32 s84, s84, 3")
    a("s_sub_u32 s85, s12, 3")
    a("s_cmp_lt_u32 s85, 3")
    a("s_cselect_b32 s84, s84, 700")
    a("s_add_u32 s85, s84, 2592")
    a("s_cmp_lt_u32 s84, 648")
    a("s_cselect_b32 s79, s85, s79")
    a("s_cselect_b32 s35, 1, 0")
    a("s_mul_i32 s85, s84, 1821")
    a("s_lshr_b32 s85, s85, 16")
    assert all((f * 1821) >> 16 == f // 36 for f in range(800))
    a("s_mul_i32 s86, s85, 36")
    a("s_sub_u32 s84, s84, s86")
    a("s_lshl_b32 s84, s84, 5")
    a("s_sub_u32 s87, s85, 16")
    a("s_mul_i32 s87, s87, 288")
    a("s_add_u32 s87, s87, 16")
    a("s_cmp_lt_u32 s85, 16")
    a("s_cselect_b32 s86, s86, s87")
    a("s_cselect_b32 s70, 18, 144")
    a("s_cselect_b32 s71, 4, 72")
    for q in range(4):
        a(f"s_cselect_b32 s87, {(0, 2, 8, 10)[q]}, {18*q}")
        a("s_add_u32 s87, s87, s86") if False else None
        a(f"s_mov_b32 s{20+q}, s87")
    for q in range(4):
        a(f"s_add_u32 s{20+q}, s{20+q}, s86")
        a(f"s_mul_i32 s{20+q}, s{20+q}, 1152")
        a(f"s_add_u32 s{20+q}, s{20+q}, s84")
    a("v_lshrrev_b32 v118, 1, v121")
    a("v_mul_u32_u24 v118, s70, v118")
    a("v_and_b32 v121, 1, v121")
    a("v_mul_u32_u24 v121, s71, v121")
    a("v_add_u32 v118, v118, v121")
    a("v_mul_u32_u24 v118, 1152, v118")
    a("v_lshl_add_u32 v121, v120, 1, v118")
    srd(a, 4, 60, 61, 576 * 1152)
    for h in range(2):
        side.append(["s_cmp_eq_u32 s35, 0", f"s_cbranch_scc1 L_k2_nog{h}"] +
                    [f"buffer_load_ushort v{PO+8+h*4+jj}, v121, s[4:7], s{20+h*2+(jj>>1)} offen offset:{(jj&1)*1152}" for jj in range(4)] + [f"L_k2_nog{h}:"])
    a("v_mov_b32 v8, 0x3f803f80")
    for j in range(9, 12):
        a(f"v_mov_b32 v{j}, v8")
    a("v_lshlrev_b32 v12, 4, v0")
    a(f"v_add_u32 v12, {ONES}, v12")
    a(f"ds_write_b128 v12, v[8:11]")
    a("v_and_b32 v12, 7, v0")
    a("v_lshlrev_b32 v12, 4, v12")
    a(f"v_add_u32 v12, {ONES + 8192}, v12")
    a("ds_write_b128 v12, v[8:11]")
    a("v_bfe_u32 v8, v1, 2, 2")
    a("v_and_b32 v9, 1, v1")
    a("v_bfe_u32 v10, v1, 1, 1")
    a("v_lshl_or_b32 v9, v9, 1, v10")
    a("v_bfe_u32 v10, v1, 4, 1")
    a("v_lshl_add_u32 v9, v10, 2, v9")
    a("v_lshlrev_b32 v9, 3, v9")
    a("v_lshl_add_u32 v10, v4, 3, v8")
    a(f"v_mul_u32_u24 v10, {KP}, v10")
    a("v_add_u32 v112, v10, v9")
    a("v_add_u32 v10, 16, v8")
    a(f"v_mul_u32_u24 v10, {KP}, v10")
    a("v_add_u32 v113, v10, v9")
    a("v_mov_b32 v8, 4")
    a("v_subrev_u32 v9, 20, v3")
    a("v_cmp_gt_u32 vcc, 8, v9")
    a("s_nop 1")
    a("v_cndmask_b32 v8, v8, 0, vcc")
    a("v_cmp_gt_u32 vcc, 18, v3")
    a("s_nop 1")
    a("v_cndmask_b32 v8, v8, v3, vcc")
    a(f"v_mul_u32_u24 v8, {VP}, v8")
    a(f"v_add_u32 v8, {VB}, v8")
    a(f"v_mov_b32 v9, {ONES}")
    a("v_cmp_eq_u32 vcc, 18, v3")
    a("s_nop 1")
    a("v_cndmask_b32 v8, v8, v9, vcc")
    a("v_lshl_add_u32 v114, v4, 4, v8")
    a("v_xor_b32 v115, 32, v1")
    a("v_lshlrev_b32 v115, 2, v115")
    for b in range(2):
        a(f"v_mov_b32 v{KB[b]+2}, 0")
        a(f"v_mov_b32 v{KB[b]+3}, 0")
    a(f"v_mov_b32 v{Q2+2}, 0")
    a(f"v_mov_b32 v{Q2+3}, 0")
    a("v_cmp_eq_u32 s[40:41], 0, v4")
    a("s_waitcnt vmcnt(0)")
    for j in range(5):
        a(f"v_lshl_or_b32 v{Q1+j}, v{SB_[0]+j}, 16, v{Q1+j}")
    a(f"v_cndmask_b32 v{Q2}, 0, v{Q2}, s[40:41]")
    a("s_waitcnt lgkmcnt(0)")
    a("s_barrier")
    prof_stamp(a, 1, 116)
    if PREF:
        a("s_lshl_b32 s68, s2, 9")
        a("v_add_u32 v117, s68, v0")
        a("v_lshlrev_b32 v117, 6, v117")
        for (lo, size) in ((60, 576 * 1152),):
            srd(a, 72, lo, lo + 1, size)
            a("buffer_load_dword v118, v117, s[72:75], 0 offen")
    a("s_lshl_b32 s68, s2, 9")
    a("v_add_u32 v117, s68, v0")
    a("v_lshlrev_b32 v117, 2, v117")
    a("v_mov_b32 v119, -1")
    srd(a, 72, 8, 9, SENT_LEN, off_imm=P_OFF)
    a("s_mov_b32 s69, 0")
    a("s_mov_b32 s36, 1")
    a("s_mov_b32 s37, 0")
    a.label("L_k2_maxpass")
    a(f"v_mov_b32 v{Q2+1}, 0")
    a("v_mov_b32 v8, 0xff800000")
    a("v_mov_b32 v13, v112")
    a("v_mov_b32 v14, v113")
    a("s_mov_b32 s38, 0")
    a.label("L_k2_maxloop")
    a(f"ds_read_b64_tr_b16 v[{KA[0]}:{KA[0]+1}], v13")
    a(f"ds_read_b64_tr_b16 v[{KA[0]+2}:{KA[0]+3}], v13 offset:{4*KP}")
    a(f"ds_read_b64_tr_b16 v[{KB[0]}:{KB[0]+1}], v14")
    a("v_add_u32 v13, 64, v13")
    a("v_add_u32 v14, 64, v14")
    a("s_waitcnt lgkmcnt(0)")
    a(f"v_mfma_f32_32x32x16_bf16 {vr(SB_[0],16)}, {vr(KA[0])}, {vr(Q1)}, 0")
    a(f"v_mfma_f32_32x32x16_bf16 {vr(SB_[0],16)}, {vr(KB[0])}, {vr(Q2)}, {vr(SB_[0],16)}")
    a("s_nop 15")
    a("s_nop 3")
    for i in range(8):
        a(f"v_max3_f32 v8, v8, v{SB_[0]+2*i}, v{SB_[0]+2*i+1}")
    a("s_add_u32 s38, s38, 1")
    a("s_cmp_lt_u32 s38, s36")
    a("s_cbranch_scc1 L_k2_maxloop")
    if DEBUG:
        srd(a, 48, 8, 9, 1 << 20, off_imm=48 << 20)
        a("v_lshlrev_b32 v10, 2, v0")
        a("s_mul_i32 s52, s2, 0x10000")
        for i in range(16):
            a(f"buffer_store_dword v{SB_[0]+i}, v10, s[48:51], s52 offen offset:{i*2048 % 4096}") if i < 2 else None
        for i in range(16):
            a(f"s_add_u32 s53, s52, {i*2048}")
            a(f"buffer_store_dword v{SB_[0]+i}, v10, s[48:51], s53 offen")
        for i in range(4):
            a(f"s_add_u32 s53, s52, {(16+i)*2048}")
            a(f"buffer_store_dword v{KA[0]+i}, v10, s[48:51], s53 offen")
            a(f"s_add_u32 s53, s52, {(20+i)*2048}")
            a(f"buffer_store_dword v{Q1+i}, v10, s[48:51], s53 offen")
            a(f"s_add_u32 s53, s52, {(24+i)*2048}")
            a(f"buffer_store_dword v{KB[0]+i}, v10, s[48:51], s53 offen")
            a(f"s_add_u32 s53, s52, {(28+i)*2048}")
            a(f"buffer_store_dword v{Q2+i}, v10, s[48:51], s53 offen")
    a("ds_bpermute_b32 v9, v115, v8")
    a("s_waitcnt lgkmcnt(0)")
    a("v_max_f32 v8, v8, v9")
    a("v_sub_f32 v8, 0, v8")
    a("v_cvt_pk_bf16_f32 v9, v8, v8")
    a("v_lshlrev_b32 v9, 16, v9")
    a("v_sub_f32 v10, v8, v9")
    a("v_cvt_pk_bf16_f32 v9, v9, v10")
    a(f"v_cndmask_b32 v{Q2+1}, 0, v9, s[40:41]")
    a("v_mov_b32 v13, v112")
    a("v_mov_b32 v14, v113")
    a("v_mov_b32 v15, v114")
    def kreads(b, toff):
        a(f"ds_read_b64_tr_b16 v[{KA[b]}:{KA[b]+1}], v13 offset:{toff*64}")
        a(f"ds_read_b64_tr_b16 v[{KA[b]+2}:{KA[b]+3}], v13 offset:{4*KP + toff*64}")
        a(f"ds_read_b64_tr_b16 v[{KB[b]}:{KB[b]+1}], v14 offset:{toff*64}")
    def vreads(b, toff):
        a(f"ds_read_b128 {vr(VF[b])}, v15 offset:{toff*64}")
        a(f"ds_read_b128 {vr(VF[b]+4)}, v15 offset:{toff*64+32}")
    kreads(0, 0)
    for i in range(16):
        a(f"v_mov_b32 v{O+i}, 0")
    for i in range(8):
        a(f"v_mov_b32 v{P+i}, 0")
        a(f"v_mov_b32 v{VF[1]+i}, 0")
    a("s_waitcnt lgkmcnt(0)")
    a(f"v_mfma_f32_32x32x16_bf16 {vr(SB_[0],16)}, {vr(KA[0])}, {vr(Q1)}, 0")
    a(f"v_mfma_f32_32x32x16_bf16 {vr(SB_[0],16)}, {vr(KB[0])}, {vr(Q2)}, {vr(SB_[0],16)}")
    kreads(1, 1)
    vreads(0, 0)
    a("s_nop 15")
    prof_stamp(a, 2, 116)
    a("s_mov_b32 s38, 0")
    NS = len(side); UNR = NS + 5
    for lp in range(UNR + 1):
        lend = 32
        if lp == UNR: a.label("L_k2_loop")
        for par in range(2):
            Sx = SB_[par]; N = SB_[1 - par]
            kb = 1 - par
            a("s_waitcnt lgkmcnt(2)")
            a(f"v_mfma_f32_32x32x16_bf16 {vr(N,16)}, {vr(KA[kb])}, {vr(Q1)}, 0")
            a(f"v_mfma_f32_32x32x16_bf16 {vr(O,16)}, {vr(VF[1-par]+4)}, {vr(P+4)}, {vr(O,16)}")
            for i in range(0, 4):
                a(f"v_exp_f32 v{Sx+i}, v{Sx+i}")
            a(f"v_mfma_f32_32x32x16_bf16 {vr(N,16)}, {vr(KB[kb])}, {vr(Q2)}, {vr(N,16)}")
            kreads(par, par + 2)
            vreads(1 - par, par + 1)
            for i in range(4, 8):
                a(f"v_exp_f32 v{Sx+i}, v{Sx+i}")
            a(f"v_exp_f32 v{Sx+8}, v{Sx+8}")
            for i in range(4):
                a(f"v_cvt_pk_bf16_f32 v{P+i}, v{Sx+2*i}, v{Sx+2*i+1}")
            a(f"v_exp_f32 v{Sx+9}, v{Sx+9}")
            a("s_waitcnt lgkmcnt(5)")
            a(f"v_mfma_f32_32x32x16_bf16 {vr(O,16)}, {vr(VF[par])}, {vr(P)}, {vr(O,16)}")
            for i in range(10, 16):
                a(f"v_exp_f32 v{Sx+i}, v{Sx+i}")
            if par == 1:
                a("v_add_u32 v13, 128, v13")
                a("v_add_u32 v14, 128, v14")
                a("v_add_u32 v15, 128, v15")
                a("s_add_u32 s38, s38, 1")
                a(f"s_cmp_lt_u32 s38, {lend}")
            else:
                a("buffer_store_dword v119, v117, s[72:75], s69 offen sc0 sc1")
                a("s_add_u32 s69, s69, 0x80000")
                if lp < NS:
                    for l_ in side[lp]:
                        if l_.endswith(":"): a.label(l_[:-1])
                        else: a(l_)
            for i in range(4, 8):
                a(f"v_cvt_pk_bf16_f32 v{P+i}, v{Sx+2*i}, v{Sx+2*i+1}")
        if lp == UNR: a("s_cbranch_scc1 L_k2_loop")
        if lp == UNR - 1:
            a("s_waitcnt vmcnt(4)")
            srd(a, 56, 8, 9, 2048 * 4096, off_imm=WSPP_OFF)
            a("s_lshl_b32 s84, s76, 12")
            for i in range(4):
                a(f"buffer_store_dwordx4 {vr(PS+i*4)}, v2, s[56:59], s84 offen offset:{i*1024} sc0 sc1")
            srd(a, 56, 8, 9, 3240 * 1024, off_imm=WOP_OFF)
            for f2, sf in enumerate((76, 79)):
                for j in range(4):
                    a(f"v_lshl_or_b32 v{156+f2*4+j}, v{PO+f2*8+2*j+1}, 16, v{PO+f2*8+2*j}")
                a(f"s_lshl_b32 s84, s{sf}, 10")
                a(f"buffer_store_dwordx4 {vr(156+f2*4)}, v2, s[56:59], s84 offen sc0 sc1")
    a("s_nop 1")
    a(f"v_mfma_f32_32x32x16_bf16 {vr(O,16)}, {vr(VF[1]+4)}, {vr(P+4)}, {vr(O,16)}")
    a("s_waitcnt lgkmcnt(0)")
    a("s_nop 15")
    a("s_nop 3")
    prof_stamp(a, 3, 116)
    a(f"ds_bpermute_b32 v9, v115, v{O+10}")
    a("s_waitcnt lgkmcnt(0)")
    a(f"v_cndmask_b32 v9, v9, v{O+10}, s[40:41]")
    a("s_cmp_lg_u32 s37, 0")
    a("s_cbranch_scc1 L_k2_store")
    a(f"v_max3_f32 v10, abs(v{O}), abs(v{O+1}), abs(v{O+2})")
    for i in range(3, 15, 2):
        a(f"v_max3_f32 v10, v10, abs(v{O+i}), abs(v{O+i+1})")
    a(f"v_max_f32 v10, v10, abs(v{O+15})")
    a(f"v_mov_b32 v11, {f32bits(2.0**60):#x}")
    a(f"v_mov_b32 v12, {f32bits(2.0**120):#x}")
    a("v_cmp_lt_f32 s[42:43], v9, v11")
    a("v_cmp_lt_f32 s[44:45], v10, v12")
    for i in range(16):
        a(f"v_cmp_o_f32 vcc, v{O+i}, v{O+i}")
        a("s_and_b64 s[42:43], s[42:43], vcc")
    a("s_and_b64 s[42:43], s[42:43], s[44:45]")
    a("s_cmp_eq_u64 s[42:43], exec")
    a("s_cbranch_scc1 L_k2_store")
    a("s_mov_b32 s37, 1")
    a("s_mov_b32 s36, 64")
    a("s_branch L_k2_maxpass")
    a.label("L_k2_store")
    a("v_rcp_f32 v9, v9")
    a("s_nop 0")
    for i in range(10):
        a(f"v_mul_f32 v{O+i}, v{O+i}, v9")
    for i in range(5):
        a(f"v_cvt_pk_bf16_f32 v{P+i}, v{O+2*i}, v{O+2*i+1}")
    a("v_lshrrev_b32 v10, 4, v5")
    a("v_mul_u32_u24 v10, 18432, v10")
    a("v_and_b32 v11, 15, v5")
    a("v_lshl_add_u32 v10, v11, 4, v10")
    a("v_lshl_add_u32 v11, v4, 8, v10")
    a("s_lshl_b32 s31, s10, 9")
    a(f"buffer_store_dwordx4 {vr(P)}, v11, s[24:27], s31 offen")
    a("s_lshr_b32 s31, s10, 2")
    a("s_lshl_b32 s31, s31, 8")
    a("s_and_b32 s32, s10, 3")
    a("s_lshl_b32 s32, s32, 2")
    a("s_add_u32 s31, s31, s32")
    a("s_add_u32 s31, s31, 16384")
    a("v_mov_b32 v11, 0x7f000000")
    a("v_cndmask_b32 v10, v11, v10, s[40:41]")
    a(f"buffer_store_dword v{P+4}, v10, s[24:27], s31 offen")
    if PROF: a("s_waitcnt vmcnt(0)")
    prof_stamp(a, 4, 116); prof_real(a, 6, 116)
    a.label("L_k2_end")
    a("s_endpgm")
    return a.text(), dict(vgpr=164, agpr=0, grid=256, block=512, lds=LDS)
```

```python
from asmlib import *
from gen_common import *
BUD = float(os.environ.get("K4BUD", "8"))
VPACE = int(os.environ.get("K4VP", "3"))
DLA = int(os.environ.get("K4D", "8"))
NPRO = int(os.environ.get("K4PRO", "7"))
class LgTrack:
    def __init__(self, a): self.a = a; self.ops = []; self.done = -1
    def op(self, tag): self.ops.append(tag)
    def wait(self, tag):
        idx = max(i for i, t in enumerate(self.ops) if t == tag)
        if idx <= self.done: return
        n = min(len(self.ops) - 1 - idx, 15)
        self.a(f"s_waitcnt lgkmcnt({n})")
        self.done = len(self.ops) - 1 - n
    def wait_all(self):
        self.a("s_waitcnt lgkmcnt(0)"); self.done = len(self.ops) - 1
    def completed(self, tag):
        return tag in self.ops[:self.done + 1]

def p3_body(a, vm, lg, vq):
    PB = 71680; OF = 0; WFA = 144; NBUF = 18; ACC = 32; RES = 52; T = 64; PV = 1
    a("s_and_b32 s71, s29, 7")
    a("s_lshr_b32 s72, s71, 1")
    a("s_mul_i32 s73, s72, 9")
    a("s_and_b32 s74, s71, 1")
    a("s_mul_i32 s75, s74, 5")
    a("s_add_u32 s73, s73, s75")
    a("s_lshr_b32 s75, s29, 3")
    a("s_lshl_b32 s75, s75, 2")
    a("s_lshl_b32 s71, s28, 3")
    a("s_add_u32 s71, s71, s75")
    a("s_add_u32 s71, s71, s12")
    a("s_mul_i32 s68, s12, 36")
    a("s_add_u32 s68, s68, s73")
    a("s_add_u32 s68, s68, 2592")
    a("s_lshl_b32 s68, s68, 10")
    a("s_mul_i32 s69, s12, 5120")
    a(f"s_add_u32 s69, s69, {PB}")
    a("s_mul_i32 s70, s71, 18432")
    a("v_add_u32 v8, 4096, v4")
    srd(a, 48, 10, 11, 128 * 18 * 1024, off_imm=O_OFF)
    srd(a, 56, 10, 11, 3240 * 1024, off_imm=WOP_OFF)
    pq = []
    def wround(t):
        def f(i):
            if t == 4:
                a("s_cmp_ge_u32 s12, 2")
                a(f"s_cbranch_scc1 L_p3_now{i}")
            if i % 4 == 0:
                a(f"s_add_u32 m0, s69, {t*20480 + i*1024}")
                a(f"s_add_u32 s35, s68, {t*4*36*1024}")
            if i < 4: a(f"buffer_load_dwordx4 v4, s[56:59], s35 offen offset:{i*1024} lds")
            else: a(f"buffer_load_dwordx4 v8, s[56:59], s35 offen lds")
            if t < 4: vm.op(f"PW{t}")
            else: a.label(f"L_p3_now{i}")
        return [(f"PW{t}", lambda i=i: f(i)) for i in range(5)]
    def oload(ks):
        if ks % 4 == 0: a(f"s_add_u32 s36, s70, {ks*1024}")
        a(f"buffer_load_dwordx4 {ar(OF+ks*4)}, v4, s[48:51], s36 offen offset:{(ks%4)*1024}"); vm.op(f"PO{ks}")
    for t in range(5):
        pq += wround(t)
        pq += [(f"PO{ks}", lambda ks=ks: oload(ks)) for ks in range(4 * t, min(4 * t + 4, 18))]
    for _ in range(int(os.environ.get("P3PRO", "18"))): pq.pop(0)[1]()
    def pneed(tag):
        while any(t_ == tag for t_, _ in pq): pq.pop(0)[1]()
        vm.wait(tag)
    srd(a, 60, 86, 87, 2048 * 1152)
    a("v_mul_u32_u24 v9, 1152, v2")
    a("v_lshl_add_u32 v9, v3, 3, v9")
    a(f"s_mul_i32 s38, s71, {16*1152}")
    a("s_lshl_b32 s37, s73, 5")
    a("s_add_u32 s38, s38, s37")
    def res(i):
        a(f"buffer_load_dwordx2 {vr(RES+2*i,2)}, v9, s[60:63], s38 offen offset:{i*32}"); vm.op("PR")
    pq += [("PR", lambda i=i: res(i)) for i in range(5)]
    srd(a, 24, 10, 11, 131072, off_imm=HS_OFF)
    a("v_lshlrev_b32 v10, 4, v2")
    a("v_lshl_add_u32 v10, v3, 28, v10")
    D = 8
    def read(u):
        ks, i = divmod(u, 5)
        if u % 20 == 0:
            pneed(f"PW{ks//4}" if ks < 16 else "PO16")
            a("s_barrier")
        pos = PB + ks * 5120 + i * 1024
        a(f"ds_read_b128 {ar(WFA + (u % NBUF) * 4)}, v{4 + (pos >> 16)} offset:{pos & 0xffff}")
        lg.op(f"P{u}")
    for u in range(D): read(u)
    prof_stamp(a, 1, PV)
    for u in range(90):
        ks, i = divmod(u, 5)
        if i == 0: pneed(f"PO{ks}")
        if u % 2 == 0: lg.wait(f"P{min(u+1, 89)}")
        a(f"v_mfma_f32_16x16x32_bf16 {vr(ACC+i*4)}, {ar(WFA + (u % NBUF) * 4)}, {ar(OF+ks*4)}, {vr(ACC+i*4) if ks else 0}")
        if u + D < 90: read(u + D)
        if pq: pq.pop(0)[1]()
    assert not pq
    prof_stamp(a, 2, PV)
    vm.wait("PR")
    S_ = 12
    for j in range(4): a(f"v_mov_b32 v{S_+j}, 0")
    for i in range(5):
        if i == 4:
            a("s_cmp_eq_u32 s74, 1")
            a("s_cbranch_scc1 L_p3_no5")
        x = ACC + i * 4; t = T + i * 8
        for h in range(2): a(f"v_cvt_pk_bf16_f32 v{t+h}, v{x+2*h}, v{x+2*h+1}")
        for h in range(2):
            a(f"v_lshlrev_b32 v{x+2*h}, 16, v{t+h}")
            a(f"v_and_b32 v{x+2*h+1}, 0xffff0000, v{t+h}")
            a(f"v_lshlrev_b32 v{t+2+2*h}, 16, v{RES+2*i+h}")
            a(f"v_and_b32 v{t+3+2*h}, 0xffff0000, v{RES+2*i+h}")
        for h in range(2): a(pk("add", x + 2 * h, x + 2 * h, t + 2 + 2 * h))
        for h in range(2): a(f"v_cvt_pk_bf16_f32 v{t+h}, v{x+2*h}, v{x+2*h+1}")
        a(f"s_add_u32 s36, s73, {i}")
        a("s_lshr_b32 s37, s36, 1")
        a("s_lshl_b32 s37, s37, 10")
        a("s_and_b32 s36, s36, 1")
        a("s_lshl_b32 s36, s36, 3")
        a("s_add_u32 s36, s36, s37")
        a("s_add_u32 s36, s36, s70")
        a(f"buffer_store_dwordx2 {vr(t,2)}, v4, s[16:19], s36 offen sc0 sc1")
        if i < 4: vm.op("PH")
    a.label("L_p3_no5")
    vm.op("PH")
    nw = len(vq)
    while vq: vq.pop(0)[1]()
    for i in range(5):
        if i == 4:
            a("s_cmp_eq_u32 s74, 1")
            a("s_cbranch_scc1 L_p3_no5b")
        x = ACC + i * 4; t = T + i * 8
        for h in range(2):
            a(f"v_lshlrev_b32 v{x+2*h}, 16, v{t+h}")
            a(f"v_and_b32 v{x+2*h+1}, 0xffff0000, v{t+h}")
        for h in range(2):
            a(pk("add", S_, S_, x + 2 * h))
            a(pk("fma", S_ + 2, x + 2 * h, x + 2 * h, S_ + 2))
    a.label("L_p3_no5b")
    a(f"v_add_f32 v{S_}, v{S_}, v{S_+1}")
    a(f"v_add_f32 v{S_+1}, v{S_+2}, v{S_+3}")
    xlane_sum_g(a, S_, 16); xlane_sum_g(a, S_ + 1, 16)
    a("s_lshl_b32 s36, s71, 10")
    a("s_lshl_b32 s37, s72, 8")
    a("s_add_u32 s36, s36, s37")
    a("s_lshl_b32 s37, s74, 3")
    a("s_add_u32 s36, s36, s37")
    vm.wait("PH")
    a(f"buffer_store_dwordx2 {vr(S_,2)}, v10, s[24:27], s36 offen sc0 sc1"); vm.op("PS")
    prof_stamp(a, 3, PV)

def k4_body(a, vm, fused, hook_late=None, hook_end=None):
    R = 144; NBUF = 18
    ACCB = [32, 56]; HOLD2 = 80; Z1P = 116
    NM2 = 152; C02 = 160; C12 = 168; RI2 = 176
    NM1 = 184; C01 = 186; C11 = 188; RI1 = 190
    CS2 = 192; CS1 = 204; SS = 240; QQ = 248
    VA = 201; VB = 202; VC = 203; PV = 1
    T0 = 8
    WFA = 144
    lg = LgTrack(a)
    if not fused: a("s_load_dwordx4 s[8:11], s[0:1], 72")
    a("s_and_b32 s13, s2, 7")
    a("s_lshr_b32 s14, s2, 3")
    a("s_and_b32 s15, s13, 1")
    a("s_lshl_b32 s15, s15, 3")
    a("s_and_b32 s28, s14, 7")
    a("s_add_u32 s28, s28, s15")
    a("s_lshr_b32 s15, s13, 1")
    a("s_lshl_b32 s15, s15, 2")
    a("s_lshr_b32 s29, s14, 3")
    a("s_add_u32 s29, s29, s15")
    a("v_lshlrev_b32 v4, 4, v1")
    a("v_add_u32 v5, 0x10000, v4")
    a("v_add_u32 v6, 0x20000, v4")
    a("v_add_u32 v7, 18432, v4")
    a("s_mul_i32 s30, s29, 288")
    a("s_mul_i32 s31, s29, 331776")
    a("s_mul_i32 s64, s12, 3072")
    a("s_mul_i32 s65, s12, 9216")
    a("s_add_u32 s66, s31, s64")
    a("s_add_u32 s67, s31, s65")
    a("s_lshl_b32 s33, s28, 2")
    a("s_add_u32 s33, s33, s12")
    a(f"s_mul_i32 s34, s33, {2*18*1024}")
    a("s_waitcnt lgkmcnt(0)")
    srd(a, 16, 10, 11, 128 * 18 * 1024, off_imm=H_OFF)
    srd(a, 20, 10, 11, 16 * 324 * 1024, off_imm=WP_OFF)
    PROF_K[0] = 2
    prof_init(a, 10); prof_real(a, 5, PV); prof_stamp(a, 0, PV)
    chunks = [(c, c + 12) for c in range(0, 72, 12)] + [(c, c + 36) for c in range(72, 324, 36)]
    chunk_of = {}
    for ci, (c0, c1) in enumerate(chunks):
        for u in range(c0, c1): chunk_of[u] = ci
    def dma(ci):
        c0, c1 = chunks[ci]; n = (c1 - c0) // 4
        def one(i):
            G = int(os.environ.get("K4G", "4"))
            if i % G == 0:
                a(f"s_add_u32 m0, s{64 if n == 3 else 65}, {((c0 % R) + i) * 1024}")
                a(f"s_add_u32 s35, s{66 if n == 3 else 67}, {(c0 + i) * 1024}")
            a(f"buffer_load_dwordx4 v4, s[20:23], s35 offen offset:{(i % G) * 1024} lds")
            vm.op(f"W{ci}")
        return [(f'W{ci}', lambda i=i: one(i)) for i in range(n)]
    def xload(ks):
        def one(rb):
            if rb == 0 and ks % 4 == 0: a(f"s_add_u32 s36, s34, {ks * 1024}")
            a(f"buffer_load_dwordx4 {ar((rb*18+ks)*4)}, v{4 if rb == 0 else 7}, s[16:19], s36 offen offset:{(ks % 4) * 1024}")
            vm.op(f"X{ks}")
        return [(f'X{ks}', lambda rb=rb: one(rb)) for rb in range(2)]
    HSB = Z1P
    def stats_loads():
        u = []
        def cs2(nb):
            if nb == 0:
                srd(a, 40, 10, 11, 4608 * 4, off_imm=CS_OFF)
                a("s_lshl_b32 s39, s30, 1")
                a("s_add_u32 s37, s39, 9216")
                a(f"v_lshlrev_b32 v{VB}, 2, v2")
                a(f"v_lshlrev_b32 v{VC}, 4, v3")
            a(f"buffer_load_dword v{CS2+nb}, v{VB}, s[40:43], s37 offen offset:{nb*64}")
            vm.op("CS")
        def cs1(nb):
            a(f"buffer_load_dwordx4 {vr(CS1+nb*4)}, v{VC}, s[40:43], s39 offen offset:{nb*64}")
            vm.op("CS")
        return [('CS', lambda nb=nb: cs2(nb)) for nb in range(9)] + [('CS', lambda nb=nb: cs1(nb)) for nb in range(9)]
    vq = []
    def need(tag):
        while any(t == tag for t, _ in vq): vq.pop(0)[1]()
        vm.wait(tag)
    nxt_chunk = 0
    csl = stats_loads()
    def push_chunks(limit):
        nonlocal nxt_chunk
        while nxt_chunk < len(chunks) and chunks[nxt_chunk][0] < limit and chunks[nxt_chunk][1] - R <= udone[0]:
            vq.extend(dma(nxt_chunk)); nxt_chunk += 1
    udone = [0]
    push_chunks(int(os.environ.get("P3CH", "48")))
    p3_body(a, vm, lg, vq)
    assert not vq
    a("s_lshl_b32 s37, s33, 11")
    a("s_mov_b32 s38, 0")
    a.label("L_p3_spin")
    for rb in range(2):
        a(f"buffer_load_dwordx4 {vr(HSB+rb*4)}, v4, s[24:27], s37 offen offset:{rb*1024} sc0 sc1")
    a("s_waitcnt vmcnt(0)")
    a(f"v_max3_u32 v8, v{HSB}, v{HSB+1}, v{HSB+2}")
    a(f"v_max3_u32 v8, v8, v{HSB+3}, v{HSB+4}")
    a(f"v_max3_u32 v8, v8, v{HSB+5}, v{HSB+6}")
    a(f"v_max_u32 v8, v8, v{HSB+7}")
    a("v_cmp_eq_u32 vcc, -1, v8")
    a("s_cmp_eq_u64 vcc, 0")
    a("s_cbranch_scc1 L_p3_go")
    a("s_add_u32 s38, s38, 1")
    a("s_cmp_lt_u32 s38, 0x20000")
    a("s_cbranch_scc0 L_p3_go")
    a("s_sleep 1")
    a("s_branch L_p3_spin")
    a.label("L_p3_go")
    prof_stamp(a, 4, PV); prof_real(a, 6, PV)
    PROF_K[0] += 1
    prof_init(a, 10); prof_real(a, 14, PV); prof_stamp(a, 0, PV)
    npro = 0
    for ks in range(18):
        push_chunks(min(3 * ks + 9, 60))
        vq.extend(xload(ks))
        if ks == 11: vq.extend(csl)
        if ks == NPRO: npro = len(vq)
    for _ in range(npro): vq.pop(0)[1]()
    srd(a, 44, 10, 11, 262144, off_imm=ST_OFF)
    srd(a, 52, 10, 11, 2304 * 4096, off_imm=Z2T_OFF)
    if not fused: srd(a, 56, 10, 11, 2304 * 4096, off_imm=Z1_OFF)
    def atomic(lst):
        def f():
            for x in lst: a(x)
            credit[0] = 6
        return f
    def stats_math():
        b_ = Buf()
        x = Buf()
        for rb in range(2):
            b = HSB + rb * 4
            x(pk("add", b, b, b + 2))
        for rb in range(2):
            b = HSB + rb * 4
            xlane_sum_g(x, b, 24); xlane_sum_g(x, b + 1, 24)
        b_.l.append(atomic(x.l))
        for rb in range(2):
            b = HSB + rb * 4
            b_(f"v_mov_b32 v{NM1+rb}, v{b}"); b_(f"v_mov_b32 v{RI1+rb}, v{b+1}")
        ln_ms(b_, [(NM1, RI1), (NM1 + 1, RI1 + 1)], 576)
        b_("v_lshlrev_b32 v24, 4, v3")
        def bp(rb, j):
            a(f"ds_bpermute_b32 v{RI2+rb*4+j}, v24, v{RI1+rb} offset:{4*j}"); lg.op("BP")
            a(f"ds_bpermute_b32 v{NM2+rb*4+j}, v24, v{NM1+rb} offset:{4*j}"); lg.op("BP")
        for rb in range(2):
            for j in range(4): b_.l.append(lambda rb=rb, j=j: bp(rb, j))
        def derive(ri, c0, c1, n):
            for i in range(n): b_(f"v_rcp_f32 v{c0+i}, v{ri+i}")
            b_("s_nop 0")
            for i in range(n): b_(f"v_mul_f32 v{c1+i}, v{c0+i}, v{c0+i}")
            for i in range(n): b_(f"v_mul_f32 v{c1+i}, v{c1+i}, v{c0+i}")
            for i in range(n):
                b_(f"v_mul_f32 v{c0+i}, {f32bits(GK0):#x}, v{c0+i}")
                b_(f"v_mul_f32 v{c1+i}, {f32bits(GK1):#x}, v{c1+i}")
        derive(RI1, C01, C11, 2)
        for i in range(16): b_(f"v_mov_b32 v{SS+i}, 0")
        b_.l.append(lambda: lg.wait("BP"))
        derive(RI2, C02, C12, 8)
        b_.l.append(lambda: need("CS"))
        return b_.l
    def epi(p, tail=False):
        z2 = p < 3
        b_ = Buf()
        Q = [(il, rb) for il in range(3) for rb in range(2)]
        X = lambda q: ACCB[p & 1] + q * 4
        T = lambda q: T0 + q * 4
        def c(base2, base1, rb, h): return base2 + rb * 4 + h if z2 else ('b', base1 + rb)
        def cv(base2, base1, rb, j): return base2 + rb * 4 + j if z2 else base1 + rb
        A = Buf()
        for q, (il, rb) in enumerate(Q):
            nb = 3 * (p % 3) + il
            for h in (0, 2):
                if z2: A(pk("fma", X(q) + h, NM2 + rb * 4 + h, ('b', CS2 + nb), X(q) + h))
                else: A(pk("fma", X(q) + h, CS1 + nb * 4 + h, ('b', NM1 + rb), X(q) + h))
        for q, (il, rb) in enumerate(Q):
            for h in (0, 2): A(pk("mul", T(q) + h, X(q) + h, X(q) + h))
        for q, (il, rb) in enumerate(Q):
            for h in (0, 2): A(pk("fma", T(q) + h, T(q) + h, c(C12, C11, rb, h), c(C02, C01, rb, h)))
        for q, (il, rb) in enumerate(Q):
            for h in (0, 2): A(pk("mul", T(q) + h, T(q) + h, X(q) + h))
        b_.l.append(atomic(A.l))
        for i in range(24): b_(f"v_exp_f32 v{T0+i}, v{T0+i}")
        for q, (il, rb) in enumerate(Q):
            if tail:
                for h in (0, 2): b_(pk("fma", T(q) + h, T(q) + h, c(RI2, RI1, rb, h), c(RI2, RI1, rb, h)))
            else:
                for j in range(4): b_(f"v_fma_f32 v{T(q)+j}, v{T(q)+j}, v{cv(RI2, RI1, rb, j)}, v{cv(RI2, RI1, rb, j)}")
        for i in range(24): b_(f"v_rcp_f32 v{T0+i}, v{T0+i}")
        if z2 or tail:
            E = Buf()
            for q in range(6):
                for h in (0, 2): E(pk("mul", X(q) + h, X(q) + h, T(q) + h))
            if z2:
                for q, (il, rb) in enumerate(Q):
                    for h in (0, 2):
                        E(pk("add", SS + rb * 4 + h, SS + rb * 4 + h, X(q) + h))
                        E(pk("fma", QQ + rb * 4 + h, X(q) + h, X(q) + h, QQ + rb * 4 + h))
            b_.l.append(atomic(E.l))
        else:
            for i in range(24): b_(f"v_mul_f32 v{X(0)+i}, v{X(0)+i}, v{T0+i}")
        if p == 2:
            b_("s_nop 1")
            row16_sum(b_, list(range(SS, SS + 16)))
            b_.l.append(st_publish)
        for q, (il, rb) in enumerate(Q):
            nb = 3 * (p % 3) + il
            for h in (0, 2):
                b_(f"v_cvt_pk_bf16_f32 v{(HOLD2 if z2 else Z1P)+nb*4+rb*2+h//2}, v{X(q)+h}, v{X(q)+h+1}")
            if not z2 and not fused and rb == 1:
                def st(nb=nb):
                    if nb == 0:
                        a("s_mul_i32 s69, s33, 144")
                        a("s_mul_i32 s37, s29, 9")
                        a("s_add_u32 s69, s69, s37")
                        a("s_lshl_b32 s69, s69, 10")
                    a(f"s_add_u32 s37, s69, {nb*1024}")
                    a(f"buffer_store_dwordx4 {vr(Z1P+nb*4)}, v4, s[56:59], s37 offen")
                    vm.op("Z1")
                b_.l.append(st)
        b_.l.append(f"MARK_E{p}")
        return b_.l
    def st_publish():
        a("s_lshl_b32 s36, s28, 4")
        a("s_add_u32 s36, s36, s29")
        a("s_lshl_b32 s36, s36, 10")
        a("s_lshl_b32 s37, s12, 8")
        a("s_add_u32 s36, s36, s37")
        a(f"v_lshlrev_b32 v{VA}, 5, v3")
        a(f"v_lshl_add_u32 v{VB}, v2, 24, v{VA}")
        a(f"v_lshl_add_u32 v{VA}, v2, 10, v{VA}")
        for rb in range(2):
            a(f"buffer_store_dwordx4 {vr(SS+rb*4)}, v{VB}, s[44:47], s36 offen offset:{rb*128} sc0 sc1")
            a(f"buffer_store_dwordx4 {vr(QQ+rb*4)}, v{VB}, s[44:47], s36 offen offset:{rb*128+16} sc0 sc1")
            vm.op("ST"); vm.op("ST")
        a("s_lshl_b32 s68, s28, 14")
        a("s_add_u32 s68, s68, s37")
        prof_stamp(a, 8, PV)
    def poll_loads(track=True):
        for rb in range(2):
            a(f"buffer_load_dwordx4 {vr(SS+rb*4)}, v{VA}, s[44:47], s68 offen offset:{rb*128} sc0 sc1")
            a(f"buffer_load_dwordx4 {vr(QQ+rb*4)}, v{VA}, s[44:47], s68 offen offset:{rb*128+16} sc0 sc1")
            if track: vm.op("PL"); vm.op("PL")
    def poll_check():
        T = T0
        prof_stamp(a, 9, PV)
        vm.wait("PL")
        a("s_mov_b32 s38, 0")
        a.label("L_k4_spin")
        for i in range(0, 8, 2): a(pk("add", T + i, SS + i, QQ + i))
        a(pk("add", T, T, T + 2)); a(pk("add", T + 4, T + 4, T + 6)); a(pk("add", T, T, T + 4))
        a(f"v_cmp_u_f32 vcc, v{T}, v{T+1}")
        a("s_cmp_eq_u64 vcc, 0")
        a("s_cbranch_scc1 L_k4_go")
        a("s_add_u32 s38, s38, 1")
        a("s_cmp_lt_u32 s38, 0x20000")
        a("s_cbranch_scc0 L_k4_go")
        a("s_sleep 1")
        poll_loads(False)
        a("s_waitcnt vmcnt(0)")
        a("s_branch L_k4_spin")
        a.label("L_k4_go")
        prof_stamp(a, 10, PV)
    def norm_z2():
        b_ = Buf()
        b_.l.append(poll_check)
        row16_sum(b_, list(range(SS, SS + 16)))
        ln_scalars(b_, [(SS + i, QQ + i) for i in range(8)], 2304)
        b_("s_mul_i32 s70, s29, 576")
        b_("s_lshr_b32 s37, s33, 1")
        b_("s_mul_i32 s37, s37, 18")
        b_("s_add_u32 s70, s70, s37")
        b_("s_and_b32 s37, s33, 1")
        b_("s_add_u32 s70, s70, s37")
        b_("s_lshl_b32 s70, s70, 10")
        for nb in range(9):
            T = T0 + (nb & 1) * 8
            for p in range(4):
                t = T + 2 * p; hreg = HOLD2 + nb * 4 + p
                b_(f"v_lshlrev_b32 v{t}, 16, v{hreg}")
                b_(f"v_and_b32 v{t+1}, 0xffff0000, v{hreg}")
            for p in range(4): b_(pk("fma", T + 2 * p, T + 2 * p, QQ + 2 * p, SS + 2 * p))
            for p in range(4): b_(f"v_cvt_pk_bf16_f32 v{HOLD2+nb*4+p}, v{T+2*p}, v{T+2*p+1}")
            def st(nb=nb):
                a(f"s_add_u32 s37, s70, {nb*2048}")
                a(f"buffer_store_dwordx4 {vr(HOLD2+nb*4)}, v4, s[52:55], s37 offen" + (" sc0 sc1" if fused else ""))
                vm.op("Z2")
            b_.l.append(st)
        b_.l.append(lambda: prof_stamp(a, 11, PV))
        return b_.l
    units = [(p, ks, il) for p in range(6) for ks in range(18) for il in range(3)]
    for u, (p, ks, il) in enumerate(units): assert wp_unit(2 if p < 3 else 1, ks, 3 * (p % 3) + il) == u
    marks = set()
    valu = []
    def read(u):
        ci = chunk_of[u]
        if chunks[ci][0] == u:
            need(f"W{ci}")
            a("s_barrier")
            d = u - 1
            while d >= 0 and not lg.completed(f"R{d}"): d -= 1
            udone[0] = d + 1
            push_chunks(10000)
        pos = (u % R) * 1024
        a(f"ds_read_b128 {ar(WFA + (u % NBUF) * 4)}, v{4 + (pos >> 16)} offset:{pos & 0xffff}")
        lg.op(f"R{u}")
        credit[0] -= 5
    def emit_valu(budget, until=None):
        credit[0] += budget
        while valu and (credit[0] > 0 or (until and until not in marks)):
            it = valu.pop(0)
            if callable(it): it()
            elif it.startswith("MARK"): marks.add(it); continue
            else: a(it)
            credit[0] -= icost(it)
        if not valu: credit[0] = min(credit[0], 0)
    credit = [0.0]
    for u in range(DLA): read(u)
    credit[0] = 0
    prof_stamp(a, 1, PV)
    slot = 0
    for u, (p, ks, il) in enumerate(units):
        if u % 54 == 0 and p >= 2:
            emit_valu(0, until=f"MARK_E{p-2}"); credit[0] = 0
        if u % 54 == 0 and p >= 1: prof_stamp(a, 1 + p, PV)
        if p == 0 and il == 0: need(f"X{ks}")
        if u % 3 == 0: lg.wait(f"R{u+2}")
        if u == 15: valu.extend(stats_math())
        if u % 54 == 1 and p >= 1:
            valu.extend(epi(p - 1))
        if u == 300:
            poll_loads()
            if hook_late:
                vq.extend(hook_late())
        wf = ar(WFA + (u % NBUF) * 4)
        for rb in range(2):
            xa = ar((rb * 18 + ks) * 4)
            acc = ACCB[p & 1] + (il * 2 + rb) * 4
            if p < 3: a(f"v_mfma_f32_16x16x32_bf16 {vr(acc)}, {xa}, {wf}, {vr(acc) if ks else 0}")
            else: a(f"v_mfma_f32_16x16x32_bf16 {vr(acc)}, {wf}, {xa}, {vr(acc) if ks else 0}")
            if rb == 0 and u + DLA < 324: read(u + DLA)
            if slot % (VPACE if p else 2) == 1 and vq: vq.pop(0)[1](); credit[0] -= 5
            emit_valu(BUD)
            slot += 1
    assert not vq
    prof_stamp(a, 7, PV)
    if hook_end: hook_end()
    valu.extend(["s_nop 7"] + norm_z2() + epi(5, tail=True))
    while valu: emit_valu(1e9)
    return Z1P

def gen_k4():
    a = Asm()
    vm = VmTrack(a)
    common_prologue(a, 256, "L_k4_end")
    k4_body(a, vm, False)
    if PROF:
        a("s_waitcnt vmcnt(0)")
    for i in range(12, 14): prof_stamp(a, i, 1)
    prof_real(a, 15, 1)
    a.label("L_k4_end")
    a("s_endpgm")
    return a.text(), dict(vgpr=256, agpr=216, grid=256, block=256, lds=144 * 1024)
```

```python
from asmlib import *
from gen_common import *
from k4n import k4_body, LgTrack
F4_OFF = 0
F5_OFF = 65536
F6_OFF = 131072
EXP = int(os.environ.get("EXP", "0"))
STAG = int(os.environ.get("STAG", "0"))
INL = [False]
PMODE = int(os.environ.get("PMODE", "1"))
PSC = os.environ.get("PSC", " sc0 sc1")
PLD = os.environ.get("PLD", " sc0 sc1")
USC = os.environ.get("USC", " sc0 sc1")
FSC = os.environ.get("FSC", " sc0 sc1")
FLD = os.environ.get("FLD", " sc0 sc1")
def poll(a, vaddr, vt, srdn, soff, sc=" sc0 sc1"):
    a(f"buffer_load_dword v{vt}, v{vaddr}, s[{srdn}:{srdn+3}], {soff} offen" + sc)
def spin_flags(a, name, vaddr, vt, srdn, soff, sc=38, orm=None, pre=False, ld=" sc0 sc1"):
    a(f"s_mov_b32 s{sc}, 0")
    if pre: a(f"s_branch L_{name}_chk")
    a.label(f"L_{name}_spin")
    poll(a, vaddr, vt, srdn, soff, ld)
    a.label(f"L_{name}_chk")
    a("s_waitcnt vmcnt(0)")
    if orm is not None: a(f"v_and_b32 v{vt}, v{vt}, v{orm}")
    a(f"v_cmp_eq_u32 vcc, -1, v{vt}")
    a("s_cmp_eq_u64 vcc, 0")
    a(f"s_cbranch_scc1 L_{name}_go")
    a(f"s_add_u32 s{sc}, s{sc}, 1")
    a(f"s_cmp_lt_u32 s{sc}, 0x40000")
    a(f"s_cbranch_scc0 L_{name}_go")
    a("s_sleep 1")
    a(f"s_branch L_{name}_spin")
    a.label(f"L_{name}_go")

def k5_parts(a, vm, Z1):
    ZS = 18432
    AF = 0; BR = 88; ACC = 32
    BI = 196
    ZU = 160
    TB = 236
    OW = Z1
    zslot = lambda G: {29: 0, 30: 1, 31: 2}.get(G, G % 8)
    def bload(G, i):
        a(f"buffer_load_dwordx4 {ar(BR + (G % 8) * 16 + i * 4)}, v4, s[60:63], s71 offen offset:{i*1024}"); vm.op(f"G{G}")
    def badv(): a("s_add_u32 s71, s71, 4096")
    def early():
        def bias():
            srd(a, 56, 80, 81, 4096)
            a(f"v_lshlrev_b32 v{BI+2}, 1, v2")
            a("s_lshl_b32 s73, s33, 6")
            for rb in range(2):
                a(f"buffer_load_ushort v{BI+rb}, v{BI+2}, s[56:59], s73 offen offset:{rb*32}"); vm.op("WSP")
        return [("WSP", bias)]
    def late():
        srd(a, 60, 10, 11, 2048 * 4096, off_imm=WSPP_OFF)
        a("s_lshl_b32 s71, s33, 17")
        for G in range(2):
            for i in range(4): bload(G, i)
            badv()
    TOP = 8 * ZS
    POS = [s_ * ZS + h * 9216 for s_ in (5, 6, 7, 3, 4, 0, 1, 2) for h in range(2)] + [TOP, 5 * ZS]
    def blk5(pos, srdn, ss, tag):
        def ld(i):
            if i < 4: a(f"buffer_load_dwordx4 v4, s[{srdn}:{srdn+3}], s{ss} offen offset:{i*1024} lds")
            else: a(f"buffer_load_dwordx4 v7, s[{srdn}:{srdn+3}], s{ss} offen lds")
            vm.op(tag)
        return [('s', lambda: a(f"s_add_u32 m0, s72, {pos}"))] + [('v', lambda i=i: ld(i)) for i in range(4)] + \
               [('s', lambda: a(f"s_add_u32 m0, s72, {pos + 4096}")), ('v', lambda: ld(4))]
    def p6_pair(n):
        return [('s', lambda: a(f"s_add_u32 s70, s{64 + n//4}, {(n % 4) * 9216}"))] + blk5(POS[n], 20, 70, f"W{n+1}")
    def p6_single(n):
        def one(k):
            if k == 2: a("s_mov_b64 exec, 0xffff")
            a(f"buffer_load_dwordx4 v4, s[20:23], s70 offen offset:{k*1024} lds"); vm.op(f"W{n}")
            if k == 2: a("s_mov_b64 exec, -1")
        return [('s', lambda: a(f"s_add_u32 s70, s68, {(n - 16) * 9216}")), ('s', lambda: a(f"s_add_u32 m0, s69, {POS[n]}"))] + \
               [('v', lambda k=k: one(k)) for k in range(3)]
    def main():
        a("v_lshrrev_b32 v1, 4, v4")
        srd(a, 24, 10, 11, 196608, off_imm=FL_OFF)
        a("v_lshlrev_b32 v16, 2, v2")
        a("s_mul_i32 s36, s29, 1280")
        a(f"s_add_u32 s36, s36, {F4_OFF}")
        a("s_lshl_b32 s37, s28, 2")
        a("s_add_u32 s37, s37, s36")
        a("v_mov_b32 v17, 1")
        a("v_lshlrev_b32 v18, 24, v0")
        vm.wait("Z2")
        a("s_barrier")
        a("buffer_store_dword v17, v18, s[24:27], s37 offen sc0 sc1")
        prof_stamp(a, 12, 17)
        a("s_lshr_b32 s31, s12, 1")
        a("s_mul_i32 s31, s31, 9")
        a("s_and_b32 s32, s12, 1")
        a("s_lshl_b32 s32, s32, 2")
        a("s_add_u32 s72, s31, s32")
        a("s_lshl_b32 s72, s72, 10")
        a("s_mul_i32 s40, s29, 589824")
        a("s_add_u32 s40, s40, s72")
        a("v_add_u32 v7, 4096, v4")
        a("v_mov_b32 v12, v4")
        srd(a, 16, 10, 11, 2304 * 4096, off_imm=Z2T_OFF)
        srd(a, 52, 10, 11, 2304 * 4096, off_imm=U_OFF)
        srd(a, 20, 10, 11, 2592 * 1024, off_imm=WOP_OFF)
        for rb in range(2): a(f"v_lshlrev_b32 v{BI+rb}, 16, v{BI+rb}")
        for i in range(72): a(f"v_mov_b32 v{ACC+i}, v{BI + i // 36}")
        a("s_and_b32 s74, s29, 3")
        a("s_lshr_b32 s75, s29, 2")
        a("s_mul_i32 s69, s12, 2304")
        for pp in range(4):
            a(f"s_add_u32 s35, s75, {pp}")
            a("s_and_b32 s35, s35, 3")
            a("s_lshl_b32 s35, s35, 11")
            for wd in range(3): a(f"v_add_u32 v{TB+pp*3+wd}, s35, v{4+wd}")
        a(f"s_mul_i32 s34, s29, {18*9216}")
        for b in range(4):
            a(f"s_add_u32 s35, s74, {b}")
            a("s_and_b32 s35, s35, 3")
            a(f"s_mul_i32 s35, s35, {4*9216}")
            a("s_add_u32 s35, s35, s34")
            a(f"s_add_u32 s{64+b}, s35, s72")
        a(f"s_add_u32 s68, s34, {16*9216}")
        a("s_add_u32 s68, s68, s69")
        spin_flags(a, "f4", 16, 17, 24, "s36")
        prof_stamp(a, 13, 17)
        def group(G, withb=True):
            u = blk5(zslot(G) * ZS, 16, 40, f"G{G}") + [('s', lambda: a(f"s_add_u32 s40, s40, {ZS}"))]
            if withb: u += [('v', lambda i=i: bload(G, i)) for i in range(4)] + [('s', badv)]
            return u
        vm.ops.clear()
        for G in range(4):
            for k, f_ in group(G, G >= 2):
                f_()
                if k == 's': a("s_nop 0")
        def reads(q):
            r = []
            for fb in range(9):
                pos = zslot(q >> 1) * ZS + (fb * 2 + (q & 1)) * 1024
                r.append(f"ds_read_b128 {ar(AF + (q & 1) * 36 + fb * 4)}, v{4 + (pos >> 16)} offset:{pos & 0xffff}")
            return r
        pend = []; valu = []
        def kstep(q, vs):
            af = AF + (q & 1) * 36; bf = BR + ((q >> 1) % 8) * 16 + (q & 1) * 8
            rd = reads(q + 1) if q < 63 else []
            slot = 0
            for fb in range(9):
                for rb in range(2):
                    acc = ACC + (rb * 9 + fb) * 4
                    a(f"v_mfma_f32_16x16x32_bf16 {vr(acc)}, {ar(af+fb*4)}, {ar(bf+rb*4)}, {vr(acc)}")
                    if slot in vs and pend and pend[0][0] == 'v': pend.pop(0)[1]()
                    else:
                        if rd: a(rd.pop(0))
                        elif valu: a(valu.pop(0))
                        if pend and pend[0][0] == 's' and (not rd or slot + 1 in vs or (slot + 2 in vs and len(pend) > 1 and pend[1][0] == 's')): pend.pop(0)[1]()
                        elif valu and not rd: a(valu.pop(0))
                    slot += 1
            assert not rd
        VA = (3, 7, 11, 15); VB = (1, 5, 9, 13, 16)
        vm.wait("G0")
        a("s_barrier")
        PROF_K[0] += 1
        prof_init(a, 10); prof_real(a, 6, 17); prof_stamp(a, 0, 17); prof_stamp(a, 1, 17)
        for r in reads(0): a(r)
        a("s_mov_b32 s50, 0")
        a("s_waitcnt lgkmcnt(0)")
        kstep(0, ())
        a.label("L_k5_loop")
        for q in range(1, 17):
            if q & 1:
                a("s_waitcnt vmcnt(18) lgkmcnt(0)")
                a("s_barrier")
                pend.extend(group((q - 1) // 2 + 4))
            else:
                a("s_waitcnt lgkmcnt(0)")
            if q == 16: a("s_add_u32 s50, s50, 1")
            kstep(q, VA if q & 1 else VB)
            assert q & 1 or not pend, pend
        a("s_cmp_lt_u32 s50, 3")
        a("s_cbranch_scc1 L_k5_loop")
        prof_stamp(a, 2, 17)
        vm.ops[:] = ["G25"] * 9 + ["G26"] * 9 + ["G27"] * 9
        for q in range(49, 64):
            G = q >> 1
            vs = VA if q & 1 else VB
            if q & 1:
                if G < 31: vm.wait(f"G{G+1}")
                a("s_waitcnt lgkmcnt(0)")
                a("s_barrier")
                if G < 28: pend.extend(group(G + 4))
                elif G < 31: pend.extend(p6_pair(4 * (G - 28)) + p6_pair(4 * (G - 28) + 2))
                else: pend.extend(p6_pair(12) + p6_single(16))
                if q == 51:
                    for fb in range(9):
                        for rb in range(2):
                            for h in range(2):
                                zr = Z1 + fb * 4 + rb * 2 + h; t = ZU + (rb * 9 + fb) * 4 + 2 * h
                                valu.append(f"v_lshlrev_b32 v{t}, 16, v{zr}")
                                valu.append(f"v_and_b32 v{t+1}, 0xffff0000, v{zr}")
            else:
                a("s_waitcnt lgkmcnt(0)")
            if q >= 57: vs = (3, 6, 9, 12, 15) if q & 1 else (1, 4, 7, 10, 13, 16)
            if q == 63: vs = (2, 3, 4, 5, 7, 10, 12, 14)
            kstep(q, vs)
            assert q & 1 and q < 63 or not pend, (q, pend)
        assert not valu
        prof_stamp(a, 3, 17); prof_stamp(a, 4, 17); prof_stamp(a, 5, 17); prof_real(a, 7, 17)
        PROF_K[0] += 1
        prof_init(a, 10); prof_real(a, 10, 17); prof_stamp(a, 0, 17)
        a("s_mul_i32 s40, s33, 144")
        a("s_lshl_b32 s40, s40, 10")
        for b in range(4):
            a(f"s_add_u32 s35, s74, {b}")
            a("s_and_b32 s35, s35, 3")
            a("s_lshl_b32 s39, s75, 2")
            a("s_add_u32 s35, s35, s39")
            a("s_lshr_b32 s39, s35, 1")
            a("s_mul_i32 s39, s39, 9")
            a("s_and_b32 s35, s35, 1")
            a("s_lshl_b32 s35, s35, 2")
            a("s_add_u32 s35, s35, s39")
            a("s_lshl_b32 s35, s35, 10")
            a(f"s_add_u32 s{41+b}, s40, s35")
            if b == 0:
                a("s_lshl_b32 s39, s39, 10")
                a("s_add_u32 s45, s40, s39")
                a("s_and_b32 s39, s29, 1")
                a("s_lshl_b32 s39, s39, 9")
                a("s_add_u32 s45, s45, s39")
                a("s_add_u32 s45, s45, 8192")
                a(f"v_add_u32 v13, 73728, v12")
                a("v_lshrrev_b32 v14, 1, v12")
                a(f"v_add_u32 v15, 73728, v14")
        for i in range(5):
            for rb in range(2):
                for fb in ((2 * i, 2 * i + 1) if i < 4 else (8,)):
                    x = ACC + (rb * 9 + fb) * 4; t = ZU + (rb * 9 + fb) * 4
                    o = OW + i * 8 + rb * 4 + (fb & 1) * 2 if i < 4 else OW + 32 + rb * 2
                    for h in (0, 2): a(pk("mul", x + h, x + h, t + h))
                    for h in (0, 2): a(f"v_cvt_pk_bf16_f32 v{o+h//2}, v{x+h}, v{x+h+1}")
                if i < 4: a(f"buffer_store_dwordx4 {vr(OW+i*8+rb*4)}, v{12+rb}, s[52:55], s41 offen offset:{i*1024}" + USC)
                else: a(f"buffer_store_dwordx2 {vr(OW+32+rb*2,2)}, v{14+rb}, s[52:55], s45 offen" + USC)
                vm.op("U")
        vm.wait("W7")
        a("s_barrier")
        WF = 112; XF = 0
        def wread(n, f, d):
            full = POS[n] + (f & 1 if f < 8 else 8) * 1024
            base = (TB + (f >> 1) * 3 if f < 8 else 4) + (full >> 16)
            return f"ds_read_b128 {ar(d)}, v{base} offset:{full & 0xffff}"
        def trreads(n, fl): return [wread(n, f, WF + (n & 1) * 36 + f * 4) for f in fl]
        ALL = list(range(9)); FOR = list(range(2, 9))
        for r in trreads(0, ALL): a(r)
        pend.extend(p6_pair(14))
        a("s_lshl_b32 s46, s33, 2")
        a("s_add_u32 s46, s46, s75")
        a("s_lshl_b32 s46, s46, 8")
        a(f"s_add_u32 s46, s46, {F5_OFF}")
        a("s_lshl_b32 s35, s74, 2")
        a("s_add_u32 s47, s46, s35")
        a("v_and_b32 v16, 3, v1")
        a("v_cmp_eq_u32 vcc, s74, v16")
        a("v_cndmask_b32 v19, -1, 0, vcc")
        a("v_lshlrev_b32 v16, 2, v16")
        a("v_mov_b32 v17, 1")
        a("v_lshlrev_b32 v18, 24, v1")
        a(f"s_mul_i32 s35, s75, {18*1024}")
        a("s_add_u32 s45, s40, s35")
        a("s_add_u32 s45, s45, 8192")
        prof_stamp(a, 1, 21)
        def xfrag(n, rb): return vr(OW + n * 8 + rb * 4) if n < 4 else ar(XF + (n - 4) * 8 + rb * 4)
        def pop_pend():
            x = pend.pop(0)
            x[1]() if isinstance(x, tuple) else x()
        def p6step(n, fl, rd):
            a("s_waitcnt lgkmcnt(0)")
            slot = 0
            for f in fl:
                for rb in range(2):
                    acc = ACC + (f * 2 + rb) * 4
                    a(f"v_mfma_f32_16x16x32_bf16 {vr(acc)}, {ar(WF+(n&1)*36+f*4)}, {xfrag(n, rb)}, {vr(acc) if n else 0}")
                    if slot % 3 == 2 and pend: pop_pend()
                    elif rd: a(rd.pop(0))
                    elif pend and slot % 2: pop_pend()
                    slot += 1
            assert not rd
        p6step(0, ALL, trreads(1, ALL)); p6step(1, ALL, trreads(2, ALL))
        prof_stamp(a, 2, 21)
        if PROF: vm.op("P"); vm.op("P")
        vm.wait("U")
        prof_stamp(a, 3, 21)
        a("buffer_store_dword v17, v18, s[24:27], s47 offen" + FSC); vm.op("F5")
        p6step(2, ALL, trreads(3, ALL))
        poll(a, 16, 21, 24, "s46", FLD)
        p6step(3, ALL, trreads(4, FOR))
        assert not pend
        prof_stamp(a, 4, 27)
        spin_flags(a, "f5", 16, 21, 24, "s46", sc=39, orm=19, pre=True, ld=FLD)
        vm.ops.clear()
        if os.environ.get("UFAKE"): srd(a, 52, 10, 11, 2304 * 4096, off_imm=eval(os.environ["UFAKE"]))
        def xload(n):
            def one(rb):
                d = XF + (n - 4) * 8 + rb * 4
                if n < 16:
                    a(f"buffer_load_dwordx4 {ar(d)}, v{12+rb}, s[52:55], s{41 + n//4} offen offset:{(n%4)*1024}"); vm.op(f"X{n}")
                else:
                    if n == 17 and rb == 0: a(f"s_add_u32 s45, s45, {9*1024}")
                    for h in range(2):
                        a(f"buffer_load_dwordx2 {ar(d+2*h,2)}, v{14+rb}, s[52:55], s45 offen offset:{h*512}"); vm.op(f"X{n}")
            return [lambda rb=rb: one(rb) for rb in range(2)] if not EXP & 4 else []
        XA = int(os.environ.get("XA", "5"))
        for n in range(4, 4 + XA):
            for f_ in xload(n): f_()
        prof_stamp(a, 5, 21)
        RES = 104
        srd(a, 16, 10, 11, 128 * 18 * 1024, off_imm=H_OFF)
        srd(a, 60, 10, 11, 256 * 36864, off_imm=P_OFF)
        srd(a, 56, 84, 85, 2048 * 1152)
        a(f"s_mul_i32 s48, s33, {32*1152}")
        a("s_mul_i32 s39, s74, 288")
        a("s_add_u32 s48, s48, s39")
        a("s_lshl_b32 s39, s75, 6")
        a("s_add_u32 s49, s48, s39")
        a(f"s_mul_i32 s35, s33, {36*1024}")
        a("s_mul_i32 s34, s74, 9")
        a("v_add_u32 v20, 18432, v12")
        def res(i):
            if i < 2:
                a("s_lshl_b32 s39, s75, 1")
                a("s_add_u32 s39, s39, s34")
                a(f"s_add_u32 s39, s39, {i}")
            else: a("s_add_u32 s39, s34, 8")
            a("s_lshr_b32 s50, s39, 1")
            a("s_lshl_b32 s50, s50, 10")
            a("s_and_b32 s39, s39, 1")
            a("s_lshl_b32 s39, s39, 3")
            a("s_add_u32 s50, s50, s39")
            a("s_add_u32 s50, s50, s35")
            for rb in range(2):
                a(f"buffer_load_dwordx2 {vr(RES+4*i+2*rb,2)}, v{20 if rb else 12}, s[16:19], s50 offen"); vm.op("RES")
        a("s_lshl_b32 s51, s28, 2")
        a("s_add_u32 s51, s51, s74")
        a("s_lshl_b32 s51, s51, 2")
        a("s_add_u32 s51, s51, s12")
        a("s_mul_i32 s51, s51, 36864")
        a("v_mul_u32_u24 v26, 1152, v2")
        a("v_lshl_add_u32 v26, v3, 3, v26")
        a(f"v_add_u32 v27, {16*1152}, v26")
        a("v_cmp_eq_u32 vcc, s75, v3")
        a("v_mov_b32 v31, 0x40000000")
        a("v_cndmask_b32 v31, v31, 0, vcc")
        a("v_add_u32 v28, v31, v26")
        a("v_add_u32 v29, v31, v27")
        a("v_add_u32 v30, v31, v12")
        for n in range(4, 18):
            if n + XA < 18: pend.extend(xload(n + XA))
            if n == 7:
                if not EXP & 2: a("s_barrier")
            if n == 9 and not EXP & 8: pend.extend(p6_single(17))
            if n == 14 and not EXP & 8: pend.extend([lambda i=i: res(i) for i in range(3)])
            if n == 16:
                if not EXP & 1: vm.wait("W17")
                if not EXP & 2: a("s_barrier")
            if not EXP & 1: vm.wait(f"X{n}")
            W2 = 184
            own = lambda n_: [wread(n_, f, W2 + ((n_ - 4) % 4) * 8 + f * 4) for f in range(2)]
            p6step(n, FOR, trreads(n + 1, FOR) if n < 17 else own(4) + own(5) + own(6))
        assert not pend
        prof_stamp(a, 6, 21)
        PT = 160
        snd = []
        for f in FOR:
            t0 = PT + (f - 2) * 4
            for rb in range(2):
                x = ACC + (f * 2 + rb) * 4
                for h in (0, 2): snd.append(f"v_cvt_pk_bf16_f32 v{t0+rb*2+h//2}, v{x+h}, v{x+h+1}")
            if f < 8:
                snd.append(f"s_lshl_b32 s39, s75, 1\ns_add_u32 s39, s39, {f}\ns_and_b32 s39, s39, 7\ns_lshl_b32 s39, s39, 2\ns_add_u32 s39, s39, s75")
            else: snd.append("s_add_u32 s39, s75, 32")
            snd.append(f"s_lshl_b32 s39, s39, 10\ns_add_u32 s39, s39, s51\nbuffer_store_dwordx4 {vr(t0)}, v12, s[60:63], s39 offen" + PSC)
        lg = LgTrack(a)
        for n_ in (4, 5, 6):
            for _ in range(2): lg.op(f"O{n_}")
        for n in range(4, 18):
            rd = own(n + 3) if n + 3 < 18 else []
            lg.wait(f"O{n}")
            for f in range(2):
                for rb in range(2):
                    acc = ACC + (f * 2 + rb) * 4
                    a(f"v_mfma_f32_16x16x32_bf16 {vr(acc)}, {ar(W2+((n-4)%4)*8+f*4)}, {xfrag(n, rb)}, {vr(acc)}")
                    for _ in range(3):
                        if snd: a(snd.pop(0))
                    if rd: a(rd.pop(0)); lg.op(f"O{n+3}")
        assert not snd
        for di in range(4):
            a(f"s_add_u32 s39, s75, {di}")
            a("s_and_b32 s39, s39, 3")
            a("s_lshl_b32 s35, s75, 3")
            a("s_add_u32 s39, s39, s35")
            a("s_lshl_b32 s39, s39, 10")
            a(f"s_add_u32 s{64+di}, s39, s51")
            a(f"s_add_u32 s{40+di}, s{64+di}, 4096")
        a("s_add_u32 s68, s51, 32768")
        prof_stamp(a, 7, 21)
        RC = 48; T = 116
        a("s_mov_b32 s39, 0")
        def chk(name, regs, nxt):
            a("s_waitcnt vmcnt(0)")
            a(f"v_max3_u32 v21, v{regs[0]}, v{regs[1]}, v{regs[2]}")
            for i in range(3, len(regs) - 1, 2): a(f"v_max3_u32 v21, v21, v{regs[i]}, v{regs[i+1]}")
            a(f"v_max_u32 v21, v21, v{regs[-1]}")
            a("v_cmp_eq_u32 vcc, -1, v21")
            a("s_cmp_eq_u64 vcc, 0")
            a(f"s_cbranch_scc1 {nxt}")
            a("s_add_u32 s39, s39, 1")
            a("s_cmp_lt_u32 s39, 0x4000")
            a(f"s_cbranch_scc0 {nxt}")
            a("s_sleep 1")
            a(f"s_branch {name}")
        def ld8():
            for sidx in range(4):
                a(f"buffer_load_dwordx4 {vr(RC+24+sidx*4)}, v30, s[60:63], s68 offen offset:{sidx*1024}" + PLD)
        def ld6():
            for di in range(1, 4):
                for f in range(2):
                    a(f"buffer_load_dwordx4 {vr(RC+(di-1)*8+f*4)}, v12, s[60:63], s{(40 if f else 64)+di} offen" + PLD)
        if PMODE == 0:
            a.label("L_p6_spin")
            ld6(); ld8()
            chk("L_p6_spin", list(range(RC, RC + 40)), "L_p6_go")
        else:
            a.label("L_p6_spin")
            ld8()
            chk("L_p6_spin", list(range(RC + 24, RC + 40)), "L_p6_spin2")
            a.label("L_p6_spin2")
            ld6()
            chk("L_p6_spin2", list(range(RC, RC + 24)), "L_p6_go")
        a.label("L_p6_go")
        prof_stamp(a, 8, 21)
        def unpack(dst, src, cnt):
            for i in range(cnt):
                a(f"v_lshlrev_b32 v{dst+2*i}, 16, v{src+i}")
                a(f"v_and_b32 v{dst+2*i+1}, 0xffff0000, v{src+i}")
        B8 = 88
        unpack(B8, RC + 24, 4)
        for di in range(3):
            unpack(T, RC + di * 8, 8); unpack(T + 16, RC + 28 + di * 4, 4)
            for i in range(0, 16, 2): a(pk("add", ACC + i, ACC + i, T + i))
            for i in range(0, 8, 2): a(pk("add", B8 + i, B8 + i, T + 16 + i))
        for i in range(8): a(f"v_cvt_pk_bf16_f32 v{RC+i}, v{ACC+2*i}, v{ACC+2*i+1}")
        for i in range(4): a(f"v_cvt_pk_bf16_f32 v{RC+8+i}, v{B8+2*i}, v{B8+2*i+1}")
        unpack(T, RC, 12); unpack(160, RES, 12)
        for i in range(0, 24, 2): a(pk("add", T + i, T + i, 160 + i))
        for i in range(3):
            for rb in range(2):
                o = RC + i * 4 + rb * 2
                for h in range(2): a(f"v_cvt_pk_bf16_f32 v{o+h}, v{T+i*8+rb*4+2*h}, v{T+i*8+rb*4+2*h+1}")
                if i < 2: a(f"buffer_store_dwordx2 {vr(o,2)}, v{26+rb}, s[56:59], s49 offen offset:{i*32}")
                else: a(f"buffer_store_dwordx2 {vr(o,2)}, v{28+rb}, s[56:59], s48 offen offset:256")
        if PROF: a("s_waitcnt vmcnt(0)")
        prof_stamp(a, 9, 21); prof_real(a, 11, 21)
    return early, late, main

def gen_kb():
    a = Asm()
    vm = VmTrack(a)
    common_prologue(a, 256, "L_kb_end")
    a("s_load_dwordx2 s[10:11], s[0:1], 80")
    a("s_load_dwordx4 s[76:79], s[0:1], 32")
    a("s_load_dwordx4 s[80:83], s[0:1], 48")
    a("s_load_dwordx2 s[84:85], s[0:1], 64")
    a("s_load_dwordx2 s[86:87], s[0:1], 0")
    if TOPPF:
        for _ in range(top_prefetch(a, "L_kb_pf0", "L_kb_end", 36, 254)): vm.op("PF")
    a.label("L_kb_pf0")
    early, late, main = k5_parts(a, vm, 116)
    Z1 = k4_body(a, vm, True, hook_late=early, hook_end=late)
    assert Z1 == 116
    prof_real(a, 15, 1)
    main()
    a.label("L_kb_end")
    a("s_endpgm")
    return a.text(), dict(vgpr=256, agpr=216, grid=256, block=256, lds=160 * 1024)
```

```python
import sys, math
from asmlib import *

S, D, H, DH, F, FH = 2048, 576, 32, 18, 4608, 2304
QKVT_OFF = 0
O_OFF = 7077888
H_OFF = 9437184
Z1_OFF = 11796480
Z2T_OFF = 21233664
U_OFF = 30670848
CS_OFF = 40108032
WP_OFF = 39 << 20
WSPP_OFF = Z1_OFF
WOP_OFF = (177 << 18)
FL_OFF = 47 << 20
def wp_unit(z, ks, nb):
    return (0 if z == 2 else 162) + 54 * (nb // 3) + ks * 3 + nb % 3
QSCALE = (DH ** -0.5) * math.log2(math.e)

def common_prologue(a, nwg, end_label):
    a(f"s_cmp_ge_u32 s2, {nwg}")
    a(f"s_cbranch_scc1 {end_label}")
    a("v_lshrrev_b32 v1, 6, v0")
    a("s_nop 0")
    a("v_readfirstlane_b32 s12, v1")
    a("v_and_b32 v1, 63, v0")
    a("v_and_b32 v2, 15, v0")
    a("v_bfe_u32 v3, v0, 4, 2")

def dma_voffsets(a, vbase, ninstr, cpr, ldw_bytes, vt):
    m, sh = magic_div(cpr, ninstr * 64)
    for i in range(ninstr):
        a(f"v_add_u32 v{vt}, {i*64}, v1")
        a(f"v_mul_u32_u24 v{vt+1}, {m}, v{vt}")
        a(f"v_lshrrev_b32 v{vt+1}, {sh}, v{vt+1}")
        a(f"v_mul_u32_u24 v{vt+2}, {cpr}, v{vt+1}")
        a(f"v_sub_u32 v{vt+2}, v{vt}, v{vt+2}")
        a(f"v_bfe_u32 v{vt+3}, v{vt+1}, 2, 2")
        a(f"v_lshlrev_b32 v{vt+3}, 3, v{vt+3}")
        a(f"v_lshrrev_b32 v{vt}, 4, v{vt+1}")
        a(f"v_lshl_add_u32 v{vt+3}, v{vt}, 2, v{vt+3}")
        a(f"v_and_b32 v{vt}, 3, v{vt+1}")
        a(f"v_add_u32 v{vt+3}, v{vt+3}, v{vt}")
        a(f"v_mul_u32_u24 v{vt+3}, {ldw_bytes}, v{vt+3}")
        a(f"v_lshl_add_u32 v{vbase+i}, v{vt+2}, 4, v{vt+3}")

def bf16r(a, v):
    a(f"v_cvt_pk_bf16_f32 v{v}, v{v}, v{v}")
    a(f"v_lshlrev_b32 v{v}, 16, v{v}")

def layernorm_regs(a, xbase, nrb, nreg, vt, sones, ncols):
    a(f"v_xor_b32 v{vt+12}, 16, v1")
    a(f"v_lshlrev_b32 v{vt+12}, 2, v{vt+12}")
    a(f"v_xor_b32 v{vt+13}, 32, v1")
    a(f"v_lshlrev_b32 v{vt+13}, 2, v{vt+13}")
    for rb in range(nrb):
        xb = xbase + rb * nreg
        for i in range(4):
            a(f"v_mov_b32 v{vt+i}, 0")
        for i in range(nreg):
            a(f"v_dot2_f32_bf16 v{vt+(i&1)}, v{xb+i}, s{sones}, v{vt+(i&1)}")
            a(f"v_dot2_f32_bf16 v{vt+2+(i&1)}, v{xb+i}, v{xb+i}, v{vt+2+(i&1)}")
        a("s_nop 3")
        a(f"v_add_f32 v{vt}, v{vt}, v{vt+1}")
        a(f"v_add_f32 v{vt+2}, v{vt+2}, v{vt+3}")
        for x in (12, 13):
            a(f"ds_bpermute_b32 v{vt+1}, v{vt+x}, v{vt}")
            a(f"ds_bpermute_b32 v{vt+3}, v{vt+x}, v{vt+2}")
            a("s_waitcnt lgkmcnt(0)")
            a(f"v_add_f32 v{vt}, v{vt}, v{vt+1}")
            a(f"v_add_f32 v{vt+2}, v{vt+2}, v{vt+3}")
        inv = f32bits(1.0 / ncols)
        a(f"v_mul_f32 v{vt}, {inv:#x}, v{vt}")
        a(f"v_mul_f32 v{vt+2}, {inv:#x}, v{vt+2}")
        a(f"v_fma_f32 v{vt+2}, -v{vt}, v{vt}, v{vt+2}")
        a(f"v_max_f32 v{vt+2}, 0, v{vt+2}")
        bf16r(a, vt)
        bf16r(a, vt + 2)
        a(f"v_add_f32 v{vt+2}, {f32bits(1e-5):#x}, v{vt+2}")
        bf16r(a, vt + 2)
        a(f"v_sqrt_f32 v{vt+2}, v{vt+2}")
        a("s_nop 0")
        bf16r(a, vt + 2)
        a(f"v_rcp_f32 v{vt+4}, v{vt+2}")
        a("s_nop 0")
        a(f"v_mov_b32 v{vt+5}, v{vt+4}")
        a(f"v_mul_f32 v{vt+6}, v{vt}, v{vt+4}")
        a(f"v_sub_f32 v{vt+6}, 0, v{vt+6}")
        a(f"v_mov_b32 v{vt+7}, v{vt+6}")
        for i in range(nreg):
            t = vt + 8 + 2 * (i & 1)
            a(f"v_lshlrev_b32 v{t}, 16, v{xb+i}")
            a(f"v_and_b32 v{t+1}, 0xffff0000, v{xb+i}")
            a(f"v_pk_fma_f32 v[{t}:{t+1}], v[{t}:{t+1}], v[{vt+4}:{vt+5}], v[{vt+6}:{vt+7}]")
            a(f"v_cvt_pk_bf16_f32 v{xb+i}, v{t}, v{t+1}")


import os
PROF = bool(os.environ.get("PROF"))
PROF_OFF = 60 << 20
PROF_K = [0]
def prof_init(a, wsreg=8):
    if not PROF: return
    srd(a, 88, wsreg, wsreg + 1, 1 << 19, off_imm=PROF_OFF + PROF_K[0] * (1 << 19))
    a("s_lshl_b32 s92, s2, 4")
    a("s_add_u32 s92, s92, s12")
    a("s_lshl_b32 s92, s92, 6")
def prof_stamp(a, idx, vtmp):
    if not PROF: return
    a("s_memtime s[94:95]")
    a("s_waitcnt lgkmcnt(0)")
    a(f"v_mov_b32 v{vtmp}, s94")
    a(f"buffer_store_dword v{vtmp}, off, s[88:91], s92 offset:{idx*4}")

def prof_real(a, idx, vtmp):
    if not PROF: return
    a("s_memrealtime s[94:95]")
    a("s_waitcnt lgkmcnt(0)")
    a(f"v_mov_b32 v{vtmp}, s94")
    a(f"buffer_store_dword v{vtmp}, off, s[88:91], s92 offset:{idx*4}")

def xlane_sum_g(a, v, t):
    a(f"v_mov_b32 v{t}, v{v}")
    a("s_nop 1")
    a(f"v_permlane32_swap_b32 v{v}, v{t}")
    a("s_nop 1")
    a(f"v_add_f32 v{v}, v{v}, v{t}")
    a(f"v_mov_b32 v{t}, v{v}")
    a("s_nop 1")
    a(f"v_permlane16_swap_b32 v{v}, v{t}")
    a("s_nop 1")
    a(f"v_add_f32 v{v}, v{v}, v{t}")

def ln_scalars(a, pairs, n):
    inv = f32bits(1.0 / n)
    for s, q in pairs:
        a(f"v_mul_f32 v{s}, {inv:#x}, v{s}")
        a(f"v_mul_f32 v{q}, {inv:#x}, v{q}")
    for s, q in pairs:
        a(f"v_fma_f32 v{q}, -v{s}, v{s}, v{q}")
    for s, q in pairs:
        a(f"v_max_f32 v{q}, 0, v{q}")
    for s, q in pairs:
        bf16r(a, s); bf16r(a, q)
    for s, q in pairs:
        a(f"v_add_f32 v{q}, {f32bits(1e-5):#x}, v{q}")
    for s, q in pairs:
        bf16r(a, q)
    for s, q in pairs:
        a(f"v_sqrt_f32 v{q}, v{q}")
    a("s_nop 0")
    for s, q in pairs:
        bf16r(a, q)
    for s, q in pairs:
        a(f"v_rcp_f32 v{q}, v{q}")
    a("s_nop 0")
    for s, q in pairs:
        a(f"v_mul_f32 v{s}, v{s}, v{q}")
    for s, q in pairs:
        a(f"v_sub_f32 v{s}, 0, v{s}")

GK0 = -2.0 * 0.7978845608028654 * math.log2(math.e)
GK1 = GK0 * 0.044715
def gelu_quad(a, x, t, sK1, vK0, sONE):
    for h in (0, 2):
        a(f"v_pk_mul_f32 v[{t+h}:{t+h+1}], v[{x+h}:{x+h+1}], v[{x+h}:{x+h+1}]")
    for h in (0, 2):
        a(f"v_pk_fma_f32 v[{t+h}:{t+h+1}], v[{t+h}:{t+h+1}], s[{sK1}:{sK1+1}], v[{vK0}:{vK0+1}]")
    for h in (0, 2):
        a(f"v_pk_mul_f32 v[{t+h}:{t+h+1}], v[{t+h}:{t+h+1}], v[{x+h}:{x+h+1}]")
    for j in range(4):
        a(f"v_exp_f32 v{t+j}, v{t+j}")
    for h in (0, 2):
        a(f"v_pk_add_f32 v[{t+h}:{t+h+1}], v[{t+h}:{t+h+1}], s[{sONE}:{sONE+1}]")
    for j in range(4):
        a(f"v_rcp_f32 v{t+j}, v{t+j}")
    for h in (0, 2):
        a(f"v_pk_mul_f32 v[{x+h}:{x+h+1}], v[{x+h}:{x+h+1}], v[{t+h}:{t+h+1}]")

def bcast_sel(reg, pos, n):
    base = reg & ~1
    lo = [0] * n; hi = [1] * n
    lo[pos] = reg & 1; hi[pos] = reg & 1
    return f"v[{base}:{base+1}]", f"op_sel:[{','.join(map(str,lo))}] op_sel_hi:[{','.join(map(str,hi))}]"

def row16_sum(a, regs):
    for sh in (8, 4, 2, 1):
        for v in regs:
            a(f"v_add_f32_dpp v{v}, v{v}, v{v} row_ror:{sh} row_mask:0xf bank_mask:0xf")

def pk(op, dst, *srcs):
    txt = []; lo = []; hi = []
    for x in srcs:
        if isinstance(x, int):
            txt.append(f"v[{x}:{x+1}]"); lo.append(0); hi.append(1)
        elif x[0] == 'b':
            b = x[1] & ~1
            txt.append(f"v[{b}:{b+1}]"); lo.append(x[1] & 1); hi.append(x[1] & 1)
        else:
            txt.append(f"s[{x[1]}:{x[1]+1}]"); lo.append(0); hi.append(1)
    sel = ""
    if any(lo) or not all(hi):
        sel = f" op_sel:[{','.join(map(str,lo))}] op_sel_hi:[{','.join(map(str,hi))}]"
    return f"v_pk_{op}_f32 v[{dst}:{dst+1}], " + ", ".join(txt) + sel

class Buf:
    def __init__(self): self.l = []
    def __call__(self, s):
        for ln in s.split("\n"):
            if ln.strip(): self.l.append(ln.strip())

def icost(s):
    if callable(s): return 6
    op = s.split()[0]
    if op in ("v_exp_f32", "v_rcp_f32", "v_sqrt_f32", "v_rsq_f32"): return 8
    if op.startswith("v_"): return 4
    if op.startswith("ds_"): return 5
    if op.startswith("buffer_"): return 5
    if op == "s_nop": return 2 + int(s.split()[1])
    return 2

def ln_ms(a, pairs, n):
    inv = f32bits(1.0 / n)
    for s, q in pairs:
        a(f"v_mul_f32 v{s}, {inv:#x}, v{s}")
        a(f"v_mul_f32 v{q}, {inv:#x}, v{q}")
    for s, q in pairs:
        a(f"v_fma_f32 v{q}, -v{s}, v{s}, v{q}")
    for s, q in pairs:
        a(f"v_max_f32 v{q}, 0, v{q}")
    for s, q in pairs:
        bf16r(a, s); bf16r(a, q)
    for s, q in pairs:
        a(f"v_add_f32 v{q}, {f32bits(1e-5):#x}, v{q}")
        a(f"v_sub_f32 v{s}, 0, v{s}")
    for s, q in pairs:
        bf16r(a, q)
    for s, q in pairs:
        a(f"v_sqrt_f32 v{q}, v{q}")
    a("s_nop 0")
    for s, q in pairs:
        bf16r(a, q)

CPF = int(os.environ.get("CPF", "1"))
CPS = int(os.environ.get("CPS", "6"))
CPM = os.environ.get("CPM", "abcde")
_pfn = [0]
def code_prefetch(a, start, end, sreg, vt, sidx, lane=1, nsl=32):
    if not CPF: return 0
    a(f"s_getpc_b64 s[{sreg}:{sreg+1}]")
    _pfn[0] += 1
    lab = f"L_pc_{_pfn[0]}"
    a.label(lab)
    a(f"s_add_u32 s{sreg}, s{sreg}, {start}-{lab}")
    a(f"s_addc_u32 s{sreg+1}, s{sreg+1}, -1" if False else f"s_addc_u32 s{sreg+1}, s{sreg+1}, 0")
    a(f"v_mul_u32_u24 v{vt}, {nsl}, v{lane}")
    a(f"v_add_u32 v{vt}, s{sidx}, v{vt}")
    a(f"v_lshlrev_b32 v{vt}, {CPS}, v{vt}")
    a(f"v_mov_b32 v{vt+1}, {end}-{start}-4")
    a(f"v_cmp_gt_u32 vcc, v{vt+1}, v{vt}")
    a(f"s_and_saveexec_b64 s[{sreg+2}:{sreg+3}], vcc")
    a(f"global_load_dword v{vt+1}, v{vt}, s[{sreg}:{sreg+1}]")
    a(f"s_mov_b64 exec, s[{sreg+2}:{sreg+3}]")
    return 1
```

```python
from asmlib import *
from gen_common import *
PFG = int(os.environ.get('PFG', '0'))
NT = os.environ.get('K1NT', '')
def gen_k1():
    a = Asm()
    vm = VmTrack(a)
    SL = 32768; RS = 131072
    XF = 32; WF = 64; ACC = 96; ST = 212; RR = 176; NN = 192; CSR = 208; ONE = 160
    common_prologue(a, 256, "L_k1_end")
    a("s_load_dwordx4 s[4:7], s[0:1], 0")
    a("s_load_dwordx2 s[8:9], s[0:1], 80")
    a("s_cmp_ge_u32 s2, 224")
    a("s_cbranch_scc1 L_k1_colsum")
    a("s_and_b32 s13, s2, 7")
    a("s_lshr_b32 s14, s2, 3")
    a("s_lshr_b32 s10, s13, 1")
    a("s_lshl_b32 s10, s10, 2")
    a("s_and_b32 s15, s14, 3")
    a("s_add_u32 s10, s10, s15")
    a("s_and_b32 s11, s13, 1")
    a("s_mul_i32 s11, s11, 7")
    a("s_lshr_b32 s15, s14, 2")
    a("s_add_u32 s11, s11, s15")
    a("s_lshr_b32 s28, s12, 1")
    a("s_and_b32 s29, s12, 1")
    a("s_mov_b32 s30, 0x3f803f80")
    a("v_lshrrev_b32 v16, 3, v1")
    a("v_and_b32 v17, 7, v1")
    a("v_xor_b32 v17, v17, v16")
    a("v_mul_u32_u24 v4, 1152, v16")
    a("v_lshl_add_u32 v4, v17, 4, v4")
    a("v_bfe_u32 v16, v1, 1, 3")
    a("v_xor_b32 v16, v16, v3")
    a("v_and_b32 v17, 1, v1")
    a("v_lshl_or_b32 v16, v16, 1, v17")
    a("v_mul_u32_u24 v5, 3456, v3")
    a("v_lshlrev_b32 v16, 4, v16")
    a("v_xor_b32 v17, 128, v16")
    a("v_add_u32 v6, v5, v17")
    a("v_add_u32 v5, v5, v16")
    a("s_lshl_b32 s31, s10, 7")
    a("s_lshl_b32 s15, s12, 5")
    a("s_add_u32 s31, s31, s15")
    a("s_mul_i32 s31, s31, 1152")
    a("s_lshl_b32 s32, s28, 5")
    a("s_lshl_b32 s15, s29, 2")
    a("s_add_u32 s32, s32, s15")
    a("s_mul_i32 s32, s32, 3456")
    a("s_lshl_b32 s15, s11, 8")
    a("s_add_u32 s32, s32, s15")
    a("s_lshl_b32 s33, s12, 12")
    a("s_add_u32 s34, s33, 16384")
    a("s_waitcnt lgkmcnt(0)")
    srd(a, 16, 4, 5, 2048 * 1152)
    srd(a, 20, 6, 7, 576 * 3456)
    prof_init(a); prof_real(a, 14, 31); prof_stamp(a, 8, 31)
    def dma(c):
        def x(i):
            a(f"s_add_u32 m0, s33, {(c%5)*SL + i*1024}")
            a(f"s_add_u32 s35, s31, {i*8*1152 + c*128}")
            a("buffer_load_dwordx4 v4, s[16:19], s35 offen" + NT + " lds")
            vm.op(f"C{c}")
        def w(i):
            a(f"s_add_u32 m0, s34, {(c%5)*SL + i*1024}")
            a(f"s_add_u32 s35, s32, {(64*c + 8*i)*3456}")
            a(f"buffer_load_dwordx4 v{5+(i&1)}, s[20:23], s35 offen" + NT + " lds")
            vm.op(f"C{c}")
        u = []
        for i in range(4):
            u.append(lambda i=i: x(i)); u.append(lambda i=i: w(i))
        return u
    for c in range(4):
        for f in dma(c): f()
    srd(a, 24, 8, 9, 1728 * 4096, off_imm=QKVT_OFF)
    a("s_lshl_b32 s15, s14, 2")
    a("s_add_u32 s15, s15, s12")
    if "a" in CPM:
        for _ in range(code_prefetch(a, "L_k1_pf1", "L_k2_end" if "b" in CPM else "L_k1_colsum", 44, 236, 15, nsl=112)): vm.op("PF")
    a.label("L_k1_pf1")
    if os.environ.get("TLBPF"):
        G = int(os.environ["TLBPF"])
        a(f"v_mul_u32_u24 v17, {G}, v0")
        for j in range((2359296 // G + 255) // 256):
            a(f"s_mov_b32 s15, {j*256*G}")
            a("buffer_load_dword v30, v17, s[16:19], s15 offen"); vm.op("PF")
            a("buffer_load_dword v30, v17, s[20:23], s15 offen"); vm.op("PF")
    if PFG:
        G = PFG; per = 1792 // G
        a("s_lshl_b32 s15, s14, 8")
        a("v_add_u32 v16, s15, v0")
        a("s_lshr_b32 s15, s13, 1")
        a("s_mul_i32 s15, s15, 589824")
        nx = 589824 // G
        for j in range((nx + 7167) // 7168):
            a(f"v_add_u32 v17, {7168*j}, v16")
            a(f"v_cmp_gt_u32 vcc, {nx}, v17")
            a(f"v_mul_u32_u24 v17, {G}, v17")
            a("v_cndmask_b32 v17, -1, v17, vcc")
            a("buffer_load_dword v30, v17, s[16:19], s15 offen"); vm.op("PF")
        a("s_and_b32 s15, s13, 1")
        a("s_mul_i32 s15, s15, 1792")
        nw = 576 * per
        m, sh = magic_div(per, (nw + 7167) // 7168 * 7168)
        for j in range((nw + 7167) // 7168):
            a(f"v_add_u32 v17, {7168*j}, v16")
            a(f"v_mul_u32_u24 v18, {m}, v17")
            a(f"v_lshrrev_b32 v18, {sh}, v18")
            a(f"v_mul_u32_u24 v17, {G}, v17")
            a(f"v_mul_u32_u24 v18, {3456-1792}, v18")
            a("v_add_u32 v17, v17, v18")
            a("buffer_load_dword v30, v17, s[20:23], s15 offen"); vm.op("PF")
    a("v_and_b32 v16, 7, v2")
    a("v_xor_b32 v16, v16, v3")
    a("v_lshlrev_b32 v16, 4, v16")
    a("v_lshl_add_u32 v16, v2, 7, v16")
    a("s_lshl_b32 s15, s28, 13")
    a("s_lshl_b32 s35, s29, 12")
    a("s_add_u32 s36, s15, s35")
    a("s_xor_b32 s37, s36, 4096")
    for pair in range(2):
        for kk in range(2):
            a(f"v_xor_b32 v17, {kk*64}, v16")
            a(f"v_add_u32 v{8+pair*2+kk}, s{36+pair}, v17")
            a(f"v_add_u32 v{12+pair*2+kk}, 0x10000, v{8+pair*2+kk}")
            a(f"v_add_u32 v{164+pair*2+kk}, 0x20000, v{8+pair*2+kk}")
    a("v_lshrrev_b32 v16, 2, v1")
    a("v_and_b32 v17, 7, v16")
    a("v_lshlrev_b32 v16, 8, v16")
    a("v_and_b32 v18, 3, v1")
    a("v_lshl_add_u32 v16, v18, 3, v16")
    a("v_add_u32 v16, 16384, v16")
    a("s_lshl_b32 s15, s29, 2")
    a("s_lshl_b32 s35, s28, 1")
    a("s_add_u32 s38, s15, s35")
    for nb in range(4):
        a(f"s_xor_b32 s15, s38, {nb}")
        a("v_xor_b32 v18, s15, v17")
        a(f"v_lshl_add_u32 v{20+nb}, v18, 5, v16")
        a(f"v_add_u32 v{24+nb}, 0x10000, v{20+nb}")
        a(f"v_add_u32 v{168+nb}, 0x20000, v{20+nb}")
    for i in range(4):
        a(f"v_mov_b32 v{ONE+i}, 0x3f803f80")
    def reads(q):
        slot = (q >> 1) % 5; kk = q & 1; sp = slot >> 1; so = (slot & 1) * SL
        xf = XF + (q & 1) * 16; wf = WF + (q & 1) * 16
        r = []
        for i in range(4):
            r.append(f"ds_read_b128 {vr(xf+i*4)}, v{[8,12,164][sp]+(i>>1)*2+kk} offset:{so + (i&1)*2048}")
            for rd in range(2):
                r.append(f"ds_read_b64_tr_b16 v[{wf+i*4+rd*2}:{wf+i*4+rd*2+1}], v{[20,24,168][sp]+i} offset:{so + kk*8192 + rd*4096}")
        return r
    pend = []
    def kstep(q, pace):
        xf = XF + (q & 1) * 16; wf = WF + (q & 1) * 16
        rd = reads(q + 1) if q < 17 else []
        mf = []
        for nb in range(4):
            for rb in range(4):
                acc = ACC + (rb * 4 + nb) * 4
                mf.append(f"v_mfma_f32_16x16x32_bf16 {vr(acc)}, {vr(xf+rb*4)}, {vr(wf+nb*4)}, {vr(acc) if q else 0}")
        for b in range(2):
            mf.append(f"v_mfma_f32_16x16x32_bf16 {vr(ST+b*4)}, {vr(xf+b*4)}, {vr(ONE)}, {vr(ST+b*4) if q else 0}")
            mf.append(f"v_mfma_f32_16x16x32_bf16 {vr(ST+8+b*4)}, {vr(xf+b*4)}, {vr(xf+b*4)}, {vr(ST+8+b*4) if q else 0}")
            mf.append(f"v_mfma_f32_16x16x32_bf16 {vr(ST+16+b*4)}, {vr(ONE)}, {vr(wf+b*4)}, {vr(ST+16+b*4) if q else 0}")
        if q == 17: mf = mf[16:] + mf[:16]
        for slot, m_ in enumerate(mf):
            a(m_)
            if rd: a(rd.pop(0))
            if slot % pace == 1 and pend: pend.pop(0)()
    vm.wait("C0")
    a("s_barrier")
    prof_stamp(a, 9, 31)
    for r in reads(0): a(r)
    pend.extend(dma(4))
    for q in range(18):
        if q & 1 and q < 17:
            c = (q + 1) // 2
            vm.wait(f"C{c}")
            a("s_waitcnt lgkmcnt(0)")
            a("s_barrier")
            if c + 4 < 9: pend.extend(dma(c + 4))
        else:
            a("s_waitcnt lgkmcnt(0)")
        kstep(q, 2 if q == 0 else 5)
        assert q & 1 or not pend
    prof_stamp(a, 10, 31)
    a("v_and_b32 v16, 3, v2")
    for b in range(2):
        for j in range(1, 4):
            a(f"v_cmp_eq_u32 vcc, {j}, v16")
            a(f"v_cndmask_b32 v{ST+b*4}, v{ST+b*4}, v{ST+b*4+j}, vcc")
            a(f"v_cndmask_b32 v{ST+8+b*4}, v{ST+8+b*4}, v{ST+8+b*4+j}, vcc")
    ln_scalars(a, [(ST, ST + 8), (ST + 4, ST + 12)], 576)
    a("s_lshl_b32 s15, s28, 8")
    a("s_lshl_b32 s35, s29, 7")
    a("s_add_u32 s15, s15, s35")
    a("v_lshlrev_b32 v16, 2, v2")
    a(f"v_add_u32 v16, {RS}, v16")
    a("v_add_u32 v17, s15, v16")
    a("v_lshrrev_b32 v18, 2, v2")
    a("v_cmp_eq_u32 vcc, v18, v3")
    a(f"v_mov_b32 v18, {RS + 1536}")
    a("v_cndmask_b32 v17, v18, v17, vcc")
    a("s_lshl_b32 s15, s29, 8")
    a("s_lshl_b32 s35, s28, 7")
    a("s_add_u32 s15, s15, s35")
    a("v_add_u32 v18, s15, v16")
    for b in range(2):
        a(f"ds_write_b32 v17, v{ST+8+4*b} offset:{b*64}")
        a(f"ds_write_b32 v17, v{ST+4*b} offset:{512+b*64}")
        a(f"ds_write_b32 v18, v{ST+16+4*b} offset:{1024+b*64}")
    a("s_lshl_b32 s15, s28, 8")
    a("s_lshl_b32 s35, s29, 7")
    a("s_add_u32 s15, s15, s35")
    a("s_xor_b32 s35, s15, 128")
    a("v_lshlrev_b32 v17, 4, v3")
    a(f"v_add_u32 v17, {RS}, v17")
    a("v_add_u32 v19, s35, v17")
    a("v_add_u32 v17, s15, v17")
    a("v_xor_b32 v7, 128, v18")
    a("s_lshl_b32 s39, s11, 7")
    a("s_lshl_b32 s15, s29, 6")
    a("s_add_u32 s39, s39, s15")
    a("s_cmp_lt_u32 s39, 576")
    a(f"s_mov_b32 s40, {f32bits(QSCALE):#x}")
    a("s_cselect_b32 s40, s40, 1.0")
    a("s_waitcnt lgkmcnt(0)")
    a("s_barrier")
    for rb in range(4):
        a(f"ds_read_b128 {vr(RR+rb*4)}, v{17 if rb < 2 else 19} offset:{(rb&1)*64}")
        a(f"ds_read_b128 {vr(NN+rb*4)}, v{17 if rb < 2 else 19} offset:{512+(rb&1)*64}")
        a(f"ds_read_b32 v{CSR+rb}, v{18 if rb < 2 else 7} offset:{1024+(rb&1)*64}")
    a("s_mul_i32 s41, s12, 9216")
    a("v_mul_u32_u24 v16, 144, v2")
    a("v_lshl_add_u32 v16, v3, 3, v16")
    a("v_add_u32 v16, s41, v16")
    a(f"s_mul_i32 s15, s28, {32*144}")
    a(f"s_sub_u32 s35, {32*144}, s15")
    a("s_lshl_b32 s36, s29, 6")
    a("s_xor_b32 s37, s36, 64")
    for pn in range(2):
        for pr in range(2):
            a(f"s_add_u32 s42, s{15 if pn == 0 else 35}, s{36+pr}")
            a(f"v_add_u32 v{8+pn*2+pr}, s42, v16")
    a("s_waitcnt lgkmcnt(0)")
    for i in range(32):
        a(f"v_mul_f32 v{RR+i}, s40, v{RR+i}")
    for nb in range(4):
        cs, sel = bcast_sel(CSR + nb, 1, 2)
        for rb in range(4):
            x = ACC + (rb * 4 + nb) * 4
            t = XF + (rb & 1) * 8
            for h in (0, 2):
                a(f"v_pk_mul_f32 v[{t+h}:{t+h+1}], v[{NN+rb*4+h}:{NN+rb*4+h+1}], {cs} {sel}")
            for h in (0, 2):
                a(f"v_pk_fma_f32 v[{x+h}:{x+h+1}], v[{x+h}:{x+h+1}], v[{RR+rb*4+h}:{RR+rb*4+h+1}], v[{t+h}:{t+h+1}]")
            for h in (0, 2):
                a(f"v_cvt_pk_bf16_f32 v{t+4+h//2}, v{x+h}, v{x+h+1}")
            a(f"ds_write_b64 v{8+(nb>>1)*2+(rb>>1)}, v[{t+4}:{t+5}] offset:{(nb&1)*16*144 + (rb&1)*32}")
    prof_stamp(a, 11, 31)
    a("v_lshrrev_b32 v16, 3, v1")
    a("v_and_b32 v17, 7, v1")
    a("v_mul_u32_u24 v18, 144, v16")
    a("v_lshl_add_u32 v18, v17, 4, v18")
    a("v_add_u32 v18, s41, v18")
    a("v_add_u32 v16, s39, v16")
    a("v_lshlrev_b32 v16, 12, v16")
    a("v_lshl_add_u32 v16, v17, 4, v16")
    a("s_lshl_b32 s15, s10, 8")
    a("s_lshl_b32 s35, s28, 7")
    a("s_add_u32 s15, s15, s35")
    a("v_add_u32 v16, s15, v16")
    a("s_waitcnt lgkmcnt(0)")
    for i in range(8):
        a(f"ds_read_b128 {vr(ACC+i*4)}, v18 offset:{i*8*144}")
    for i in range(8):
        a(f"s_waitcnt lgkmcnt({7-i})")
        a(f"buffer_store_dwordx4 {vr(ACC+i*4)}, v16, s[24:27], 0 offen")
        if i < 7: a("v_add_u32 v16, 0x8000, v16")
    if PROF:
        a("s_waitcnt vmcnt(0)")
    prof_stamp(a, 12, 31); prof_stamp(a, 13, 31); prof_real(a, 15, 31)
    a("s_endpgm")
    a.label("L_k1_colsum")
    a("s_load_dwordx2 s[10:11], s[0:1], 32")
    a("s_sub_u32 s13, s2, 224")
    a("s_and_b32 s14, s13, 15")
    a("s_mul_i32 s28, s14, 288")
    a("s_add_u32 s29, s28, 4608")
    a("s_cmp_lt_u32 s13, 16")
    a("s_cselect_b32 s28, s29, s28")
    a(f"s_cselect_b32 s31, 0, {162*1024}")
    for nb in range(9):
        a(f"s_add_u32 s{40+nb}, s31, {wp_unit(2, 0, nb)*1024}")
    a("s_mov_b32 s29, 3072")
    a("s_mul_i32 s30, s14, 331776")
    a("s_mul_i32 s31, s12, s29")
    a("s_add_u32 s30, s30, s31")
    a("s_lshl_b32 s29, s29, 2")
    m, sh = magic_div(18, 576)
    for i in range(9):
        a(f"v_add_u32 v16, {64*i}, v1")
        a(f"v_mul_u32_u24 v17, {m}, v16")
        a(f"v_lshrrev_b32 v17, {sh}, v17")
        a(f"v_lshlrev_b32 v16, 4, v16")
        a(f"v_mul_u32_u24 v17, 8928, v17")
        a(f"v_add_u32 v{5+i}, v17, v16")
    a("s_mul_i32 s32, s12, 36864")
    a("s_mul_i32 s33, s12, 294912")
    a("s_add_u32 s33, s33, s28")
    a("v_lshrrev_b32 v14, 2, v1")
    a("v_mul_u32_u24 v14, 288, v14")
    a("v_and_b32 v16, 3, v1")
    a("v_lshl_add_u32 v14, v16, 3, v14")
    a("v_add_u32 v14, s32, v14")
    a("v_lshlrev_b32 v4, 4, v1")
    for i in range(4): a(f"v_mov_b32 v{20+i}, 0x3f803f80")
    for i in range(36): a(f"v_mov_b32 v{32+i}, 0")
    a("s_waitcnt lgkmcnt(0)")
    srd(a, 16, 10, 11, 576 * 9216)
    srd(a, 20, 8, 9, 4608 * 4, off_imm=CS_OFF)
    srd(a, 24, 8, 9, 16 * 324 * 1024, off_imm=WP_OFF)
    def hdma(n):
        a(f"s_add_u32 s15, s33, {n*4*294912}")
        for i in range(9):
            a(f"s_add_u32 m0, s32, {(n%4)*9216 + i*1024}")
            a("s_nop 0")
            a(f"buffer_load_dwordx4 v{5+i}, s[16:19], s15 offen lds")
    for n in range(4): hdma(n)
    for n in range(5):
        if n == 4:
            a("s_cmp_ge_u32 s12, 2")
            a("s_cbranch_scc1 L_k1_h5")
        a(f"s_waitcnt vmcnt({[27, 36, 36, 36, 36][n]})")
        fb = 72 + (n & 1) * 36
        for nb in range(9):
            for rd in range(2):
                a(f"ds_read_b64_tr_b16 v[{fb+nb*4+rd*2}:{fb+nb*4+rd*2+1}], v14 offset:{(n%4)*9216 + rd*16*288 + nb*32}")
        a("s_waitcnt lgkmcnt(0)")
        if n == 0: hdma(4)
        for nb in range(9):
            a(f"v_mfma_f32_16x16x32_bf16 {vr(32+nb*4)}, v[20:23], {vr(fb+nb*4)}, {vr(32+nb*4)}")
            a(f"s_add_u32 s15, s30, s{40+nb}")
            a(f"buffer_store_dwordx4 {vr(fb+nb*4)}, v4, s[24:27], s15 offen")
        a("s_add_u32 s30, s30, s29")
    a.label("L_k1_h5")
    a("s_mul_i32 s15, s12, 576")
    a("v_lshlrev_b32 v7, 2, v2")
    a("v_add_u32 v7, s15, v7")
    a("v_add_u32 v7, 147456, v7")
    a("s_nop 7")
    for nb in range(9):
        a(f"ds_write_b32 v7, v{32+nb*4} offset:{nb*64}")
    a("s_waitcnt lgkmcnt(0)")
    a("s_barrier")
    a("v_lshlrev_b32 v7, 2, v0")
    a("v_add_u32 v8, 147456, v7")
    for r in range(4):
        a(f"ds_read_b32 v{32+r}, v8 offset:{r*576}")
    a("s_waitcnt lgkmcnt(0)")
    a("v_add_f32 v32, v32, v33")
    a("v_add_f32 v34, v34, v35")
    a("v_add_f32 v32, v32, v34")
    a("v_mov_b32 v30, 0x7f000000")
    a("v_cmp_gt_u32 vcc, 144, v0")
    a("v_cndmask_b32 v7, v30, v7, vcc")
    a("s_lshl_b32 s14, s28, 1")
    a("buffer_store_dword v32, v7, s[20:23], s14 offen")
    a.label("L_k1_end")
    a("s_endpgm")
    return a.text(), dict(vgpr=240, agpr=0, grid=256, block=256, lds=163840)
```

```python
from asmlib import *
from gen_common import *
BUD = float(os.environ.get("K4BUD", "8"))
VPACE = int(os.environ.get("K4VP", "3"))
DLA = int(os.environ.get("K4D", "8"))
NPRO = int(os.environ.get("K4PRO", "7"))
class LgTrack:
    def __init__(self, a): self.a = a; self.ops = []; self.done = -1
    def op(self, tag): self.ops.append(tag)
    def wait(self, tag):
        idx = max(i for i, t in enumerate(self.ops) if t == tag)
        if idx <= self.done: return
        n = min(len(self.ops) - 1 - idx, 15)
        self.a(f"s_waitcnt lgkmcnt({n})")
        self.done = len(self.ops) - 1 - n
    def wait_all(self):
        self.a("s_waitcnt lgkmcnt(0)"); self.done = len(self.ops) - 1
    def completed(self, tag):
        return tag in self.ops[:self.done + 1]

def p3_body(a, vm, lg, vq):
    PB = 71680; OF = 0; WFA = 144; NBUF = 18; ACC = 32; RES = 52; T = 64; PV = 1
    a("s_and_b32 s71, s29, 7")
    a("s_lshr_b32 s72, s71, 1")
    a("s_mul_i32 s73, s72, 9")
    a("s_and_b32 s74, s71, 1")
    a("s_mul_i32 s75, s74, 5")
    a("s_add_u32 s73, s73, s75")
    a("s_lshr_b32 s75, s29, 3")
    a("s_lshl_b32 s75, s75, 2")
    a("s_lshl_b32 s71, s28, 3")
    a("s_add_u32 s71, s71, s75")
    a("s_add_u32 s71, s71, s12")
    a("s_mul_i32 s68, s12, 36")
    a("s_add_u32 s68, s68, s73")
    a("s_add_u32 s68, s68, 2592")
    a("s_lshl_b32 s68, s68, 10")
    a("s_mul_i32 s69, s12, 5120")
    a(f"s_add_u32 s69, s69, {PB}")
    a("s_mul_i32 s70, s71, 18432")
    a("v_add_u32 v8, 4096, v4")
    srd(a, 48, 10, 11, 128 * 18 * 1024, off_imm=O_OFF)
    srd(a, 56, 10, 11, 3240 * 1024, off_imm=WOP_OFF)
    pq = []
    def wround(t):
        def f(i):
            if t == 4:
                a("s_cmp_ge_u32 s12, 2")
                a(f"s_cbranch_scc1 L_p3_now{i}")
            if i % 4 == 0:
                a(f"s_add_u32 m0, s69, {t*20480 + i*1024}")
                a(f"s_add_u32 s35, s68, {t*4*36*1024}")
            if i < 4: a(f"buffer_load_dwordx4 v4, s[56:59], s35 offen offset:{i*1024} lds")
            else: a(f"buffer_load_dwordx4 v8, s[56:59], s35 offen lds")
            if t < 4: vm.op(f"PW{t}")
            else: a.label(f"L_p3_now{i}")
        return [(f"PW{t}", lambda i=i: f(i)) for i in range(5)]
    def oload(ks):
        if ks % 4 == 0: a(f"s_add_u32 s36, s70, {ks*1024}")
        a(f"buffer_load_dwordx4 {ar(OF+ks*4)}, v4, s[48:51], s36 offen offset:{(ks%4)*1024}"); vm.op(f"PO{ks}")
    for t in range(5):
        pq += wround(t)
        pq += [(f"PO{ks}", lambda ks=ks: oload(ks)) for ks in range(4 * t, min(4 * t + 4, 18))]
    for _ in range(int(os.environ.get("P3PRO", "18"))): pq.pop(0)[1]()
    def pneed(tag):
        while any(t_ == tag for t_, _ in pq): pq.pop(0)[1]()
        vm.wait(tag)
    srd(a, 60, 86, 87, 2048 * 1152)
    a("v_mul_u32_u24 v9, 1152, v2")
    a("v_lshl_add_u32 v9, v3, 3, v9")
    a(f"s_mul_i32 s38, s71, {16*1152}")
    a("s_lshl_b32 s37, s73, 5")
    a("s_add_u32 s38, s38, s37")
    def res(i):
        a(f"buffer_load_dwordx2 {vr(RES+2*i,2)}, v9, s[60:63], s38 offen offset:{i*32}"); vm.op("PR")
    pq += [("PR", lambda i=i: res(i)) for i in range(5)]
    srd(a, 24, 10, 11, 131072, off_imm=HS_OFF)
    a("v_lshlrev_b32 v10, 4, v2")
    a("v_lshl_add_u32 v10, v3, 28, v10")
    D = 8
    def read(u):
        ks, i = divmod(u, 5)
        if u % 20 == 0:
            pneed(f"PW{ks//4}" if ks < 16 else "PO16")
            a("s_barrier")
        pos = PB + ks * 5120 + i * 1024
        a(f"ds_read_b128 {ar(WFA + (u % NBUF) * 4)}, v{4 + (pos >> 16)} offset:{pos & 0xffff}")
        lg.op(f"P{u}")
    for u in range(D): read(u)
    prof_stamp(a, 1, PV)
    for u in range(90):
        ks, i = divmod(u, 5)
        if i == 0: pneed(f"PO{ks}")
        if u % 2 == 0: lg.wait(f"P{min(u+1, 89)}")
        a(f"v_mfma_f32_16x16x32_bf16 {vr(ACC+i*4)}, {ar(WFA + (u % NBUF) * 4)}, {ar(OF+ks*4)}, {vr(ACC+i*4) if ks else 0}")
        if u + D < 90: read(u + D)
        if pq: pq.pop(0)[1]()
    assert not pq
    prof_stamp(a, 2, PV)
    vm.wait("PR")
    S_ = 12
    for j in range(4): a(f"v_mov_b32 v{S_+j}, 0")
    for i in range(5):
        if i == 4:
            a("s_cmp_eq_u32 s74, 1")
            a("s_cbranch_scc1 L_p3_no5")
        x = ACC + i * 4; t = T + i * 8
        for h in range(2): a(f"v_cvt_pk_bf16_f32 v{t+h}, v{x+2*h}, v{x+2*h+1}")
        for h in range(2):
            a(f"v_lshlrev_b32 v{x+2*h}, 16, v{t+h}")
            a(f"v_and_b32 v{x+2*h+1}, 0xffff0000, v{t+h}")
            a(f"v_lshlrev_b32 v{t+2+2*h}, 16, v{RES+2*i+h}")
            a(f"v_and_b32 v{t+3+2*h}, 0xffff0000, v{RES+2*i+h}")
        for h in range(2): a(pk("add", x + 2 * h, x + 2 * h, t + 2 + 2 * h))
        for h in range(2): a(f"v_cvt_pk_bf16_f32 v{t+h}, v{x+2*h}, v{x+2*h+1}")
        a(f"s_add_u32 s36, s73, {i}")
        a("s_lshr_b32 s37, s36, 1")
        a("s_lshl_b32 s37, s37, 10")
        a("s_and_b32 s36, s36, 1")
        a("s_lshl_b32 s36, s36, 3")
        a("s_add_u32 s36, s36, s37")
        a("s_add_u32 s36, s36, s70")
        a(f"buffer_store_dwordx2 {vr(t,2)}, v4, s[16:19], s36 offen sc0 sc1")
        if i < 4: vm.op("PH")
    a.label("L_p3_no5")
    vm.op("PH")
    nw = len(vq)
    while vq: vq.pop(0)[1]()
    for i in range(5):
        if i == 4:
            a("s_cmp_eq_u32 s74, 1")
            a("s_cbranch_scc1 L_p3_no5b")
        x = ACC + i * 4; t = T + i * 8
        for h in range(2):
            a(f"v_lshlrev_b32 v{x+2*h}, 16, v{t+h}")
            a(f"v_and_b32 v{x+2*h+1}, 0xffff0000, v{t+h}")
        for h in range(2):
            a(pk("add", S_, S_, x + 2 * h))
            a(pk("fma", S_ + 2, x + 2 * h, x + 2 * h, S_ + 2))
    a.label("L_p3_no5b")
    a(f"v_add_f32 v{S_}, v{S_}, v{S_+1}")
    a(f"v_add_f32 v{S_+1}, v{S_+2}, v{S_+3}")
    xlane_sum_g(a, S_, 16); xlane_sum_g(a, S_ + 1, 16)
    a("s_lshl_b32 s36, s71, 10")
    a("s_lshl_b32 s37, s72, 8")
    a("s_add_u32 s36, s36, s37")
    a("s_lshl_b32 s37, s74, 3")
    a("s_add_u32 s36, s36, s37")
    vm.wait("PH")
    a(f"buffer_store_dwordx2 {vr(S_,2)}, v10, s[24:27], s36 offen sc0 sc1"); vm.op("PS")
    prof_stamp(a, 3, PV)

def k4_body(a, vm, fused, hook_late=None, hook_end=None):
    R = 144; NBUF = 18
    ACCB = [32, 56]; HOLD2 = 80; Z1P = 116
    NM2 = 152; C02 = 160; C12 = 168; RI2 = 176
    NM1 = 184; C01 = 186; C11 = 188; RI1 = 190
    CS2 = 192; CS1 = 204; SS = 240; QQ = 248
    VA = 201; VB = 202; VC = 203; PV = 1
    T0 = 8
    WFA = 144
    lg = LgTrack(a)
    if not fused: a("s_load_dwordx4 s[8:11], s[0:1], 72")
    a("s_and_b32 s13, s2, 7")
    a("s_lshr_b32 s14, s2, 3")
    a("s_and_b32 s15, s13, 1")
    a("s_lshl_b32 s15, s15, 3")
    a("s_and_b32 s28, s14, 7")
    a("s_add_u32 s28, s28, s15")
    a("s_lshr_b32 s15, s13, 1")
    a("s_lshl_b32 s15, s15, 2")
    a("s_lshr_b32 s29, s14, 3")
    a("s_add_u32 s29, s29, s15")
    a("v_lshlrev_b32 v4, 4, v1")
    a("v_add_u32 v5, 0x10000, v4")
    a("v_add_u32 v6, 0x20000, v4")
    a("v_add_u32 v7, 18432, v4")
    a("s_mul_i32 s30, s29, 288")
    a("s_mul_i32 s31, s29, 331776")
    a("s_mul_i32 s64, s12, 3072")
    a("s_mul_i32 s65, s12, 9216")
    a("s_add_u32 s66, s31, s64")
    a("s_add_u32 s67, s31, s65")
    a("s_lshl_b32 s33, s28, 2")
    a("s_add_u32 s33, s33, s12")
    a(f"s_mul_i32 s34, s33, {2*18*1024}")
    a("s_waitcnt lgkmcnt(0)")
    srd(a, 16, 10, 11, 128 * 18 * 1024, off_imm=H_OFF)
    srd(a, 20, 10, 11, 16 * 324 * 1024, off_imm=WP_OFF)
    if "d" in CPM:
        a("s_lshl_b32 s35, s14, 2")
        a("s_add_u32 s35, s35, s12")
        for _ in range(code_prefetch(a, "L_kb_pf1", "L_kb_end", 36, 254, 35, nsl=128)): vm.op("PF")
    a.label("L_kb_pf1")
    PROF_K[0] = 2
    prof_init(a, 10); prof_real(a, 5, PV); prof_stamp(a, 0, PV)
    chunks = [(c, c + 12) for c in range(0, 72, 12)] + [(c, c + 36) for c in range(72, 324, 36)]
    chunk_of = {}
    for ci, (c0, c1) in enumerate(chunks):
        for u in range(c0, c1): chunk_of[u] = ci
    def dma(ci):
        c0, c1 = chunks[ci]; n = (c1 - c0) // 4
        def one(i):
            G = int(os.environ.get("K4G", "4"))
            if i % G == 0:
                a(f"s_add_u32 m0, s{64 if n == 3 else 65}, {((c0 % R) + i) * 1024}")
                a(f"s_add_u32 s35, s{66 if n == 3 else 67}, {(c0 + i) * 1024}")
            a(f"buffer_load_dwordx4 v4, s[20:23], s35 offen offset:{(i % G) * 1024} lds")
            vm.op(f"W{ci}")
        return [(f'W{ci}', lambda i=i: one(i)) for i in range(n)]
    def xload(ks):
        def one(rb):
            if rb == 0 and ks % 4 == 0: a(f"s_add_u32 s36, s34, {ks * 1024}")
            a(f"buffer_load_dwordx4 {ar((rb*18+ks)*4)}, v{4 if rb == 0 else 7}, s[16:19], s36 offen offset:{(ks % 4) * 1024}")
            vm.op(f"X{ks}")
        return [(f'X{ks}', lambda rb=rb: one(rb)) for rb in range(2)]
    HSB = Z1P
    def stats_loads():
        u = []
        def cs2(nb):
            if nb == 0:
                srd(a, 40, 10, 11, 4608 * 4, off_imm=CS_OFF)
                a("s_lshl_b32 s39, s30, 1")
                a("s_add_u32 s37, s39, 9216")
                a(f"v_lshlrev_b32 v{VB}, 2, v2")
                a(f"v_lshlrev_b32 v{VC}, 4, v3")
            a(f"buffer_load_dword v{CS2+nb}, v{VB}, s[40:43], s37 offen offset:{nb*64}")
            vm.op("CS")
        def cs1(nb):
            a(f"buffer_load_dwordx4 {vr(CS1+nb*4)}, v{VC}, s[40:43], s39 offen offset:{nb*64}")
            vm.op("CS")
        return [('CS', lambda nb=nb: cs2(nb)) for nb in range(9)] + [('CS', lambda nb=nb: cs1(nb)) for nb in range(9)]
    vq = []
    def need(tag):
        while any(t == tag for t, _ in vq): vq.pop(0)[1]()
        vm.wait(tag)
    nxt_chunk = 0
    csl = stats_loads()
    def push_chunks(limit):
        nonlocal nxt_chunk
        while nxt_chunk < len(chunks) and chunks[nxt_chunk][0] < limit and chunks[nxt_chunk][1] - R <= udone[0]:
            vq.extend(dma(nxt_chunk)); nxt_chunk += 1
    udone = [0]
    push_chunks(int(os.environ.get("P3CH", "48")))
    p3_body(a, vm, lg, vq)
    assert not vq
    a("s_lshl_b32 s37, s33, 11")
    a("s_mov_b32 s38, 0")
    a.label("L_p3_spin")
    for rb in range(2):
        a(f"buffer_load_dwordx4 {vr(HSB+rb*4)}, v4, s[24:27], s37 offen offset:{rb*1024} sc0 sc1")
    a("s_waitcnt vmcnt(0)")
    a(f"v_max3_u32 v8, v{HSB}, v{HSB+1}, v{HSB+2}")
    a(f"v_max3_u32 v8, v8, v{HSB+3}, v{HSB+4}")
    a(f"v_max3_u32 v8, v8, v{HSB+5}, v{HSB+6}")
    a(f"v_max_u32 v8, v8, v{HSB+7}")
    a("v_cmp_eq_u32 vcc, -1, v8")
    a("s_cmp_eq_u64 vcc, 0")
    a("s_cbranch_scc1 L_p3_go")
    a("s_add_u32 s38, s38, 1")
    a("s_cmp_lt_u32 s38, 0x20000")
    a("s_cbranch_scc0 L_p3_go")
    a("s_sleep 1")
    a("s_branch L_p3_spin")
    a.label("L_p3_go")
    prof_stamp(a, 4, PV); prof_real(a, 6, PV)
    PROF_K[0] += 1
    prof_init(a, 10); prof_real(a, 14, PV); prof_stamp(a, 0, PV)
    npro = 0
    for ks in range(18):
        push_chunks(min(3 * ks + 9, 60))
        vq.extend(xload(ks))
        if ks == 11: vq.extend(csl)
        if ks == NPRO: npro = len(vq)
    for _ in range(npro): vq.pop(0)[1]()
    srd(a, 44, 10, 11, 262144, off_imm=ST_OFF)
    srd(a, 52, 10, 11, 2304 * 4096, off_imm=Z2T_OFF)
    if not fused: srd(a, 56, 10, 11, 2304 * 4096, off_imm=Z1_OFF)
    def atomic(lst):
        def f():
            for x in lst: a(x)
            credit[0] = 6
        return f
    def stats_math():
        b_ = Buf()
        x = Buf()
        for rb in range(2):
            b = HSB + rb * 4
            x(pk("add", b, b, b + 2))
        for rb in range(2):
            b = HSB + rb * 4
            xlane_sum_g(x, b, 24); xlane_sum_g(x, b + 1, 24)
        b_.l.append(atomic(x.l))
        for rb in range(2):
            b = HSB + rb * 4
            b_(f"v_mov_b32 v{NM1+rb}, v{b}"); b_(f"v_mov_b32 v{RI1+rb}, v{b+1}")
        ln_ms(b_, [(NM1, RI1), (NM1 + 1, RI1 + 1)], 576)
        b_("v_lshlrev_b32 v24, 4, v3")
        def bp(rb, j):
            a(f"ds_bpermute_b32 v{RI2+rb*4+j}, v24, v{RI1+rb} offset:{4*j}"); lg.op("BP")
            a(f"ds_bpermute_b32 v{NM2+rb*4+j}, v24, v{NM1+rb} offset:{4*j}"); lg.op("BP")
        for rb in range(2):
            for j in range(4): b_.l.append(lambda rb=rb, j=j: bp(rb, j))
        def derive(ri, c0, c1, n):
            for i in range(n): b_(f"v_rcp_f32 v{c0+i}, v{ri+i}")
            b_("s_nop 0")
            for i in range(n): b_(f"v_mul_f32 v{c1+i}, v{c0+i}, v{c0+i}")
            for i in range(n): b_(f"v_mul_f32 v{c1+i}, v{c1+i}, v{c0+i}")
            for i in range(n):
                b_(f"v_mul_f32 v{c0+i}, {f32bits(GK0):#x}, v{c0+i}")
                b_(f"v_mul_f32 v{c1+i}, {f32bits(GK1):#x}, v{c1+i}")
        derive(RI1, C01, C11, 2)
        for i in range(16): b_(f"v_mov_b32 v{SS+i}, 0")
        b_.l.append(lambda: lg.wait("BP"))
        derive(RI2, C02, C12, 8)
        b_.l.append(lambda: need("CS"))
        return b_.l
    def epi(p, tail=False):
        z2 = p < 3
        b_ = Buf()
        Q = [(il, rb) for il in range(3) for rb in range(2)]
        X = lambda q: ACCB[p & 1] + q * 4
        T = lambda q: T0 + q * 4
        def c(base2, base1, rb, h): return base2 + rb * 4 + h if z2 else ('b', base1 + rb)
        def cv(base2, base1, rb, j): return base2 + rb * 4 + j if z2 else base1 + rb
        A = Buf()
        for q, (il, rb) in enumerate(Q):
            nb = 3 * (p % 3) + il
            for h in (0, 2):
                if z2: A(pk("fma", X(q) + h, NM2 + rb * 4 + h, ('b', CS2 + nb), X(q) + h))
                else: A(pk("fma", X(q) + h, CS1 + nb * 4 + h, ('b', NM1 + rb), X(q) + h))
        for q, (il, rb) in enumerate(Q):
            for h in (0, 2): A(pk("mul", T(q) + h, X(q) + h, X(q) + h))
        for q, (il, rb) in enumerate(Q):
            for h in (0, 2): A(pk("fma", T(q) + h, T(q) + h, c(C12, C11, rb, h), c(C02, C01, rb, h)))
        for q, (il, rb) in enumerate(Q):
            for h in (0, 2): A(pk("mul", T(q) + h, T(q) + h, X(q) + h))
        b_.l.append(atomic(A.l))
        for i in range(24): b_(f"v_exp_f32 v{T0+i}, v{T0+i}")
        for q, (il, rb) in enumerate(Q):
            if tail:
                for h in (0, 2): b_(pk("fma", T(q) + h, T(q) + h, c(RI2, RI1, rb, h), c(RI2, RI1, rb, h)))
            else:
                for j in range(4): b_(f"v_fma_f32 v{T(q)+j}, v{T(q)+j}, v{cv(RI2, RI1, rb, j)}, v{cv(RI2, RI1, rb, j)}")
        for i in range(24): b_(f"v_rcp_f32 v{T0+i}, v{T0+i}")
        if z2 or tail:
            E = Buf()
            for q in range(6):
                for h in (0, 2): E(pk("mul", X(q) + h, X(q) + h, T(q) + h))
            if z2:
                for q, (il, rb) in enumerate(Q):
                    for h in (0, 2):
                        E(pk("add", SS + rb * 4 + h, SS + rb * 4 + h, X(q) + h))
                        E(pk("fma", QQ + rb * 4 + h, X(q) + h, X(q) + h, QQ + rb * 4 + h))
            b_.l.append(atomic(E.l))
        else:
            for i in range(24): b_(f"v_mul_f32 v{X(0)+i}, v{X(0)+i}, v{T0+i}")
        if p == 2:
            b_("s_nop 1")
            row16_sum(b_, list(range(SS, SS + 16)))
            b_.l.append(st_publish)
        for q, (il, rb) in enumerate(Q):
            nb = 3 * (p % 3) + il
            for h in (0, 2):
                b_(f"v_cvt_pk_bf16_f32 v{(HOLD2 if z2 else Z1P)+nb*4+rb*2+h//2}, v{X(q)+h}, v{X(q)+h+1}")
            if not z2 and not fused and rb == 1:
                def st(nb=nb):
                    if nb == 0:
                        a("s_mul_i32 s69, s33, 144")
                        a("s_mul_i32 s37, s29, 9")
                        a("s_add_u32 s69, s69, s37")
                        a("s_lshl_b32 s69, s69, 10")
                    a(f"s_add_u32 s37, s69, {nb*1024}")
                    a(f"buffer_store_dwordx4 {vr(Z1P+nb*4)}, v4, s[56:59], s37 offen")
                    vm.op("Z1")
                b_.l.append(st)
        b_.l.append(f"MARK_E{p}")
        return b_.l
    def st_publish():
        a("s_lshl_b32 s36, s28, 4")
        a("s_add_u32 s36, s36, s29")
        a("s_lshl_b32 s36, s36, 10")
        a("s_lshl_b32 s37, s12, 8")
        a("s_add_u32 s36, s36, s37")
        a(f"v_lshlrev_b32 v{VA}, 5, v3")
        a(f"v_lshl_add_u32 v{VB}, v2, 24, v{VA}")
        a(f"v_lshl_add_u32 v{VA}, v2, 10, v{VA}")
        for rb in range(2):
            a(f"buffer_store_dwordx4 {vr(SS+rb*4)}, v{VB}, s[44:47], s36 offen offset:{rb*128} sc0 sc1")
            a(f"buffer_store_dwordx4 {vr(QQ+rb*4)}, v{VB}, s[44:47], s36 offen offset:{rb*128+16} sc0 sc1")
            vm.op("ST"); vm.op("ST")
        a("s_lshl_b32 s68, s28, 14")
        a("s_add_u32 s68, s68, s37")
        prof_stamp(a, 8, PV)
    def poll_loads(track=True):
        for rb in range(2):
            a(f"buffer_load_dwordx4 {vr(SS+rb*4)}, v{VA}, s[44:47], s68 offen offset:{rb*128} sc0 sc1")
            a(f"buffer_load_dwordx4 {vr(QQ+rb*4)}, v{VA}, s[44:47], s68 offen offset:{rb*128+16} sc0 sc1")
            if track: vm.op("PL"); vm.op("PL")
    def poll_check():
        T = T0
        prof_stamp(a, 9, PV)
        vm.wait("PL")
        a("s_mov_b32 s38, 0")
        a.label("L_k4_spin")
        for i in range(0, 8, 2): a(pk("add", T + i, SS + i, QQ + i))
        a(pk("add", T, T, T + 2)); a(pk("add", T + 4, T + 4, T + 6)); a(pk("add", T, T, T + 4))
        a(f"v_cmp_u_f32 vcc, v{T}, v{T+1}")
        a("s_cmp_eq_u64 vcc, 0")
        a("s_cbranch_scc1 L_k4_go")
        a("s_add_u32 s38, s38, 1")
        a("s_cmp_lt_u32 s38, 0x20000")
        a("s_cbranch_scc0 L_k4_go")
        a("s_sleep 1")
        poll_loads(False)
        a("s_waitcnt vmcnt(0)")
        a("s_branch L_k4_spin")
        a.label("L_k4_go")
        prof_stamp(a, 10, PV)
    def norm_z2():
        b_ = Buf()
        b_.l.append(poll_check)
        row16_sum(b_, list(range(SS, SS + 16)))
        ln_scalars(b_, [(SS + i, QQ + i) for i in range(8)], 2304)
        b_("s_mul_i32 s70, s29, 576")
        b_("s_lshr_b32 s37, s33, 1")
        b_("s_mul_i32 s37, s37, 18")
        b_("s_add_u32 s70, s70, s37")
        b_("s_and_b32 s37, s33, 1")
        b_("s_add_u32 s70, s70, s37")
        b_("s_lshl_b32 s70, s70, 10")
        for nb in range(9):
            T = T0 + (nb & 1) * 8
            for p in range(4):
                t = T + 2 * p; hreg = HOLD2 + nb * 4 + p
                b_(f"v_lshlrev_b32 v{t}, 16, v{hreg}")
                b_(f"v_and_b32 v{t+1}, 0xffff0000, v{hreg}")
            for p in range(4): b_(pk("fma", T + 2 * p, T + 2 * p, QQ + 2 * p, SS + 2 * p))
            for p in range(4): b_(f"v_cvt_pk_bf16_f32 v{HOLD2+nb*4+p}, v{T+2*p}, v{T+2*p+1}")
            def st(nb=nb):
                a(f"s_add_u32 s37, s70, {nb*2048}")
                a(f"buffer_store_dwordx4 {vr(HOLD2+nb*4)}, v4, s[52:55], s37 offen" + (" sc0 sc1" if fused else ""))
                vm.op("Z2")
            b_.l.append(st)
        b_.l.append(lambda: prof_stamp(a, 11, PV))
        return b_.l
    units = [(p, ks, il) for p in range(6) for ks in range(18) for il in range(3)]
    for u, (p, ks, il) in enumerate(units): assert wp_unit(2 if p < 3 else 1, ks, 3 * (p % 3) + il) == u
    marks = set()
    valu = []
    def read(u):
        ci = chunk_of[u]
        if chunks[ci][0] == u:
            need(f"W{ci}")
            a("s_barrier")
            d = u - 1
            while d >= 0 and not lg.completed(f"R{d}"): d -= 1
            udone[0] = d + 1
            push_chunks(10000)
        pos = (u % R) * 1024
        a(f"ds_read_b128 {ar(WFA + (u % NBUF) * 4)}, v{4 + (pos >> 16)} offset:{pos & 0xffff}")
        lg.op(f"R{u}")
        credit[0] -= 5
    def emit_valu(budget, until=None):
        credit[0] += budget
        while valu and (credit[0] > 0 or (until and until not in marks)):
            it = valu.pop(0)
            if callable(it): it()
            elif it.startswith("MARK"): marks.add(it); continue
            else: a(it)
            credit[0] -= icost(it)
        if not valu: credit[0] = min(credit[0], 0)
    credit = [0.0]
    for u in range(DLA): read(u)
    credit[0] = 0
    prof_stamp(a, 1, PV)
    slot = 0
    for u, (p, ks, il) in enumerate(units):
        if u % 54 == 0 and p >= 2:
            emit_valu(0, until=f"MARK_E{p-2}"); credit[0] = 0
        if u % 54 == 0 and p >= 1: prof_stamp(a, 1 + p, PV)
        if p == 0 and il == 0: need(f"X{ks}")
        if u % 3 == 0: lg.wait(f"R{u+2}")
        if u == 15: valu.extend(stats_math())
        if u % 54 == 1 and p >= 1:
            valu.extend(epi(p - 1))
        if u == 300:
            poll_loads()
            if hook_late:
                vq.extend(hook_late())
        wf = ar(WFA + (u % NBUF) * 4)
        for rb in range(2):
            xa = ar((rb * 18 + ks) * 4)
            acc = ACCB[p & 1] + (il * 2 + rb) * 4
            if p < 3: a(f"v_mfma_f32_16x16x32_bf16 {vr(acc)}, {xa}, {wf}, {vr(acc) if ks else 0}")
            else: a(f"v_mfma_f32_16x16x32_bf16 {vr(acc)}, {wf}, {xa}, {vr(acc) if ks else 0}")
            if rb == 0 and u + DLA < 324: read(u + DLA)
            if slot % (VPACE if p else 2) == 1 and vq: vq.pop(0)[1](); credit[0] -= 5
            emit_valu(BUD)
            slot += 1
    assert not vq
    prof_stamp(a, 7, PV)
    if hook_end: hook_end()
    valu.extend(["s_nop 7"] + norm_z2() + epi(5, tail=True))
    while valu: emit_valu(1e9)
    return Z1P

def gen_k4():
    a = Asm()
    vm = VmTrack(a)
    common_prologue(a, 256, "L_k4_end")
    k4_body(a, vm, False)
    if PROF:
        a("s_waitcnt vmcnt(0)")
    for i in range(12, 14): prof_stamp(a, i, 1)
    prof_real(a, 15, 1)
    a.label("L_k4_end")
    a("s_endpgm")
    return a.text(), dict(vgpr=256, agpr=216, grid=256, block=256, lds=144 * 1024)
```

```python
import sys, math
from asmlib import *

S, D, H, DH, F, FH = 2048, 576, 32, 18, 4608, 2304
QKVT_OFF = 0
O_OFF = 7077888
H_OFF = 9437184
Z1_OFF = 11796480
Z2T_OFF = 21233664
U_OFF = 30670848
CS_OFF = 40108032
WP_OFF = 39 << 20
WSPP_OFF = Z1_OFF
WOP_OFF = (177 << 18)
FL_OFF = 47 << 20
HSPLIT = (2, 4, 11, 13)
def wp_unit(z, ks, nb):
    return (0 if z == 2 else 162) + 54 * (nb // 3) + ks * 3 + nb % 3
QSCALE = (DH ** -0.5) * math.log2(math.e)

def common_prologue(a, nwg, end_label):
    a(f"s_cmp_ge_u32 s2, {nwg}")
    a(f"s_cbranch_scc1 {end_label}")
    a("v_lshrrev_b32 v1, 6, v0")
    a("s_nop 0")
    a("v_readfirstlane_b32 s12, v1")
    a("v_and_b32 v1, 63, v0")
    a("v_and_b32 v2, 15, v0")
    a("v_bfe_u32 v3, v0, 4, 2")

def dma_voffsets(a, vbase, ninstr, cpr, ldw_bytes, vt):
    m, sh = magic_div(cpr, ninstr * 64)
    for i in range(ninstr):
        a(f"v_add_u32 v{vt}, {i*64}, v1")
        a(f"v_mul_u32_u24 v{vt+1}, {m}, v{vt}")
        a(f"v_lshrrev_b32 v{vt+1}, {sh}, v{vt+1}")
        a(f"v_mul_u32_u24 v{vt+2}, {cpr}, v{vt+1}")
        a(f"v_sub_u32 v{vt+2}, v{vt}, v{vt+2}")
        a(f"v_bfe_u32 v{vt+3}, v{vt+1}, 2, 2")
        a(f"v_lshlrev_b32 v{vt+3}, 3, v{vt+3}")
        a(f"v_lshrrev_b32 v{vt}, 4, v{vt+1}")
        a(f"v_lshl_add_u32 v{vt+3}, v{vt}, 2, v{vt+3}")
        a(f"v_and_b32 v{vt}, 3, v{vt+1}")
        a(f"v_add_u32 v{vt+3}, v{vt+3}, v{vt}")
        a(f"v_mul_u32_u24 v{vt+3}, {ldw_bytes}, v{vt+3}")
        a(f"v_lshl_add_u32 v{vbase+i}, v{vt+2}, 4, v{vt+3}")

def bf16r(a, v):
    a(f"v_cvt_pk_bf16_f32 v{v}, v{v}, v{v}")
    a(f"v_lshlrev_b32 v{v}, 16, v{v}")

def layernorm_regs(a, xbase, nrb, nreg, vt, sones, ncols):
    a(f"v_xor_b32 v{vt+12}, 16, v1")
    a(f"v_lshlrev_b32 v{vt+12}, 2, v{vt+12}")
    a(f"v_xor_b32 v{vt+13}, 32, v1")
    a(f"v_lshlrev_b32 v{vt+13}, 2, v{vt+13}")
    for rb in range(nrb):
        xb = xbase + rb * nreg
        for i in range(4):
            a(f"v_mov_b32 v{vt+i}, 0")
        for i in range(nreg):
            a(f"v_dot2_f32_bf16 v{vt+(i&1)}, v{xb+i}, s{sones}, v{vt+(i&1)}")
            a(f"v_dot2_f32_bf16 v{vt+2+(i&1)}, v{xb+i}, v{xb+i}, v{vt+2+(i&1)}")
        a("s_nop 3")
        a(f"v_add_f32 v{vt}, v{vt}, v{vt+1}")
        a(f"v_add_f32 v{vt+2}, v{vt+2}, v{vt+3}")
        for x in (12, 13):
            a(f"ds_bpermute_b32 v{vt+1}, v{vt+x}, v{vt}")
            a(f"ds_bpermute_b32 v{vt+3}, v{vt+x}, v{vt+2}")
            a("s_waitcnt lgkmcnt(0)")
            a(f"v_add_f32 v{vt}, v{vt}, v{vt+1}")
            a(f"v_add_f32 v{vt+2}, v{vt+2}, v{vt+3}")
        inv = f32bits(1.0 / ncols)
        a(f"v_mul_f32 v{vt}, {inv:#x}, v{vt}")
        a(f"v_mul_f32 v{vt+2}, {inv:#x}, v{vt+2}")
        a(f"v_fma_f32 v{vt+2}, -v{vt}, v{vt}, v{vt+2}")
        a(f"v_max_f32 v{vt+2}, 0, v{vt+2}")
        bf16r(a, vt)
        bf16r(a, vt + 2)
        a(f"v_add_f32 v{vt+2}, {f32bits(1e-5):#x}, v{vt+2}")
        bf16r(a, vt + 2)
        a(f"v_sqrt_f32 v{vt+2}, v{vt+2}")
        a("s_nop 0")
        bf16r(a, vt + 2)
        a(f"v_rcp_f32 v{vt+4}, v{vt+2}")
        a("s_nop 0")
        a(f"v_mov_b32 v{vt+5}, v{vt+4}")
        a(f"v_mul_f32 v{vt+6}, v{vt}, v{vt+4}")
        a(f"v_sub_f32 v{vt+6}, 0, v{vt+6}")
        a(f"v_mov_b32 v{vt+7}, v{vt+6}")
        for i in range(nreg):
            t = vt + 8 + 2 * (i & 1)
            a(f"v_lshlrev_b32 v{t}, 16, v{xb+i}")
            a(f"v_and_b32 v{t+1}, 0xffff0000, v{xb+i}")
            a(f"v_pk_fma_f32 v[{t}:{t+1}], v[{t}:{t+1}], v[{vt+4}:{vt+5}], v[{vt+6}:{vt+7}]")
            a(f"v_cvt_pk_bf16_f32 v{xb+i}, v{t}, v{t+1}")


import os
PROF = bool(os.environ.get("PROF"))
PROF_OFF = 60 << 20
PROF_K = [0]
def prof_init(a, wsreg=8):
    if not PROF: return
    srd(a, 88, wsreg, wsreg + 1, 1 << 19, off_imm=PROF_OFF + PROF_K[0] * (1 << 19))
    a("s_lshl_b32 s92, s2, 4")
    a("s_add_u32 s92, s92, s12")
    a("s_lshl_b32 s92, s92, 6")
def prof_stamp(a, idx, vtmp):
    if not PROF: return
    a("s_memtime s[94:95]")
    a("s_waitcnt lgkmcnt(0)")
    a(f"v_mov_b32 v{vtmp}, s94")
    a(f"buffer_store_dword v{vtmp}, off, s[88:91], s92 offset:{idx*4}")

def prof_real(a, idx, vtmp):
    if not PROF: return
    a("s_memrealtime s[94:95]")
    a("s_waitcnt lgkmcnt(0)")
    a(f"v_mov_b32 v{vtmp}, s94")
    a(f"buffer_store_dword v{vtmp}, off, s[88:91], s92 offset:{idx*4}")

def xlane_sum_g(a, v, t):
    a(f"v_mov_b32 v{t}, v{v}")
    a("s_nop 1")
    a(f"v_permlane32_swap_b32 v{v}, v{t}")
    a("s_nop 1")
    a(f"v_add_f32 v{v}, v{v}, v{t}")
    a(f"v_mov_b32 v{t}, v{v}")
    a("s_nop 1")
    a(f"v_permlane16_swap_b32 v{v}, v{t}")
    a("s_nop 1")
    a(f"v_add_f32 v{v}, v{v}, v{t}")

def ln_scalars(a, pairs, n):
    inv = f32bits(1.0 / n)
    for s, q in pairs:
        a(f"v_mul_f32 v{s}, {inv:#x}, v{s}")
        a(f"v_mul_f32 v{q}, {inv:#x}, v{q}")
    for s, q in pairs:
        a(f"v_fma_f32 v{q}, -v{s}, v{s}, v{q}")
    for s, q in pairs:
        a(f"v_max_f32 v{q}, 0, v{q}")
    for s, q in pairs:
        bf16r(a, s); bf16r(a, q)
    for s, q in pairs:
        a(f"v_add_f32 v{q}, {f32bits(1e-5):#x}, v{q}")
    for s, q in pairs:
        bf16r(a, q)
    for s, q in pairs:
        a(f"v_sqrt_f32 v{q}, v{q}")
    a("s_nop 0")
    for s, q in pairs:
        bf16r(a, q)
    for s, q in pairs:
        a(f"v_rcp_f32 v{q}, v{q}")
    a("s_nop 0")
    for s, q in pairs:
        a(f"v_mul_f32 v{s}, v{s}, v{q}")
    for s, q in pairs:
        a(f"v_sub_f32 v{s}, 0, v{s}")

GK0 = -2.0 * 0.7978845608028654 * math.log2(math.e)
GK1 = GK0 * 0.044715
def gelu_quad(a, x, t, sK1, vK0, sONE):
    for h in (0, 2):
        a(f"v_pk_mul_f32 v[{t+h}:{t+h+1}], v[{x+h}:{x+h+1}], v[{x+h}:{x+h+1}]")
    for h in (0, 2):
        a(f"v_pk_fma_f32 v[{t+h}:{t+h+1}], v[{t+h}:{t+h+1}], s[{sK1}:{sK1+1}], v[{vK0}:{vK0+1}]")
    for h in (0, 2):
        a(f"v_pk_mul_f32 v[{t+h}:{t+h+1}], v[{t+h}:{t+h+1}], v[{x+h}:{x+h+1}]")
    for j in range(4):
        a(f"v_exp_f32 v{t+j}, v{t+j}")
    for h in (0, 2):
        a(f"v_pk_add_f32 v[{t+h}:{t+h+1}], v[{t+h}:{t+h+1}], s[{sONE}:{sONE+1}]")
    for j in range(4):
        a(f"v_rcp_f32 v{t+j}, v{t+j}")
    for h in (0, 2):
        a(f"v_pk_mul_f32 v[{x+h}:{x+h+1}], v[{x+h}:{x+h+1}], v[{t+h}:{t+h+1}]")

def bcast_sel(reg, pos, n):
    base = reg & ~1
    lo = [0] * n; hi = [1] * n
    lo[pos] = reg & 1; hi[pos] = reg & 1
    return f"v[{base}:{base+1}]", f"op_sel:[{','.join(map(str,lo))}] op_sel_hi:[{','.join(map(str,hi))}]"

def row16_sum(a, regs):
    for sh in (8, 4, 2, 1):
        for v in regs:
            a(f"v_add_f32_dpp v{v}, v{v}, v{v} row_ror:{sh} row_mask:0xf bank_mask:0xf")

def pk(op, dst, *srcs):
    txt = []; lo = []; hi = []
    for x in srcs:
        if isinstance(x, int):
            txt.append(f"v[{x}:{x+1}]"); lo.append(0); hi.append(1)
        elif x[0] == 'b':
            b = x[1] & ~1
            txt.append(f"v[{b}:{b+1}]"); lo.append(x[1] & 1); hi.append(x[1] & 1)
        else:
            txt.append(f"s[{x[1]}:{x[1]+1}]"); lo.append(0); hi.append(1)
    sel = ""
    if any(lo) or not all(hi):
        sel = f" op_sel:[{','.join(map(str,lo))}] op_sel_hi:[{','.join(map(str,hi))}]"
    return f"v_pk_{op}_f32 v[{dst}:{dst+1}], " + ", ".join(txt) + sel

class Buf:
    def __init__(self): self.l = []
    def __call__(self, s):
        for ln in s.split("\n"):
            if ln.strip(): self.l.append(ln.strip())

def icost(s):
    if callable(s): return 6
    op = s.split()[0]
    if op in ("v_exp_f32", "v_rcp_f32", "v_sqrt_f32", "v_rsq_f32"): return 8
    if op.startswith("v_"): return 4
    if op.startswith("ds_"): return 5
    if op.startswith("buffer_"): return 5
    if op == "s_nop": return 2 + int(s.split()[1])
    return 2

def ln_ms(a, pairs, n):
    inv = f32bits(1.0 / n)
    for s, q in pairs:
        a(f"v_mul_f32 v{s}, {inv:#x}, v{s}")
        a(f"v_mul_f32 v{q}, {inv:#x}, v{q}")
    for s, q in pairs:
        a(f"v_fma_f32 v{q}, -v{s}, v{s}, v{q}")
    for s, q in pairs:
        a(f"v_max_f32 v{q}, 0, v{q}")
    for s, q in pairs:
        bf16r(a, s); bf16r(a, q)
    for s, q in pairs:
        a(f"v_add_f32 v{q}, {f32bits(1e-5):#x}, v{q}")
        a(f"v_sub_f32 v{s}, 0, v{s}")
    for s, q in pairs:
        bf16r(a, q)
    for s, q in pairs:
        a(f"v_sqrt_f32 v{q}, v{q}")
    a("s_nop 0")
    for s, q in pairs:
        bf16r(a, q)

CPF = int(os.environ.get("CPF", "1"))
CPS = int(os.environ.get("CPS", "6"))
CPM = os.environ.get("CPM", "abcde")
_pfn = [0]
def code_prefetch(a, start, end, sreg, vt, sidx, lane=1, nsl=32):
    if not CPF: return 0
    a(f"s_getpc_b64 s[{sreg}:{sreg+1}]")
    _pfn[0] += 1
    lab = f"L_pc_{_pfn[0]}"
    a.label(lab)
    a(f"s_add_u32 s{sreg}, s{sreg}, {start}-{lab}")
    a(f"s_addc_u32 s{sreg+1}, s{sreg+1}, -1" if False else f"s_addc_u32 s{sreg+1}, s{sreg+1}, 0")
    a(f"v_mul_u32_u24 v{vt}, {nsl}, v{lane}")
    a(f"v_add_u32 v{vt}, s{sidx}, v{vt}")
    a(f"v_lshlrev_b32 v{vt}, {CPS}, v{vt}")
    a(f"v_mov_b32 v{vt+1}, {end}-{start}-4")
    a(f"v_cmp_gt_u32 vcc, v{vt+1}, v{vt}")
    a(f"s_and_saveexec_b64 s[{sreg+2}:{sreg+3}], vcc")
    a(f"global_load_dword v{vt+1}, v{vt}, s[{sreg}:{sreg+1}]")
    a(f"s_mov_b64 exec, s[{sreg+2}:{sreg+3}]")
    return 1

def top_prefetch(a, start, end, sreg, vt):
    if not CPF: return 0
    a(f"s_getpc_b64 s[{sreg}:{sreg+1}]")
    _pfn[0] += 1
    lab = f"L_pc_{_pfn[0]}"
    a.label(lab)
    a(f"s_add_u32 s{sreg}, s{sreg}, {start}-{lab}")
    a(f"s_addc_u32 s{sreg+1}, s{sreg+1}, 0")
    a(f"s_lshr_b32 s{sreg+2}, s2, 3")
    a(f"s_lshl_b32 s{sreg+2}, s{sreg+2}, {2+CPS}")
    a(f"v_and_b32 v{vt}, 63, v0")
    a(f"v_lshlrev_b32 v{vt}, {7+CPS}, v{vt}")
    a(f"v_lshrrev_b32 v{vt+1}, 6, v0")
    a(f"v_lshl_add_u32 v{vt}, v{vt+1}, {CPS}, v{vt}")
    a(f"v_add_u32 v{vt}, s{sreg+2}, v{vt}")
    a(f"v_mov_b32 v{vt+1}, {end}-{start}-4")
    a(f"v_cmp_gt_u32 vcc, v{vt+1}, v{vt}")
    a(f"s_and_saveexec_b64 s[{sreg+2}:{sreg+3}], vcc")
    a(f"global_load_dword v{vt+1}, v{vt}, s[{sreg}:{sreg+1}]")
    a(f"s_mov_b64 exec, s[{sreg+2}:{sreg+3}]")
    return 1
TOPPF = int(os.environ.get("TOPPF", "1"))
TLBT = os.environ.get("TLBT", "2")
```

```python
from asmlib import *
from gen_common import *
PFG = int(os.environ.get('PFG', '0'))
NT = os.environ.get('K1NT', '')
def gen_k1():
    a = Asm()
    vm = VmTrack(a)
    SL = 32768; RS = 131072
    XF = 32; WF = 64; ACC = 96; ST = 212; RR = 176; NN = 192; CSR = 208; ONE = 160
    common_prologue(a, 256, "L_k1_end")
    a("s_load_dwordx4 s[4:7], s[0:1], 0")
    a("s_load_dwordx2 s[8:9], s[0:1], 80")
    if TOPPF:
        for _ in range(top_prefetch(a, "L_k1_pf0", "L_k2_end", 44, 236)): vm.op("PF")
    a.label("L_k1_pf0")
    a("s_cmp_ge_u32 s2, 224")
    a("s_cbranch_scc1 L_k1_colsum")
    a("s_and_b32 s13, s2, 7")
    a("s_lshr_b32 s14, s2, 3")
    a("s_lshr_b32 s10, s13, 1")
    a("s_lshl_b32 s10, s10, 2")
    a("s_and_b32 s15, s14, 3")
    a("s_add_u32 s10, s10, s15")
    a("s_and_b32 s11, s13, 1")
    a("s_mul_i32 s11, s11, 7")
    a("s_lshr_b32 s15, s14, 2")
    a("s_add_u32 s11, s11, s15")
    a("s_lshr_b32 s28, s12, 1")
    a("s_and_b32 s29, s12, 1")
    a("s_mov_b32 s30, 0x3f803f80")
    a("v_lshrrev_b32 v16, 3, v1")
    a("v_and_b32 v17, 7, v1")
    a("v_xor_b32 v17, v17, v16")
    a("v_mul_u32_u24 v4, 1152, v16")
    a("v_lshl_add_u32 v4, v17, 4, v4")
    a("v_bfe_u32 v16, v1, 1, 3")
    a("v_xor_b32 v16, v16, v3")
    a("v_and_b32 v17, 1, v1")
    a("v_lshl_or_b32 v16, v16, 1, v17")
    a("v_mul_u32_u24 v5, 3456, v3")
    a("v_lshlrev_b32 v16, 4, v16")
    a("v_xor_b32 v17, 128, v16")
    a("v_add_u32 v6, v5, v17")
    a("v_add_u32 v5, v5, v16")
    a("s_lshl_b32 s31, s10, 7")
    a("s_lshl_b32 s15, s12, 5")
    a("s_add_u32 s31, s31, s15")
    a("s_mul_i32 s31, s31, 1152")
    a("s_lshl_b32 s32, s28, 5")
    a("s_lshl_b32 s15, s29, 2")
    a("s_add_u32 s32, s32, s15")
    a("s_mul_i32 s32, s32, 3456")
    a("s_lshl_b32 s15, s11, 8")
    a("s_add_u32 s32, s32, s15")
    a("s_lshl_b32 s33, s12, 12")
    a("s_add_u32 s34, s33, 16384")
    a("s_waitcnt lgkmcnt(0)")
    srd(a, 16, 4, 5, 2048 * 1152)
    srd(a, 20, 6, 7, 576 * 3456)
    prof_init(a); prof_real(a, 14, 31); prof_stamp(a, 8, 31)
    def dma(c):
        def x(i):
            a(f"s_add_u32 m0, s33, {(c%5)*SL + i*1024}")
            a(f"s_add_u32 s35, s31, {i*8*1152 + c*128}")
            a("buffer_load_dwordx4 v4, s[16:19], s35 offen" + NT + " lds")
            vm.op(f"C{c}")
        def w(i):
            a(f"s_add_u32 m0, s34, {(c%5)*SL + i*1024}")
            a(f"s_add_u32 s35, s32, {(64*c + 8*i)*3456}")
            a(f"buffer_load_dwordx4 v{5+(i&1)}, s[20:23], s35 offen" + NT + " lds")
            vm.op(f"C{c}")
        u = []
        for i in range(4):
            u.append(lambda i=i: x(i)); u.append(lambda i=i: w(i))
        return u
    for c in range(4):
        for f in dma(c): f()
    srd(a, 24, 8, 9, 1728 * 4096, off_imm=QKVT_OFF)
    a("s_lshl_b32 s15, s14, 2")
    a("s_add_u32 s15, s15, s12")
    if "1" in TLBT:
        srd(a, 44, 8, 9, 64 << 20)
        a("v_lshlrev_b32 v238, 20, v1")
        a("buffer_load_dword v239, v238, s[44:47], 0 offen"); vm.op("PF")
    if "a" in CPM and not TOPPF:
        for _ in range(code_prefetch(a, "L_k1_pf1", "L_k2_end" if "b" in CPM else "L_k1_colsum", 44, 236, 15, nsl=112)): vm.op("PF")
    a.label("L_k1_pf1")
    if os.environ.get("TLBPF"):
        G = int(os.environ["TLBPF"])
        a(f"v_mul_u32_u24 v17, {G}, v0")
        for j in range((2359296 // G + 255) // 256):
            a(f"s_mov_b32 s15, {j*256*G}")
            a("buffer_load_dword v30, v17, s[16:19], s15 offen"); vm.op("PF")
            a("buffer_load_dword v30, v17, s[20:23], s15 offen"); vm.op("PF")
    if PFG:
        G = PFG; per = 1792 // G
        a("s_lshl_b32 s15, s14, 8")
        a("v_add_u32 v16, s15, v0")
        a("s_lshr_b32 s15, s13, 1")
        a("s_mul_i32 s15, s15, 589824")
        nx = 589824 // G
        for j in range((nx + 7167) // 7168):
            a(f"v_add_u32 v17, {7168*j}, v16")
            a(f"v_cmp_gt_u32 vcc, {nx}, v17")
            a(f"v_mul_u32_u24 v17, {G}, v17")
            a("v_cndmask_b32 v17, -1, v17, vcc")
            a("buffer_load_dword v30, v17, s[16:19], s15 offen"); vm.op("PF")
        a("s_and_b32 s15, s13, 1")
        a("s_mul_i32 s15, s15, 1792")
        nw = 576 * per
        m, sh = magic_div(per, (nw + 7167) // 7168 * 7168)
        for j in range((nw + 7167) // 7168):
            a(f"v_add_u32 v17, {7168*j}, v16")
            a(f"v_mul_u32_u24 v18, {m}, v17")
            a(f"v_lshrrev_b32 v18, {sh}, v18")
            a(f"v_mul_u32_u24 v17, {G}, v17")
            a(f"v_mul_u32_u24 v18, {3456-1792}, v18")
            a("v_add_u32 v17, v17, v18")
            a("buffer_load_dword v30, v17, s[20:23], s15 offen"); vm.op("PF")
    a("v_and_b32 v16, 7, v2")
    a("v_xor_b32 v16, v16, v3")
    a("v_lshlrev_b32 v16, 4, v16")
    a("v_lshl_add_u32 v16, v2, 7, v16")
    a("s_lshl_b32 s15, s28, 13")
    a("s_lshl_b32 s35, s29, 12")
    a("s_add_u32 s36, s15, s35")
    a("s_xor_b32 s37, s36, 4096")
    for pair in range(2):
        for kk in range(2):
            a(f"v_xor_b32 v17, {kk*64}, v16")
            a(f"v_add_u32 v{8+pair*2+kk}, s{36+pair}, v17")
            a(f"v_add_u32 v{12+pair*2+kk}, 0x10000, v{8+pair*2+kk}")
            a(f"v_add_u32 v{164+pair*2+kk}, 0x20000, v{8+pair*2+kk}")
    a("v_lshrrev_b32 v16, 2, v1")
    a("v_and_b32 v17, 7, v16")
    a("v_lshlrev_b32 v16, 8, v16")
    a("v_and_b32 v18, 3, v1")
    a("v_lshl_add_u32 v16, v18, 3, v16")
    a("v_add_u32 v16, 16384, v16")
    a("s_lshl_b32 s15, s29, 2")
    a("s_lshl_b32 s35, s28, 1")
    a("s_add_u32 s38, s15, s35")
    for nb in range(4):
        a(f"s_xor_b32 s15, s38, {nb}")
        a("v_xor_b32 v18, s15, v17")
        a(f"v_lshl_add_u32 v{20+nb}, v18, 5, v16")
        a(f"v_add_u32 v{24+nb}, 0x10000, v{20+nb}")
        a(f"v_add_u32 v{168+nb}, 0x20000, v{20+nb}")
    for i in range(4):
        a(f"v_mov_b32 v{ONE+i}, 0x3f803f80")
    def reads(q):
        slot = (q >> 1) % 5; kk = q & 1; sp = slot >> 1; so = (slot & 1) * SL
        xf = XF + (q & 1) * 16; wf = WF + (q & 1) * 16
        r = []
        for i in range(4):
            r.append(f"ds_read_b128 {vr(xf+i*4)}, v{[8,12,164][sp]+(i>>1)*2+kk} offset:{so + (i&1)*2048}")
            for rd in range(2):
                r.append(f"ds_read_b64_tr_b16 v[{wf+i*4+rd*2}:{wf+i*4+rd*2+1}], v{[20,24,168][sp]+i} offset:{so + kk*8192 + rd*4096}")
        return r
    pend = []
    def kstep(q, pace):
        xf = XF + (q & 1) * 16; wf = WF + (q & 1) * 16
        rd = reads(q + 1) if q < 17 else []
        mf = []
        for nb in range(4):
            for rb in range(4):
                acc = ACC + (rb * 4 + nb) * 4
                mf.append(f"v_mfma_f32_16x16x32_bf16 {vr(acc)}, {vr(xf+rb*4)}, {vr(wf+nb*4)}, {vr(acc) if q else 0}")
        for b in range(2):
            mf.append(f"v_mfma_f32_16x16x32_bf16 {vr(ST+b*4)}, {vr(xf+b*4)}, {vr(ONE)}, {vr(ST+b*4) if q else 0}")
            mf.append(f"v_mfma_f32_16x16x32_bf16 {vr(ST+8+b*4)}, {vr(xf+b*4)}, {vr(xf+b*4)}, {vr(ST+8+b*4) if q else 0}")
            mf.append(f"v_mfma_f32_16x16x32_bf16 {vr(ST+16+b*4)}, {vr(ONE)}, {vr(wf+b*4)}, {vr(ST+16+b*4) if q else 0}")
        if q == 17: mf = mf[16:] + mf[:16]
        for slot, m_ in enumerate(mf):
            a(m_)
            if rd: a(rd.pop(0))
            if slot % pace == 1 and pend: pend.pop(0)()
    vm.wait("C0")
    a("s_barrier")
    prof_stamp(a, 9, 31)
    for r in reads(0): a(r)
    pend.extend(dma(4))
    for q in range(18):
        if q & 1 and q < 17:
            c = (q + 1) // 2
            vm.wait(f"C{c}")
            a("s_waitcnt lgkmcnt(0)")
            a("s_barrier")
            if c + 4 < 9: pend.extend(dma(c + 4))
        else:
            a("s_waitcnt lgkmcnt(0)")
        kstep(q, 2 if q == 0 else 5)
        assert q & 1 or not pend
    prof_stamp(a, 10, 31)
    a("v_and_b32 v16, 3, v2")
    for b in range(2):
        for j in range(1, 4):
            a(f"v_cmp_eq_u32 vcc, {j}, v16")
            a(f"v_cndmask_b32 v{ST+b*4}, v{ST+b*4}, v{ST+b*4+j}, vcc")
            a(f"v_cndmask_b32 v{ST+8+b*4}, v{ST+8+b*4}, v{ST+8+b*4+j}, vcc")
    ln_scalars(a, [(ST, ST + 8), (ST + 4, ST + 12)], 576)
    a("s_lshl_b32 s15, s28, 8")
    a("s_lshl_b32 s35, s29, 7")
    a("s_add_u32 s15, s15, s35")
    a("v_lshlrev_b32 v16, 2, v2")
    a(f"v_add_u32 v16, {RS}, v16")
    a("v_add_u32 v17, s15, v16")
    a("v_lshrrev_b32 v18, 2, v2")
    a("v_cmp_eq_u32 vcc, v18, v3")
    a(f"v_mov_b32 v18, {RS + 1536}")
    a("v_cndmask_b32 v17, v18, v17, vcc")
    a("s_lshl_b32 s15, s29, 8")
    a("s_lshl_b32 s35, s28, 7")
    a("s_add_u32 s15, s15, s35")
    a("v_add_u32 v18, s15, v16")
    for b in range(2):
        a(f"ds_write_b32 v17, v{ST+8+4*b} offset:{b*64}")
        a(f"ds_write_b32 v17, v{ST+4*b} offset:{512+b*64}")
        a(f"ds_write_b32 v18, v{ST+16+4*b} offset:{1024+b*64}")
    a("s_lshl_b32 s15, s28, 8")
    a("s_lshl_b32 s35, s29, 7")
    a("s_add_u32 s15, s15, s35")
    a("s_xor_b32 s35, s15, 128")
    a("v_lshlrev_b32 v17, 4, v3")
    a(f"v_add_u32 v17, {RS}, v17")
    a("v_add_u32 v19, s35, v17")
    a("v_add_u32 v17, s15, v17")
    a("v_xor_b32 v7, 128, v18")
    a("s_lshl_b32 s39, s11, 7")
    a("s_lshl_b32 s15, s29, 6")
    a("s_add_u32 s39, s39, s15")
    a("s_cmp_lt_u32 s39, 576")
    a(f"s_mov_b32 s40, {f32bits(QSCALE):#x}")
    a("s_cselect_b32 s40, s40, 1.0")
    a("s_waitcnt lgkmcnt(0)")
    a("s_barrier")
    for rb in range(4):
        a(f"ds_read_b128 {vr(RR+rb*4)}, v{17 if rb < 2 else 19} offset:{(rb&1)*64}")
        a(f"ds_read_b128 {vr(NN+rb*4)}, v{17 if rb < 2 else 19} offset:{512+(rb&1)*64}")
        a(f"ds_read_b32 v{CSR+rb}, v{18 if rb < 2 else 7} offset:{1024+(rb&1)*64}")
    a("s_mul_i32 s41, s12, 9216")
    a("v_mul_u32_u24 v16, 144, v2")
    a("v_lshl_add_u32 v16, v3, 3, v16")
    a("v_add_u32 v16, s41, v16")
    a(f"s_mul_i32 s15, s28, {32*144}")
    a(f"s_sub_u32 s35, {32*144}, s15")
    a("s_lshl_b32 s36, s29, 6")
    a("s_xor_b32 s37, s36, 64")
    for pn in range(2):
        for pr in range(2):
            a(f"s_add_u32 s42, s{15 if pn == 0 else 35}, s{36+pr}")
            a(f"v_add_u32 v{8+pn*2+pr}, s42, v16")
    a("s_waitcnt lgkmcnt(0)")
    for i in range(32):
        a(f"v_mul_f32 v{RR+i}, s40, v{RR+i}")
    for nb in range(4):
        cs, sel = bcast_sel(CSR + nb, 1, 2)
        for rb in range(4):
            x = ACC + (rb * 4 + nb) * 4
            t = XF + (rb & 1) * 8
            for h in (0, 2):
                a(f"v_pk_mul_f32 v[{t+h}:{t+h+1}], v[{NN+rb*4+h}:{NN+rb*4+h+1}], {cs} {sel}")
            for h in (0, 2):
                a(f"v_pk_fma_f32 v[{x+h}:{x+h+1}], v[{x+h}:{x+h+1}], v[{RR+rb*4+h}:{RR+rb*4+h+1}], v[{t+h}:{t+h+1}]")
            for h in (0, 2):
                a(f"v_cvt_pk_bf16_f32 v{t+4+h//2}, v{x+h}, v{x+h+1}")
            a(f"ds_write_b64 v{8+(nb>>1)*2+(rb>>1)}, v[{t+4}:{t+5}] offset:{(nb&1)*16*144 + (rb&1)*32}")
    prof_stamp(a, 11, 31)
    a("v_lshrrev_b32 v16, 3, v1")
    a("v_and_b32 v17, 7, v1")
    a("v_mul_u32_u24 v18, 144, v16")
    a("v_lshl_add_u32 v18, v17, 4, v18")
    a("v_add_u32 v18, s41, v18")
    a("v_add_u32 v16, s39, v16")
    a("v_lshlrev_b32 v16, 12, v16")
    a("v_lshl_add_u32 v16, v17, 4, v16")
    a("s_lshl_b32 s15, s10, 8")
    a("s_lshl_b32 s35, s28, 7")
    a("s_add_u32 s15, s15, s35")
    a("v_add_u32 v16, s15, v16")
    a("s_waitcnt lgkmcnt(0)")
    for i in range(8):
        a(f"ds_read_b128 {vr(ACC+i*4)}, v18 offset:{i*8*144}")
    for i in range(8):
        a(f"s_waitcnt lgkmcnt({7-i})")
        a(f"buffer_store_dwordx4 {vr(ACC+i*4)}, v16, s[24:27], 0 offen")
        if i < 7: a("v_add_u32 v16, 0x8000, v16")
    if PROF:
        a("s_waitcnt vmcnt(0)")
    prof_stamp(a, 12, 31); prof_stamp(a, 13, 31); prof_real(a, 15, 31)
    a("s_endpgm")
    a.label("L_k1_colsum")
    a("s_load_dwordx2 s[10:11], s[0:1], 32")
    a("s_sub_u32 s13, s2, 224")
    a("s_and_b32 s14, s13, 15")
    a("s_mul_i32 s28, s14, 288")
    a("s_add_u32 s29, s28, 4608")
    a("s_cmp_lt_u32 s13, 16")
    a("s_cselect_b32 s28, s29, s28")
    a(f"s_cselect_b32 s31, 0, {162*1024}")
    for nb in range(9):
        a(f"s_add_u32 s{40+nb}, s31, {wp_unit(2, 0, nb)*1024}")
    a("s_mov_b32 s29, 3072")
    a("s_mul_i32 s30, s14, 331776")
    a("s_mul_i32 s31, s12, s29")
    a("s_add_u32 s30, s30, s31")
    a("s_lshl_b32 s29, s29, 2")
    m, sh = magic_div(18, 576)
    for i in range(9):
        a(f"v_add_u32 v16, {64*i}, v1")
        a(f"v_mul_u32_u24 v17, {m}, v16")
        a(f"v_lshrrev_b32 v17, {sh}, v17")
        a(f"v_lshlrev_b32 v16, 4, v16")
        a(f"v_mul_u32_u24 v17, 8928, v17")
        a(f"v_add_u32 v{5+i}, v17, v16")
    a("s_mul_i32 s32, s12, 36864")
    a("s_mul_i32 s33, s12, 294912")
    a("s_add_u32 s33, s33, s28")
    a("v_lshrrev_b32 v14, 2, v1")
    a("v_mul_u32_u24 v14, 288, v14")
    a("v_and_b32 v16, 3, v1")
    a("v_lshl_add_u32 v14, v16, 3, v14")
    a("v_add_u32 v14, s32, v14")
    a("v_lshlrev_b32 v4, 4, v1")
    for i in range(4): a(f"v_mov_b32 v{20+i}, 0x3f803f80")
    for i in range(36): a(f"v_mov_b32 v{32+i}, 0")
    a("s_waitcnt lgkmcnt(0)")
    srd(a, 16, 10, 11, 576 * 9216)
    srd(a, 20, 8, 9, 4608 * 4, off_imm=CS_OFF)
    srd(a, 24, 8, 9, 16 * 324 * 1024, off_imm=WP_OFF)
    def hdma(n):
        a(f"s_add_u32 s15, s33, {n*4*294912}")
        for i in range(9):
            a(f"s_add_u32 m0, s32, {(n%4)*9216 + i*1024}")
            a("s_nop 0")
            a(f"buffer_load_dwordx4 v{5+i}, s[16:19], s15 offen lds")
    for n in range(4): hdma(n)
    for n in range(5):
        if n == 4:
            a("s_cmp_ge_u32 s12, 2")
            a("s_cbranch_scc1 L_k1_h5")
        a(f"s_waitcnt vmcnt({[27, 36, 36, 36, 36][n]})")
        fb = 72 + (n & 1) * 36
        for nb in range(9):
            for rd in range(2):
                a(f"ds_read_b64_tr_b16 v[{fb+nb*4+rd*2}:{fb+nb*4+rd*2+1}], v14 offset:{(n%4)*9216 + rd*16*288 + nb*32}")
        a("s_waitcnt lgkmcnt(0)")
        if n == 0: hdma(4)
        for nb in range(9):
            a(f"v_mfma_f32_16x16x32_bf16 {vr(32+nb*4)}, v[20:23], {vr(fb+nb*4)}, {vr(32+nb*4)}")
            a(f"s_add_u32 s15, s30, s{40+nb}")
            a(f"buffer_store_dwordx4 {vr(fb+nb*4)}, v4, s[24:27], s15 offen")
        a("s_add_u32 s30, s30, s29")
    a.label("L_k1_h5")
    a("s_mul_i32 s15, s12, 576")
    a("v_lshlrev_b32 v7, 2, v2")
    a("v_add_u32 v7, s15, v7")
    a("v_add_u32 v7, 147456, v7")
    a("s_nop 7")
    for nb in range(9):
        a(f"ds_write_b32 v7, v{32+nb*4} offset:{nb*64}")
    a("s_waitcnt lgkmcnt(0)")
    a("s_barrier")
    a("v_lshlrev_b32 v7, 2, v0")
    a("v_add_u32 v8, 147456, v7")
    for r in range(4):
        a(f"ds_read_b32 v{32+r}, v8 offset:{r*576}")
    a("s_waitcnt lgkmcnt(0)")
    a("v_add_f32 v32, v32, v33")
    a("v_add_f32 v34, v34, v35")
    a("v_add_f32 v32, v32, v34")
    a("v_mov_b32 v30, 0x7f000000")
    a("v_cmp_gt_u32 vcc, 144, v0")
    a("v_cndmask_b32 v7, v30, v7, vcc")
    a("s_lshl_b32 s14, s28, 1")
    a("buffer_store_dword v32, v7, s[20:23], s14 offen")
    a.label("L_k1_end")
    a("s_endpgm")
    return a.text(), dict(vgpr=240, agpr=0, grid=256, block=256, lds=163840)
```

```python
from asmlib import *
from gen_common import *
BUD = float(os.environ.get("K4BUD", "8"))
VPACE = int(os.environ.get("K4VP", "3"))
DLA = int(os.environ.get("K4D", "8"))
NPRO = int(os.environ.get("K4PRO", "7"))
class LgTrack:
    def __init__(self, a): self.a = a; self.ops = []; self.done = -1
    def op(self, tag): self.ops.append(tag)
    def wait(self, tag):
        idx = max(i for i, t in enumerate(self.ops) if t == tag)
        if idx <= self.done: return
        n = min(len(self.ops) - 1 - idx, 15)
        self.a(f"s_waitcnt lgkmcnt({n})")
        self.done = len(self.ops) - 1 - n
    def wait_all(self):
        self.a("s_waitcnt lgkmcnt(0)"); self.done = len(self.ops) - 1
    def completed(self, tag):
        return tag in self.ops[:self.done + 1]

def p3_body(a, vm, lg, vq):
    PB = 71680; OF = 0; WFA = 144; NBUF = 18; ACC = 32; RES = 52; T = 64; PV = 1
    a("s_and_b32 s71, s29, 7")
    a("s_lshr_b32 s72, s71, 1")
    a("s_mul_i32 s73, s72, 9")
    a("s_and_b32 s74, s71, 1")
    a("s_mul_i32 s75, s74, 5")
    a("s_add_u32 s73, s73, s75")
    a("s_lshr_b32 s75, s29, 3")
    a("s_lshl_b32 s75, s75, 2")
    a("s_lshl_b32 s71, s28, 3")
    a("s_add_u32 s71, s71, s75")
    a("s_add_u32 s71, s71, s12")
    a("s_mul_i32 s68, s12, 36")
    a("s_add_u32 s68, s68, s73")
    a("s_add_u32 s68, s68, 2592")
    a("s_lshl_b32 s68, s68, 10")
    a("s_mul_i32 s69, s12, 5120")
    a(f"s_add_u32 s69, s69, {PB}")
    a("s_mul_i32 s70, s71, 18432")
    a("v_add_u32 v8, 4096, v4")
    srd(a, 48, 10, 11, 128 * 18 * 1024, off_imm=O_OFF)
    srd(a, 56, 10, 11, 3240 * 1024, off_imm=WOP_OFF)
    pq = []
    def wround(t):
        def f(i):
            if t == 4:
                a("s_cmp_ge_u32 s12, 2")
                a(f"s_cbranch_scc1 L_p3_now{i}")
            if i % 4 == 0:
                a(f"s_add_u32 m0, s69, {t*20480 + i*1024}")
                a(f"s_add_u32 s35, s68, {t*4*36*1024}")
            if i < 4: a(f"buffer_load_dwordx4 v4, s[56:59], s35 offen offset:{i*1024} lds")
            else: a(f"buffer_load_dwordx4 v8, s[56:59], s35 offen lds")
            if t < 4: vm.op(f"PW{t}")
            else: a.label(f"L_p3_now{i}")
        return [(f"PW{t}", lambda i=i: f(i)) for i in range(5)]
    def oload(ks):
        if ks % 4 == 0: a(f"s_add_u32 s36, s70, {ks*1024}")
        a(f"buffer_load_dwordx4 {ar(OF+ks*4)}, v4, s[48:51], s36 offen offset:{(ks%4)*1024}"); vm.op(f"PO{ks}")
    for t in range(5):
        pq += wround(t)
        pq += [(f"PO{ks}", lambda ks=ks: oload(ks)) for ks in range(4 * t, min(4 * t + 4, 18))]
    for _ in range(int(os.environ.get("P3PRO", "18"))): pq.pop(0)[1]()
    def pneed(tag):
        while any(t_ == tag for t_, _ in pq): pq.pop(0)[1]()
        vm.wait(tag)
    srd(a, 60, 86, 87, 2048 * 1152)
    a("v_mul_u32_u24 v9, 1152, v2")
    a("v_lshl_add_u32 v9, v3, 3, v9")
    a(f"s_mul_i32 s38, s71, {16*1152}")
    a("s_lshl_b32 s37, s73, 5")
    a("s_add_u32 s38, s38, s37")
    def res(i):
        a(f"buffer_load_dwordx2 {vr(RES+2*i,2)}, v9, s[60:63], s38 offen offset:{i*32}"); vm.op("PR")
    pq += [("PR", lambda i=i: res(i)) for i in range(5)]
    srd(a, 24, 10, 11, 131072, off_imm=HS_OFF)
    a("v_lshlrev_b32 v10, 4, v2")
    a("v_lshl_add_u32 v10, v3, 28, v10")
    D = 8
    def read(u):
        ks, i = divmod(u, 5)
        if u % 20 == 0:
            pneed(f"PW{ks//4}" if ks < 16 else "PO16")
            a("s_barrier")
        pos = PB + ks * 5120 + i * 1024
        a(f"ds_read_b128 {ar(WFA + (u % NBUF) * 4)}, v{4 + (pos >> 16)} offset:{pos & 0xffff}")
        lg.op(f"P{u}")
    for u in range(D): read(u)
    prof_stamp(a, 1, PV)
    for u in range(90):
        ks, i = divmod(u, 5)
        if i == 0: pneed(f"PO{ks}")
        if u % 2 == 0: lg.wait(f"P{min(u+1, 89)}")
        a(f"v_mfma_f32_16x16x32_bf16 {vr(ACC+i*4)}, {ar(WFA + (u % NBUF) * 4)}, {ar(OF+ks*4)}, {vr(ACC+i*4) if ks else 0}")
        if u + D < 90: read(u + D)
        if pq: pq.pop(0)[1]()
    assert not pq
    prof_stamp(a, 2, PV)
    vm.wait("PR")
    S_ = 12
    for j in range(4): a(f"v_mov_b32 v{S_+j}, 0")
    for i in range(5):
        if i == 4:
            a("s_cmp_eq_u32 s74, 1")
            a("s_cbranch_scc1 L_p3_no5")
        x = ACC + i * 4; t = T + i * 8
        for h in range(2): a(f"v_cvt_pk_bf16_f32 v{t+h}, v{x+2*h}, v{x+2*h+1}")
        for h in range(2):
            a(f"v_lshlrev_b32 v{x+2*h}, 16, v{t+h}")
            a(f"v_and_b32 v{x+2*h+1}, 0xffff0000, v{t+h}")
            a(f"v_lshlrev_b32 v{t+2+2*h}, 16, v{RES+2*i+h}")
            a(f"v_and_b32 v{t+3+2*h}, 0xffff0000, v{RES+2*i+h}")
        for h in range(2): a(pk("add", x + 2 * h, x + 2 * h, t + 2 + 2 * h))
        for h in range(2): a(f"v_cvt_pk_bf16_f32 v{t+h}, v{x+2*h}, v{x+2*h+1}")
        a(f"s_add_u32 s36, s73, {i}")
        a("s_lshr_b32 s37, s36, 1")
        a("s_lshl_b32 s37, s37, 10")
        a("s_and_b32 s36, s36, 1")
        a("s_lshl_b32 s36, s36, 3")
        a("s_add_u32 s36, s36, s37")
        a("s_add_u32 s36, s36, s70")
        a(f"buffer_store_dwordx2 {vr(t,2)}, v4, s[16:19], s36 offen sc0 sc1")
        if i < 4: vm.op("PH")
    a.label("L_p3_no5")
    vm.op("PH")
    nw = len(vq)
    while vq: vq.pop(0)[1]()
    for i in range(5):
        if i == 4:
            a("s_cmp_eq_u32 s74, 1")
            a("s_cbranch_scc1 L_p3_no5b")
        x = ACC + i * 4; t = T + i * 8
        for h in range(2):
            a(f"v_lshlrev_b32 v{x+2*h}, 16, v{t+h}")
            a(f"v_and_b32 v{x+2*h+1}, 0xffff0000, v{t+h}")
        for h in range(2):
            a(pk("add", S_, S_, x + 2 * h))
            a(pk("fma", S_ + 2, x + 2 * h, x + 2 * h, S_ + 2))
    a.label("L_p3_no5b")
    a(f"v_add_f32 v{S_}, v{S_}, v{S_+1}")
    a(f"v_add_f32 v{S_+1}, v{S_+2}, v{S_+3}")
    xlane_sum_g(a, S_, 16); xlane_sum_g(a, S_ + 1, 16)
    a("s_lshl_b32 s36, s71, 10")
    a("s_lshl_b32 s37, s72, 8")
    a("s_add_u32 s36, s36, s37")
    a("s_lshl_b32 s37, s74, 3")
    a("s_add_u32 s36, s36, s37")
    vm.wait("PH")
    a(f"buffer_store_dwordx2 {vr(S_,2)}, v10, s[24:27], s36 offen sc0 sc1"); vm.op("PS")
    prof_stamp(a, 3, PV)

def k4_body(a, vm, fused, hook_late=None, hook_end=None):
    R = 144; NBUF = 18
    ACCB = [32, 56]; HOLD2 = 80; Z1P = 116
    NM2 = 152; C02 = 160; C12 = 168; RI2 = 176
    NM1 = 184; C01 = 186; C11 = 188; RI1 = 190
    CS2 = 192; CS1 = 204; SS = 240; QQ = 248
    VA = 201; VB = 202; VC = 203; PV = 1
    T0 = 8
    WFA = 144
    lg = LgTrack(a)
    if not fused: a("s_load_dwordx4 s[8:11], s[0:1], 72")
    a("s_and_b32 s13, s2, 7")
    a("s_lshr_b32 s14, s2, 3")
    a("s_and_b32 s15, s13, 1")
    a("s_lshl_b32 s15, s15, 3")
    a("s_and_b32 s28, s14, 7")
    a("s_add_u32 s28, s28, s15")
    a("s_lshr_b32 s15, s13, 1")
    a("s_lshl_b32 s15, s15, 2")
    a("s_lshr_b32 s29, s14, 3")
    a("s_add_u32 s29, s29, s15")
    a("v_lshlrev_b32 v4, 4, v1")
    a("v_add_u32 v5, 0x10000, v4")
    a("v_add_u32 v6, 0x20000, v4")
    a("v_add_u32 v7, 18432, v4")
    a("s_mul_i32 s30, s29, 288")
    a("s_mul_i32 s31, s29, 331776")
    a("s_mul_i32 s64, s12, 3072")
    a("s_mul_i32 s65, s12, 9216")
    a("s_add_u32 s66, s31, s64")
    a("s_add_u32 s67, s31, s65")
    a("s_lshl_b32 s33, s28, 2")
    a("s_add_u32 s33, s33, s12")
    a(f"s_mul_i32 s34, s33, {2*18*1024}")
    a("s_waitcnt lgkmcnt(0)")
    srd(a, 16, 10, 11, 128 * 18 * 1024, off_imm=H_OFF)
    srd(a, 20, 10, 11, 16 * 324 * 1024, off_imm=WP_OFF)
    if "3" in TLBT:
        srd(a, 36, 10, 11, 64 << 20)
        a("v_lshlrev_b32 v252, 20, v1")
        a("buffer_load_dword v253, v252, s[36:39], 0 offen"); vm.op("PF")
    if "d" in CPM and not TOPPF:
        a("s_lshl_b32 s35, s14, 2")
        a("s_add_u32 s35, s35, s12")
        for _ in range(code_prefetch(a, "L_kb_pf1", "L_kb_end", 36, 254, 35, nsl=128)): vm.op("PF")
    a.label("L_kb_pf1")
    PROF_K[0] = 2
    prof_init(a, 10); prof_real(a, 5, PV); prof_stamp(a, 0, PV)
    chunks = [(c, c + 12) for c in range(0, 72, 12)] + [(c, c + 36) for c in range(72, 324, 36)]
    chunk_of = {}
    for ci, (c0, c1) in enumerate(chunks):
        for u in range(c0, c1): chunk_of[u] = ci
    def dma(ci):
        c0, c1 = chunks[ci]; n = (c1 - c0) // 4
        def one(i):
            G = int(os.environ.get("K4G", "4"))
            if i % G == 0:
                a(f"s_add_u32 m0, s{64 if n == 3 else 65}, {((c0 % R) + i) * 1024}")
                a(f"s_add_u32 s35, s{66 if n == 3 else 67}, {(c0 + i) * 1024}")
            a(f"buffer_load_dwordx4 v4, s[20:23], s35 offen offset:{(i % G) * 1024} lds")
            vm.op(f"W{ci}")
        return [(f'W{ci}', lambda i=i: one(i)) for i in range(n)]
    def xload(ks):
        def one(rb):
            if rb == 0 and ks % 4 == 0: a(f"s_add_u32 s36, s34, {ks * 1024}")
            a(f"buffer_load_dwordx4 {ar((rb*18+ks)*4)}, v{4 if rb == 0 else 7}, s[16:19], s36 offen offset:{(ks % 4) * 1024}")
            vm.op(f"X{ks}")
        return [(f'X{ks}', lambda rb=rb: one(rb)) for rb in range(2)]
    HSB = Z1P
    def stats_loads():
        u = []
        def cs2(nb):
            if nb == 0:
                srd(a, 40, 10, 11, 4608 * 4, off_imm=CS_OFF)
                a("s_lshl_b32 s39, s30, 1")
                a("s_add_u32 s37, s39, 9216")
                a(f"v_lshlrev_b32 v{VB}, 2, v2")
                a(f"v_lshlrev_b32 v{VC}, 4, v3")
            a(f"buffer_load_dword v{CS2+nb}, v{VB}, s[40:43], s37 offen offset:{nb*64}")
            vm.op("CS")
        def cs1(nb):
            a(f"buffer_load_dwordx4 {vr(CS1+nb*4)}, v{VC}, s[40:43], s39 offen offset:{nb*64}")
            vm.op("CS")
        return [('CS', lambda nb=nb: cs2(nb)) for nb in range(9)] + [('CS', lambda nb=nb: cs1(nb)) for nb in range(9)]
    vq = []
    def need(tag):
        while any(t == tag for t, _ in vq): vq.pop(0)[1]()
        vm.wait(tag)
    nxt_chunk = 0
    csl = stats_loads()
    def push_chunks(limit):
        nonlocal nxt_chunk
        while nxt_chunk < len(chunks) and chunks[nxt_chunk][0] < limit and chunks[nxt_chunk][1] - R <= udone[0]:
            vq.extend(dma(nxt_chunk)); nxt_chunk += 1
    udone = [0]
    push_chunks(int(os.environ.get("P3CH", "48")))
    p3_body(a, vm, lg, vq)
    assert not vq
    a("s_lshl_b32 s37, s33, 11")
    a("s_mov_b32 s38, 0")
    a.label("L_p3_spin")
    for rb in range(2):
        a(f"buffer_load_dwordx4 {vr(HSB+rb*4)}, v4, s[24:27], s37 offen offset:{rb*1024} sc0 sc1")
    a("s_waitcnt vmcnt(0)")
    a(f"v_max3_u32 v8, v{HSB}, v{HSB+1}, v{HSB+2}")
    a(f"v_max3_u32 v8, v8, v{HSB+3}, v{HSB+4}")
    a(f"v_max3_u32 v8, v8, v{HSB+5}, v{HSB+6}")
    a(f"v_max_u32 v8, v8, v{HSB+7}")
    a("v_cmp_eq_u32 vcc, -1, v8")
    a("s_cmp_eq_u64 vcc, 0")
    a("s_cbranch_scc1 L_p3_go")
    a("s_add_u32 s38, s38, 1")
    a("s_cmp_lt_u32 s38, 0x20000")
    a("s_cbranch_scc0 L_p3_go")
    a("s_sleep 1")
    a("s_branch L_p3_spin")
    a.label("L_p3_go")
    prof_stamp(a, 4, PV); prof_real(a, 6, PV)
    PROF_K[0] += 1
    prof_init(a, 10); prof_real(a, 14, PV); prof_stamp(a, 0, PV)
    npro = 0
    for ks in range(18):
        push_chunks(min(3 * ks + 9, 60))
        vq.extend(xload(ks))
        if ks == 11: vq.extend(csl)
        if ks == NPRO: npro = len(vq)
    for _ in range(npro): vq.pop(0)[1]()
    srd(a, 44, 10, 11, 262144, off_imm=ST_OFF)
    srd(a, 52, 10, 11, 2304 * 4096, off_imm=Z2T_OFF)
    if not fused: srd(a, 56, 10, 11, 2304 * 4096, off_imm=Z1_OFF)
    def atomic(lst):
        def f():
            for x in lst: a(x)
            credit[0] = 6
        return f
    def stats_math():
        b_ = Buf()
        x = Buf()
        for rb in range(2):
            b = HSB + rb * 4
            x(pk("add", b, b, b + 2))
        for rb in range(2):
            b = HSB + rb * 4
            xlane_sum_g(x, b, 24); xlane_sum_g(x, b + 1, 24)
        b_.l.append(atomic(x.l))
        for rb in range(2):
            b = HSB + rb * 4
            b_(f"v_mov_b32 v{NM1+rb}, v{b}"); b_(f"v_mov_b32 v{RI1+rb}, v{b+1}")
        ln_ms(b_, [(NM1, RI1), (NM1 + 1, RI1 + 1)], 576)
        b_("v_lshlrev_b32 v24, 4, v3")
        def bp(rb, j):
            a(f"ds_bpermute_b32 v{RI2+rb*4+j}, v24, v{RI1+rb} offset:{4*j}"); lg.op("BP")
            a(f"ds_bpermute_b32 v{NM2+rb*4+j}, v24, v{NM1+rb} offset:{4*j}"); lg.op("BP")
        for rb in range(2):
            for j in range(4): b_.l.append(lambda rb=rb, j=j: bp(rb, j))
        def derive(ri, c0, c1, n):
            for i in range(n): b_(f"v_rcp_f32 v{c0+i}, v{ri+i}")
            b_("s_nop 0")
            for i in range(n): b_(f"v_mul_f32 v{c1+i}, v{c0+i}, v{c0+i}")
            for i in range(n): b_(f"v_mul_f32 v{c1+i}, v{c1+i}, v{c0+i}")
            for i in range(n):
                b_(f"v_mul_f32 v{c0+i}, {f32bits(GK0):#x}, v{c0+i}")
                b_(f"v_mul_f32 v{c1+i}, {f32bits(GK1):#x}, v{c1+i}")
        derive(RI1, C01, C11, 2)
        for i in range(16): b_(f"v_mov_b32 v{SS+i}, 0")
        b_.l.append(lambda: lg.wait("BP"))
        derive(RI2, C02, C12, 8)
        b_.l.append(lambda: need("CS"))
        return b_.l
    def epi(p, tail=False):
        z2 = p < 3
        b_ = Buf()
        Q = [(il, rb) for il in range(3) for rb in range(2)]
        X = lambda q: ACCB[p & 1] + q * 4
        T = lambda q: T0 + q * 4
        def c(base2, base1, rb, h): return base2 + rb * 4 + h if z2 else ('b', base1 + rb)
        def cv(base2, base1, rb, j): return base2 + rb * 4 + j if z2 else base1 + rb
        A = Buf()
        for q, (il, rb) in enumerate(Q):
            nb = 3 * (p % 3) + il
            for h in (0, 2):
                if z2: A(pk("fma", X(q) + h, NM2 + rb * 4 + h, ('b', CS2 + nb), X(q) + h))
                else: A(pk("fma", X(q) + h, CS1 + nb * 4 + h, ('b', NM1 + rb), X(q) + h))
        for q, (il, rb) in enumerate(Q):
            for h in (0, 2): A(pk("mul", T(q) + h, X(q) + h, X(q) + h))
        for q, (il, rb) in enumerate(Q):
            for h in (0, 2): A(pk("fma", T(q) + h, T(q) + h, c(C12, C11, rb, h), c(C02, C01, rb, h)))
        for q, (il, rb) in enumerate(Q):
            for h in (0, 2): A(pk("mul", T(q) + h, T(q) + h, X(q) + h))
        b_.l.append(atomic(A.l))
        for i in range(24): b_(f"v_exp_f32 v{T0+i}, v{T0+i}")
        for q, (il, rb) in enumerate(Q):
            if tail:
                for h in (0, 2): b_(pk("fma", T(q) + h, T(q) + h, c(RI2, RI1, rb, h), c(RI2, RI1, rb, h)))
            else:
                for j in range(4): b_(f"v_fma_f32 v{T(q)+j}, v{T(q)+j}, v{cv(RI2, RI1, rb, j)}, v{cv(RI2, RI1, rb, j)}")
        for i in range(24): b_(f"v_rcp_f32 v{T0+i}, v{T0+i}")
        if z2 or tail:
            E = Buf()
            for q in range(6):
                for h in (0, 2): E(pk("mul", X(q) + h, X(q) + h, T(q) + h))
            if z2:
                for q, (il, rb) in enumerate(Q):
                    for h in (0, 2):
                        E(pk("add", SS + rb * 4 + h, SS + rb * 4 + h, X(q) + h))
                        E(pk("fma", QQ + rb * 4 + h, X(q) + h, X(q) + h, QQ + rb * 4 + h))
            b_.l.append(atomic(E.l))
        else:
            for i in range(24): b_(f"v_mul_f32 v{X(0)+i}, v{X(0)+i}, v{T0+i}")
        if p == 2:
            b_("s_nop 1")
            row16_sum(b_, list(range(SS, SS + 16)))
            b_.l.append(st_publish)
        for q, (il, rb) in enumerate(Q):
            nb = 3 * (p % 3) + il
            for h in (0, 2):
                b_(f"v_cvt_pk_bf16_f32 v{(HOLD2 if z2 else Z1P)+nb*4+rb*2+h//2}, v{X(q)+h}, v{X(q)+h+1}")
            if not z2 and not fused and rb == 1:
                def st(nb=nb):
                    if nb == 0:
                        a("s_mul_i32 s69, s33, 144")
                        a("s_mul_i32 s37, s29, 9")
                        a("s_add_u32 s69, s69, s37")
                        a("s_lshl_b32 s69, s69, 10")
                    a(f"s_add_u32 s37, s69, {nb*1024}")
                    a(f"buffer_store_dwordx4 {vr(Z1P+nb*4)}, v4, s[56:59], s37 offen")
                    vm.op("Z1")
                b_.l.append(st)
        b_.l.append(f"MARK_E{p}")
        return b_.l
    def st_publish():
        a("s_lshl_b32 s36, s28, 4")
        a("s_add_u32 s36, s36, s29")
        a("s_lshl_b32 s36, s36, 10")
        a("s_lshl_b32 s37, s12, 8")
        a("s_add_u32 s36, s36, s37")
        a(f"v_lshlrev_b32 v{VA}, 5, v3")
        a(f"v_lshl_add_u32 v{VB}, v2, 24, v{VA}")
        a(f"v_lshl_add_u32 v{VA}, v2, 10, v{VA}")
        for rb in range(2):
            a(f"buffer_store_dwordx4 {vr(SS+rb*4)}, v{VB}, s[44:47], s36 offen offset:{rb*128} sc0 sc1")
            a(f"buffer_store_dwordx4 {vr(QQ+rb*4)}, v{VB}, s[44:47], s36 offen offset:{rb*128+16} sc0 sc1")
            vm.op("ST"); vm.op("ST")
        a("s_lshl_b32 s68, s28, 14")
        a("s_add_u32 s68, s68, s37")
        prof_stamp(a, 8, PV)
    def poll_loads(track=True):
        for rb in range(2):
            a(f"buffer_load_dwordx4 {vr(SS+rb*4)}, v{VA}, s[44:47], s68 offen offset:{rb*128} sc0 sc1")
            a(f"buffer_load_dwordx4 {vr(QQ+rb*4)}, v{VA}, s[44:47], s68 offen offset:{rb*128+16} sc0 sc1")
            if track: vm.op("PL"); vm.op("PL")
    def poll_check():
        T = T0
        prof_stamp(a, 9, PV)
        vm.wait("PL")
        a("s_mov_b32 s38, 0")
        a.label("L_k4_spin")
        for i in range(0, 8, 2): a(pk("add", T + i, SS + i, QQ + i))
        a(pk("add", T, T, T + 2)); a(pk("add", T + 4, T + 4, T + 6)); a(pk("add", T, T, T + 4))
        a(f"v_cmp_u_f32 vcc, v{T}, v{T+1}")
        a("s_cmp_eq_u64 vcc, 0")
        a("s_cbranch_scc1 L_k4_go")
        a("s_add_u32 s38, s38, 1")
        a("s_cmp_lt_u32 s38, 0x20000")
        a("s_cbranch_scc0 L_k4_go")
        a("s_sleep 1")
        poll_loads(False)
        a("s_waitcnt vmcnt(0)")
        a("s_branch L_k4_spin")
        a.label("L_k4_go")
        prof_stamp(a, 10, PV)
    def norm_z2():
        b_ = Buf()
        b_.l.append(poll_check)
        row16_sum(b_, list(range(SS, SS + 16)))
        ln_scalars(b_, [(SS + i, QQ + i) for i in range(8)], 2304)
        b_("s_mul_i32 s70, s29, 576")
        b_("s_lshr_b32 s37, s33, 1")
        b_("s_mul_i32 s37, s37, 18")
        b_("s_add_u32 s70, s70, s37")
        b_("s_and_b32 s37, s33, 1")
        b_("s_add_u32 s70, s70, s37")
        b_("s_lshl_b32 s70, s70, 10")
        for nb in range(9):
            T = T0 + (nb & 1) * 8
            for p in range(4):
                t = T + 2 * p; hreg = HOLD2 + nb * 4 + p
                b_(f"v_lshlrev_b32 v{t}, 16, v{hreg}")
                b_(f"v_and_b32 v{t+1}, 0xffff0000, v{hreg}")
            for p in range(4): b_(pk("fma", T + 2 * p, T + 2 * p, QQ + 2 * p, SS + 2 * p))
            for p in range(4): b_(f"v_cvt_pk_bf16_f32 v{HOLD2+nb*4+p}, v{T+2*p}, v{T+2*p+1}")
            def st(nb=nb):
                a(f"s_add_u32 s37, s70, {nb*2048}")
                a(f"buffer_store_dwordx4 {vr(HOLD2+nb*4)}, v4, s[52:55], s37 offen" + (" sc0 sc1" if fused else ""))
                vm.op("Z2")
            b_.l.append(st)
        b_.l.append(lambda: prof_stamp(a, 11, PV))
        return b_.l
    units = [(p, ks, il) for p in range(6) for ks in range(18) for il in range(3)]
    for u, (p, ks, il) in enumerate(units): assert wp_unit(2 if p < 3 else 1, ks, 3 * (p % 3) + il) == u
    marks = set()
    valu = []
    def read(u):
        ci = chunk_of[u]
        if chunks[ci][0] == u:
            need(f"W{ci}")
            a("s_barrier")
            d = u - 1
            while d >= 0 and not lg.completed(f"R{d}"): d -= 1
            udone[0] = d + 1
            push_chunks(10000)
        pos = (u % R) * 1024
        a(f"ds_read_b128 {ar(WFA + (u % NBUF) * 4)}, v{4 + (pos >> 16)} offset:{pos & 0xffff}")
        lg.op(f"R{u}")
        credit[0] -= 5
    def emit_valu(budget, until=None):
        credit[0] += budget
        while valu and (credit[0] > 0 or (until and until not in marks)):
            it = valu.pop(0)
            if callable(it): it()
            elif it.startswith("MARK"): marks.add(it); continue
            else: a(it)
            credit[0] -= icost(it)
        if not valu: credit[0] = min(credit[0], 0)
    credit = [0.0]
    for u in range(DLA): read(u)
    credit[0] = 0
    prof_stamp(a, 1, PV)
    slot = 0
    for u, (p, ks, il) in enumerate(units):
        if u % 54 == 0 and p >= 2:
            emit_valu(0, until=f"MARK_E{p-2}"); credit[0] = 0
        if u % 54 == 0 and p >= 1: prof_stamp(a, 1 + p, PV)
        if p == 0 and il == 0: need(f"X{ks}")
        if u % 3 == 0: lg.wait(f"R{u+2}")
        if u == 15: valu.extend(stats_math())
        if u % 54 == 1 and p >= 1:
            valu.extend(epi(p - 1))
        if u == 300:
            poll_loads()
            if hook_late:
                vq.extend(hook_late())
        wf = ar(WFA + (u % NBUF) * 4)
        for rb in range(2):
            xa = ar((rb * 18 + ks) * 4)
            acc = ACCB[p & 1] + (il * 2 + rb) * 4
            if p < 3: a(f"v_mfma_f32_16x16x32_bf16 {vr(acc)}, {xa}, {wf}, {vr(acc) if ks else 0}")
            else: a(f"v_mfma_f32_16x16x32_bf16 {vr(acc)}, {wf}, {xa}, {vr(acc) if ks else 0}")
            if rb == 0 and u + DLA < 324: read(u + DLA)
            if slot % (VPACE if p else 2) == 1 and vq: vq.pop(0)[1](); credit[0] -= 5
            emit_valu(BUD)
            slot += 1
    assert not vq
    prof_stamp(a, 7, PV)
    if hook_end: hook_end()
    valu.extend(["s_nop 7"] + norm_z2() + epi(5, tail=True))
    while valu: emit_valu(1e9)
    return Z1P

def gen_k4():
    a = Asm()
    vm = VmTrack(a)
    common_prologue(a, 256, "L_k4_end")
    k4_body(a, vm, False)
    if PROF:
        a("s_waitcnt vmcnt(0)")
    for i in range(12, 14): prof_stamp(a, i, 1)
    prof_real(a, 15, 1)
    a.label("L_k4_end")
    a("s_endpgm")
    return a.text(), dict(vgpr=256, agpr=216, grid=256, block=256, lds=144 * 1024)
```

```python
from asmlib import *
from gen_common import *
BUD = float(os.environ.get("K4BUD", "8"))
VPACE = int(os.environ.get("K4VP", "3"))
DLA = int(os.environ.get("K4D", "8"))
NPRO = int(os.environ.get("K4PRO", "7"))
class LgTrack:
    def __init__(self, a): self.a = a; self.ops = []; self.done = -1
    def op(self, tag): self.ops.append(tag)
    def wait(self, tag):
        idx = max(i for i, t in enumerate(self.ops) if t == tag)
        if idx <= self.done: return
        n = min(len(self.ops) - 1 - idx, 15)
        self.a(f"s_waitcnt lgkmcnt({n})")
        self.done = len(self.ops) - 1 - n
    def wait_all(self):
        self.a("s_waitcnt lgkmcnt(0)"); self.done = len(self.ops) - 1
    def completed(self, tag):
        return tag in self.ops[:self.done + 1]

def p3_body(a, vm, lg, vq):
    PB = 71680; OF = 0; WFA = 144; NBUF = 18; ACC = 32; RES = 52; T = 64; PV = 1
    a("s_and_b32 s71, s29, 7")
    a("s_lshr_b32 s72, s71, 1")
    a("s_mul_i32 s73, s72, 9")
    a("s_and_b32 s74, s71, 1")
    a("s_mul_i32 s75, s74, 5")
    a("s_add_u32 s73, s73, s75")
    a("s_lshr_b32 s75, s29, 3")
    a("s_lshl_b32 s75, s75, 2")
    a("s_lshl_b32 s71, s28, 3")
    a("s_add_u32 s71, s71, s75")
    a("s_add_u32 s71, s71, s12")
    a("s_mul_i32 s68, s12, 36")
    a("s_add_u32 s68, s68, s73")
    a("s_add_u32 s68, s68, 2592")
    a("s_lshl_b32 s68, s68, 10")
    a("s_mul_i32 s69, s12, 5120")
    a(f"s_add_u32 s69, s69, {PB}")
    a("s_mul_i32 s70, s71, 18432")
    a("v_add_u32 v8, 4096, v4")
    srd(a, 48, 10, 11, 128 * 18 * 1024, off_imm=O_OFF)
    srd(a, 56, 10, 11, 3240 * 1024, off_imm=WOP_OFF)
    pq = []
    def wround(t):
        def f(i):
            if t == 4:
                a("s_cmp_ge_u32 s12, 2")
                a(f"s_cbranch_scc1 L_p3_now{i}")
            if i % 4 == 0:
                a(f"s_add_u32 m0, s69, {t*20480 + i*1024}")
                a(f"s_add_u32 s35, s68, {t*4*36*1024}")
            if i < 4: a(f"buffer_load_dwordx4 v4, s[56:59], s35 offen offset:{i*1024} lds")
            else: a(f"buffer_load_dwordx4 v8, s[56:59], s35 offen lds")
            if t < 4: vm.op(f"PW{t}")
            else: a.label(f"L_p3_now{i}")
        return [(f"PW{t}", lambda i=i: f(i)) for i in range(5)]
    def oload(ks):
        if ks % 4 == 0: a(f"s_add_u32 s36, s70, {ks*1024}")
        a(f"buffer_load_dwordx4 {ar(OF+ks*4)}, v4, s[48:51], s36 offen offset:{(ks%4)*1024}"); vm.op(f"PO{ks}")
    for t in range(5):
        pq += wround(t)
        pq += [(f"PO{ks}", lambda ks=ks: oload(ks)) for ks in range(4 * t, min(4 * t + 4, 18))]
    for _ in range(int(os.environ.get("P3PRO", "18"))): pq.pop(0)[1]()
    def pneed(tag):
        while any(t_ == tag for t_, _ in pq): pq.pop(0)[1]()
        vm.wait(tag)
    srd(a, 60, 86, 87, 2048 * 1152)
    XB = 49152
    m_, sh_ = magic_div(10, 192)
    for i in range(3):
        a("v_lshrrev_b32 v9, 4, v4")
        a(f"v_add_u32 v9, {64*i}, v9")
        a(f"v_mul_u32_u24 v11, {m_}, v9")
        a(f"v_lshrrev_b32 v11, {sh_}, v11")
        a(f"v_mul_u32_u24 v11, {1152-160}, v11")
        a(f"v_lshl_add_u32 v{RES+i}, v9, 4, v11")
    a(f"s_mul_i32 s38, s71, {16*1152}")
    a("s_lshl_b32 s37, s73, 5")
    a("s_add_u32 s38, s38, s37")
    a("s_mul_i32 s39, s12, 3072")
    a(f"s_add_u32 s39, s39, {XB}")
    a("v_mul_u32_u24 v9, 160, v2")
    a("v_lshl_add_u32 v9, v3, 3, v9")
    a("v_add_u32 v9, s39, v9")
    def res(i):
        a(f"s_add_u32 m0, s39, {i*1024}")
        a("s_nop 0")
        a(f"buffer_load_dwordx4 v{RES+i}, s[60:63], s38 offen lds"); vm.op("PR")
    RP = int(os.environ.get("P3RP", "99"))
    pq[RP:RP] = [("PR", lambda i=i: res(i)) for i in range(3)]
    srd(a, 24, 10, 11, 131072, off_imm=HS_OFF)
    a("v_lshlrev_b32 v10, 3, v2")
    a("v_lshl_add_u32 v10, v3, 28, v10")
    D = 8
    def read(u):
        ks, i = divmod(u, 5)
        if u % 20 == 0:
            pneed(f"PW{ks//4}" if ks < 16 else "PO16")
            a("s_barrier")
        pos = PB + ks * 5120 + i * 1024
        a(f"ds_read_b128 {ar(WFA + (u % NBUF) * 4)}, v{4 + (pos >> 16)} offset:{pos & 0xffff}")
        lg.op(f"P{u}")
    for u in range(D): read(u)
    prof_stamp(a, 1, PV)
    for u in range(90):
        ks, i = divmod(u, 5)
        if i == 0: pneed(f"PO{ks}")
        if u % 2 == 0: lg.wait(f"P{min(u+1, 89)}")
        a(f"v_mfma_f32_16x16x32_bf16 {vr(ACC+i*4)}, {ar(WFA + (u % NBUF) * 4)}, {ar(OF+ks*4)}, {vr(ACC+i*4) if ks else 0}")
        if u + D < 90: read(u + D)
        if pq: pq.pop(0)[1]()
    assert not pq
    prof_stamp(a, 2, PV)
    vm.wait("PR")
    for i in range(5): a(f"ds_read_b64 {vr(RES+2*i,2)}, v9 offset:{i*32}")
    lg.wait_all()
    prof_stamp(a, 8, PV)
    if PROF: vm.op("P")
    S_ = 12
    for j in range(4): a(f"v_mov_b32 v{S_+j}, 0")
    HB = T + 40
    for i in range(5):
        x = ACC + i * 4; t = T + i * 8
        for h in range(2): a(f"v_cvt_pk_bf16_f32 v{t+h}, v{x+2*h}, v{x+2*h+1}")
        for h in range(2):
            a(f"v_lshlrev_b32 v{x+2*h}, 16, v{t+h}")
            a(f"v_and_b32 v{x+2*h+1}, 0xffff0000, v{t+h}")
            a(f"v_lshlrev_b32 v{t+2+2*h}, 16, v{RES+2*i+h}")
            a(f"v_and_b32 v{t+3+2*h}, 0xffff0000, v{RES+2*i+h}")
        for h in range(2): a(pk("add", x + 2 * h, x + 2 * h, t + 2 + 2 * h))
        for h in range(2): a(f"v_cvt_pk_bf16_f32 v{HB+2*i+h}, v{x+2*h}, v{x+2*h+1}")
    a("s_lshr_b32 s36, s72, 1")
    a(f"s_mul_i32 s36, s36, {9*1024}")
    a("s_add_u32 s36, s36, s70")
    a("s_add_u32 s37, s36, 4096")
    a("v_lshrrev_b32 v11, 1, v4")
    def x4(i, ks): a(f"buffer_store_dwordx4 {vr(HB+2*i)}, v4, s[16:19], s{36 + ks//4} offen offset:{(ks%4)*1024} sc0 sc1")
    def x2(i, ks, h): a(f"buffer_store_dwordx2 {vr(HB+2*i,2)}, v11, s[16:19], s{36 + ks//4} offen offset:{(ks%4)*1024 + h*512} sc0 sc1")
    a("s_bitcmp1_b32 s72, 0")
    a("s_cbranch_scc1 L_p3_sc")
    a("s_cmp_eq_u32 s74, 1")
    a("s_cbranch_scc1 L_p3_sb")
    x4(0, 0); x4(2, 1); x2(4, 2, 0)
    a("s_branch L_p3_se")
    a.label("L_p3_sb")
    x2(0, 2, 1); x4(1, 3); x2(3, 4, 0)
    a("s_branch L_p3_se")
    a.label("L_p3_sc")
    a("s_cmp_eq_u32 s74, 1")
    a("s_cbranch_scc1 L_p3_sd")
    x2(0, 4, 1); x4(1, 5); x4(3, 6)
    a("s_branch L_p3_se")
    a.label("L_p3_sd")
    a("s_add_u32 s36, s36, 8192")
    x4(0, 7); x4(2, 0)
    a.label("L_p3_se")
    vm.op("PH")
    prof_stamp(a, 9, PV)
    if PROF: vm.op("P")
    for _ in range(int(os.environ.get("P3WE", "0"))): vq.pop(0)[1]()
    for i in range(5):
        if i == 4:
            a("s_cmp_eq_u32 s74, 1")
            a("s_cbranch_scc1 L_p3_no5b")
        x = ACC + i * 4; t = HB + i * 2
        for h in range(2):
            a(f"v_lshlrev_b32 v{x+2*h}, 16, v{t+h}")
            a(f"v_and_b32 v{x+2*h+1}, 0xffff0000, v{t+h}")
        for h in range(2):
            a(pk("add", S_, S_, x + 2 * h))
            a(pk("fma", S_ + 2, x + 2 * h, x + 2 * h, S_ + 2))
    a.label("L_p3_no5b")
    a(f"v_add_f32 v{S_}, v{S_}, v{S_+1}")
    a(f"v_add_f32 v{S_+1}, v{S_+2}, v{S_+3}")
    xlane_sum_g(a, S_, 16); xlane_sum_g(a, S_ + 1, 16)
    a("s_lshl_b32 s36, s71, 10")
    a("s_lshl_b32 s37, s72, 8")
    a("s_add_u32 s36, s36, s37")
    a("s_lshl_b32 s37, s74, 7")
    a("s_add_u32 s36, s36, s37")
    prof_stamp(a, 11, PV)
    if PROF: vm.op("P")
    vm.wait("PH")
    a(f"buffer_store_dwordx2 {vr(S_,2)}, v10, s[24:27], s36 offen sc0 sc1"); vm.op("PS")
    prof_stamp(a, 3, PV)
    while vq: vq.pop(0)[1]()
    prof_stamp(a, 10, PV)

def k4_body(a, vm, fused, hook_late=None, hook_end=None):
    R = 144; NBUF = 18
    ACCB = [32, 56]; HOLD2 = 80; Z1P = 116
    NM2 = 152; C02 = 160; C12 = 168; RI2 = 176
    NM1 = 184; C01 = 186; C11 = 188; RI1 = 190
    CS2 = 192; CS1 = 204; SS = 240; QQ = 248
    VA = 201; VB = 202; VC = 203; PV = 1; VH = 114
    T0 = 8
    WFA = 144
    lg = LgTrack(a)
    if not fused: a("s_load_dwordx4 s[8:11], s[0:1], 72")
    a("s_and_b32 s13, s2, 7")
    a("s_lshr_b32 s14, s2, 3")
    a("s_and_b32 s15, s13, 1")
    a("s_lshl_b32 s15, s15, 3")
    a("s_and_b32 s28, s14, 7")
    a("s_add_u32 s28, s28, s15")
    a("s_lshr_b32 s15, s13, 1")
    a("s_lshl_b32 s15, s15, 2")
    a("s_lshr_b32 s29, s14, 3")
    a("s_add_u32 s29, s29, s15")
    a("v_lshlrev_b32 v4, 4, v1")
    a("v_add_u32 v5, 0x10000, v4")
    a("v_add_u32 v6, 0x20000, v4")
    a("v_add_u32 v7, 18432, v4")
    a("s_mul_i32 s30, s29, 288")
    a("s_mul_i32 s31, s29, 331776")
    a("s_mul_i32 s64, s12, 3072")
    a("s_mul_i32 s65, s12, 9216")
    a("s_add_u32 s66, s31, s64")
    a("s_add_u32 s67, s31, s65")
    a("s_lshl_b32 s33, s28, 2")
    a("s_add_u32 s33, s33, s12")
    a(f"s_mul_i32 s34, s33, {2*18*1024}")
    a("s_waitcnt lgkmcnt(0)")
    srd(a, 16, 10, 11, 128 * 18 * 1024, off_imm=H_OFF)
    srd(a, 20, 10, 11, 16 * 324 * 1024, off_imm=WP_OFF)
    if "d" in CPM and not TOPPF:
        a("s_lshl_b32 s35, s14, 2")
        a("s_add_u32 s35, s35, s12")
        for _ in range(code_prefetch(a, "L_kb_pf1", "L_kb_end", 36, 254, 35, nsl=128)): vm.op("PF")
    a.label("L_kb_pf1")
    PROF_K[0] = 2
    prof_init(a, 10); prof_real(a, 5, PV); prof_stamp(a, 0, PV)
    chunks = [(c, c + 12) for c in range(0, 72, 12)] + [(c, c + 36) for c in range(72, 324, 36)]
    chunk_of = {}
    for ci, (c0, c1) in enumerate(chunks):
        for u in range(c0, c1): chunk_of[u] = ci
    def dma(ci):
        c0, c1 = chunks[ci]; n = (c1 - c0) // 4
        def one(i):
            G = int(os.environ.get("K4G", "4"))
            if i % G == 0:
                a(f"s_add_u32 m0, s{64 if n == 3 else 65}, {((c0 % R) + i) * 1024}")
                a(f"s_add_u32 s35, s{66 if n == 3 else 67}, {(c0 + i) * 1024}")
            a(f"buffer_load_dwordx4 v4, s[20:23], s35 offen offset:{(i % G) * 1024} lds")
            vm.op(f"W{ci}")
        return [(f'W{ci}', lambda i=i: one(i)) for i in range(n)]
    def xload(ks):
        def one(rb):
            if rb == 0 and ks % 4 == 0: a(f"s_add_u32 s36, s34, {ks * 1024}")
            if ks in HSPLIT:
                for h in range(2):
                    a(f"buffer_load_dwordx2 {ar((rb*18+ks)*4+2*h,2)}, v{VH+rb}, s[16:19], s36 offen offset:{(ks % 4) * 1024 + h * 512}")
                    vm.op(f"X{ks}")
            else:
                a(f"buffer_load_dwordx4 {ar((rb*18+ks)*4)}, v{4 if rb == 0 else 7}, s[16:19], s36 offen offset:{(ks % 4) * 1024}")
                vm.op(f"X{ks}")
        return [(f'X{ks}', lambda rb=rb: one(rb)) for rb in range(2)]
    HSB = Z1P
    def stats_loads():
        u = []
        def cs2(nb):
            if nb == 0:
                srd(a, 40, 10, 11, 4608 * 4, off_imm=CS_OFF)
                a("s_lshl_b32 s39, s30, 1")
                a("s_add_u32 s37, s39, 9216")
                a(f"v_lshlrev_b32 v{VB}, 2, v2")
                a(f"v_lshlrev_b32 v{VC}, 4, v3")
            a(f"buffer_load_dword v{CS2+nb}, v{VB}, s[40:43], s37 offen offset:{nb*64}")
            vm.op("CS")
        def cs1(nb):
            a(f"buffer_load_dwordx4 {vr(CS1+nb*4)}, v{VC}, s[40:43], s39 offen offset:{nb*64}")
            vm.op("CS")
        return [('CS', lambda nb=nb: cs2(nb)) for nb in range(9)] + [('CS', lambda nb=nb: cs1(nb)) for nb in range(9)]
    vq = []
    def need(tag):
        while any(t == tag for t, _ in vq): vq.pop(0)[1]()
        vm.wait(tag)
    nxt_chunk = 0
    csl = stats_loads()
    def push_chunks(limit):
        nonlocal nxt_chunk
        while nxt_chunk < len(chunks) and chunks[nxt_chunk][0] < limit and chunks[nxt_chunk][1] - R <= udone[0]:
            vq.extend(dma(nxt_chunk)); nxt_chunk += 1
    udone = [0]
    push_chunks(int(os.environ.get("P3CH", "48")))
    p3_body(a, vm, lg, vq)
    assert not vq
    a("s_lshl_b32 s37, s33, 11")
    a("s_mov_b32 s38, 0")
    a("v_lshlrev_b32 v9, 3, v2")
    a("v_lshl_add_u32 v9, v3, 8, v9")
    a.label("L_p3_spin")
    for rb in range(2):
        for c in range(2):
            a(f"buffer_load_dwordx2 {vr(HSB+rb*4+2*c,2)}, v9, s[24:27], s37 offen offset:{rb*1024+c*128} sc0 sc1")
    a("s_waitcnt vmcnt(0)")
    a(f"v_max3_u32 v8, v{HSB}, v{HSB+1}, v{HSB+2}")
    a(f"v_max3_u32 v8, v8, v{HSB+3}, v{HSB+4}")
    a(f"v_max3_u32 v8, v8, v{HSB+5}, v{HSB+6}")
    a(f"v_max_u32 v8, v8, v{HSB+7}")
    a("v_cmp_eq_u32 vcc, -1, v8")
    a("s_cmp_eq_u64 vcc, 0")
    a("s_cbranch_scc1 L_p3_go")
    a("s_add_u32 s38, s38, 1")
    a("s_cmp_lt_u32 s38, 0x20000")
    a("s_cbranch_scc0 L_p3_go")
    a("s_sleep 1")
    a("s_branch L_p3_spin")
    a.label("L_p3_go")
    prof_stamp(a, 4, PV); prof_real(a, 6, PV)
    PROF_K[0] += 1
    prof_init(a, 10); prof_real(a, 14, PV); prof_stamp(a, 0, PV)
    a(f"v_lshrrev_b32 v{VH}, 1, v4")
    a(f"v_add_u32 v{VH+1}, 18432, v{VH}")
    npro = 0
    for ks in range(18):
        push_chunks(min(3 * ks + 9, 60))
        vq.extend(xload(ks))
        if ks == 11: vq.extend(csl)
        if ks == NPRO: npro = len(vq)
    for _ in range(npro): vq.pop(0)[1]()
    srd(a, 44, 10, 11, 262144, off_imm=ST_OFF)
    srd(a, 52, 10, 11, 2304 * 4096, off_imm=Z2T_OFF)
    if not fused: srd(a, 56, 10, 11, 2304 * 4096, off_imm=Z1_OFF)
    def atomic(lst):
        def f():
            for x in lst: a(x)
            credit[0] = 6
        return f
    def stats_math():
        b_ = Buf()
        x = Buf()
        for rb in range(2):
            b = HSB + rb * 4
            x(pk("add", b, b, b + 2))
        for rb in range(2):
            b = HSB + rb * 4
            xlane_sum_g(x, b, 24); xlane_sum_g(x, b + 1, 24)
        b_.l.append(atomic(x.l))
        for rb in range(2):
            b = HSB + rb * 4
            b_(f"v_mov_b32 v{NM1+rb}, v{b}"); b_(f"v_mov_b32 v{RI1+rb}, v{b+1}")
        ln_ms(b_, [(NM1, RI1), (NM1 + 1, RI1 + 1)], 576)
        b_("v_lshlrev_b32 v24, 4, v3")
        def bp(rb, j):
            a(f"ds_bpermute_b32 v{RI2+rb*4+j}, v24, v{RI1+rb} offset:{4*j}"); lg.op("BP")
            a(f"ds_bpermute_b32 v{NM2+rb*4+j}, v24, v{NM1+rb} offset:{4*j}"); lg.op("BP")
        for rb in range(2):
            for j in range(4): b_.l.append(lambda rb=rb, j=j: bp(rb, j))
        def derive(ri, c0, c1, n):
            for i in range(n): b_(f"v_rcp_f32 v{c0+i}, v{ri+i}")
            b_("s_nop 0")
            for i in range(n): b_(f"v_mul_f32 v{c1+i}, v{c0+i}, v{c0+i}")
            for i in range(n): b_(f"v_mul_f32 v{c1+i}, v{c1+i}, v{c0+i}")
            for i in range(n):
                b_(f"v_mul_f32 v{c0+i}, {f32bits(GK0):#x}, v{c0+i}")
                b_(f"v_mul_f32 v{c1+i}, {f32bits(GK1):#x}, v{c1+i}")
        derive(RI1, C01, C11, 2)
        for i in range(16): b_(f"v_mov_b32 v{SS+i}, 0")
        b_.l.append(lambda: lg.wait("BP"))
        derive(RI2, C02, C12, 8)
        b_.l.append(lambda: need("CS"))
        return b_.l
    def epi(p, tail=False):
        z2 = p < 3
        b_ = Buf()
        Q = [(il, rb) for il in range(3) for rb in range(2)]
        X = lambda q: ACCB[p & 1] + q * 4
        T = lambda q: T0 + q * 4
        def c(base2, base1, rb, h): return base2 + rb * 4 + h if z2 else ('b', base1 + rb)
        def cv(base2, base1, rb, j): return base2 + rb * 4 + j if z2 else base1 + rb
        A = Buf()
        for q, (il, rb) in enumerate(Q):
            nb = 3 * (p % 3) + il
            for h in (0, 2):
                if z2: A(pk("fma", X(q) + h, NM2 + rb * 4 + h, ('b', CS2 + nb), X(q) + h))
                else: A(pk("fma", X(q) + h, CS1 + nb * 4 + h, ('b', NM1 + rb), X(q) + h))
        for q, (il, rb) in enumerate(Q):
            for h in (0, 2): A(pk("mul", T(q) + h, X(q) + h, X(q) + h))
        for q, (il, rb) in enumerate(Q):
            for h in (0, 2): A(pk("fma", T(q) + h, T(q) + h, c(C12, C11, rb, h), c(C02, C01, rb, h)))
        for q, (il, rb) in enumerate(Q):
            for h in (0, 2): A(pk("mul", T(q) + h, T(q) + h, X(q) + h))
        b_.l.append(atomic(A.l))
        for i in range(24): b_(f"v_exp_f32 v{T0+i}, v{T0+i}")
        for q, (il, rb) in enumerate(Q):
            if tail:
                for h in (0, 2): b_(pk("fma", T(q) + h, T(q) + h, c(RI2, RI1, rb, h), c(RI2, RI1, rb, h)))
            else:
                for j in range(4): b_(f"v_fma_f32 v{T(q)+j}, v{T(q)+j}, v{cv(RI2, RI1, rb, j)}, v{cv(RI2, RI1, rb, j)}")
        for i in range(24): b_(f"v_rcp_f32 v{T0+i}, v{T0+i}")
        if z2 or tail:
            E = Buf()
            for q in range(6):
                for h in (0, 2): E(pk("mul", X(q) + h, X(q) + h, T(q) + h))
            if z2:
                for q, (il, rb) in enumerate(Q):
                    for h in (0, 2):
                        E(pk("add", SS + rb * 4 + h, SS + rb * 4 + h, X(q) + h))
                        E(pk("fma", QQ + rb * 4 + h, X(q) + h, X(q) + h, QQ + rb * 4 + h))
            b_.l.append(atomic(E.l))
        else:
            for i in range(24): b_(f"v_mul_f32 v{X(0)+i}, v{X(0)+i}, v{T0+i}")
        if p == 2:
            b_("s_nop 1")
            row16_sum(b_, list(range(SS, SS + 16)))
            b_.l.append(st_publish)
        for q, (il, rb) in enumerate(Q):
            nb = 3 * (p % 3) + il
            for h in (0, 2):
                b_(f"v_cvt_pk_bf16_f32 v{(HOLD2 if z2 else Z1P)+nb*4+rb*2+h//2}, v{X(q)+h}, v{X(q)+h+1}")
            if not z2 and not fused and rb == 1:
                def st(nb=nb):
                    if nb == 0:
                        a("s_mul_i32 s69, s33, 144")
                        a("s_mul_i32 s37, s29, 9")
                        a("s_add_u32 s69, s69, s37")
                        a("s_lshl_b32 s69, s69, 10")
                    a(f"s_add_u32 s37, s69, {nb*1024}")
                    a(f"buffer_store_dwordx4 {vr(Z1P+nb*4)}, v4, s[56:59], s37 offen")
                    vm.op("Z1")
                b_.l.append(st)
        b_.l.append(f"MARK_E{p}")
        return b_.l
    def st_publish():
        a("s_lshl_b32 s36, s28, 4")
        a("s_add_u32 s36, s36, s29")
        a("s_lshl_b32 s36, s36, 10")
        a("s_lshl_b32 s37, s12, 8")
        a("s_add_u32 s36, s36, s37")
        a(f"v_lshlrev_b32 v{VA}, 6, v3")
        a(f"v_lshl_add_u32 v{VB}, v2, 4, v{VA}")
        a(f"v_lshrrev_b32 v{VC}, 2, v2")
        a(f"v_lshl_add_u32 v{VB}, v{VC}, 24, v{VB}")
        a(f"v_lshl_add_u32 v{VA}, v2, 10, v{VA}")
        for p_, src in ((1, QQ), (2, SS + 4), (3, QQ + 4)):
            a(f"v_cmp_eq_u32 vcc, {p_}, v2")
            for j in range(4): a(f"v_cndmask_b32 v{SS+j}, v{SS+j}, v{src+j}, vcc")
        a(f"buffer_store_dwordx4 {vr(SS)}, v{VB}, s[44:47], s36 offen sc0 sc1")
        vm.op("ST")
        a("s_lshl_b32 s68, s28, 14")
        a("s_add_u32 s68, s68, s37")
        prof_stamp(a, 8, PV)
    def poll_loads(track=True):
        for rb in range(2):
            a(f"buffer_load_dwordx4 {vr(SS+rb*4)}, v{VA}, s[44:47], s68 offen offset:{rb*32} sc0 sc1")
            a(f"buffer_load_dwordx4 {vr(QQ+rb*4)}, v{VA}, s[44:47], s68 offen offset:{rb*32+16} sc0 sc1")
            if track: vm.op("PL"); vm.op("PL")
    def poll_check():
        T = T0
        prof_stamp(a, 9, PV)
        vm.wait("PL")
        a("s_mov_b32 s38, 0")
        a.label("L_k4_spin")
        for i in range(0, 8, 2): a(pk("add", T + i, SS + i, QQ + i))
        a(pk("add", T, T, T + 2)); a(pk("add", T + 4, T + 4, T + 6)); a(pk("add", T, T, T + 4))
        a(f"v_cmp_u_f32 vcc, v{T}, v{T+1}")
        a("s_cmp_eq_u64 vcc, 0")
        a("s_cbranch_scc1 L_k4_go")
        a("s_add_u32 s38, s38, 1")
        a("s_cmp_lt_u32 s38, 0x20000")
        a("s_cbranch_scc0 L_k4_go")
        a("s_sleep 1")
        poll_loads(False)
        a("s_waitcnt vmcnt(0)")
        a("s_branch L_k4_spin")
        a.label("L_k4_go")
        prof_stamp(a, 10, PV)
    def norm_z2():
        b_ = Buf()
        b_.l.append(poll_check)
        row16_sum(b_, list(range(SS, SS + 16)))
        ln_scalars(b_, [(SS + i, QQ + i) for i in range(8)], 2304)
        b_("s_mul_i32 s70, s29, 576")
        b_("s_lshr_b32 s37, s33, 1")
        b_("s_mul_i32 s37, s37, 18")
        b_("s_add_u32 s70, s70, s37")
        b_("s_and_b32 s37, s33, 1")
        b_("s_add_u32 s70, s70, s37")
        b_("s_lshl_b32 s70, s70, 10")
        for nb in range(9):
            T = T0 + (nb & 1) * 8
            for p in range(4):
                t = T + 2 * p; hreg = HOLD2 + nb * 4 + p
                b_(f"v_lshlrev_b32 v{t}, 16, v{hreg}")
                b_(f"v_and_b32 v{t+1}, 0xffff0000, v{hreg}")
            for p in range(4): b_(pk("fma", T + 2 * p, T + 2 * p, QQ + 2 * p, SS + 2 * p))
            for p in range(4): b_(f"v_cvt_pk_bf16_f32 v{HOLD2+nb*4+p}, v{T+2*p}, v{T+2*p+1}")
            def st(nb=nb):
                a(f"s_add_u32 s37, s70, {nb*2048}")
                a(f"buffer_store_dwordx4 {vr(HOLD2+nb*4)}, v4, s[52:55], s37 offen" + (" sc0 sc1" if fused else ""))
                vm.op("Z2")
            b_.l.append(st)
        b_.l.append(lambda: prof_stamp(a, 11, PV))
        return b_.l
    units = [(p, ks, il) for p in range(6) for ks in range(18) for il in range(3)]
    for u, (p, ks, il) in enumerate(units): assert wp_unit(2 if p < 3 else 1, ks, 3 * (p % 3) + il) == u
    marks = set()
    valu = []
    def read(u):
        ci = chunk_of[u]
        if chunks[ci][0] == u:
            need(f"W{ci}")
            a("s_barrier")
            d = u - 1
            while d >= 0 and not lg.completed(f"R{d}"): d -= 1
            udone[0] = d + 1
            push_chunks(10000)
        pos = (u % R) * 1024
        a(f"ds_read_b128 {ar(WFA + (u % NBUF) * 4)}, v{4 + (pos >> 16)} offset:{pos & 0xffff}")
        lg.op(f"R{u}")
        credit[0] -= 5
    def emit_valu(budget, until=None):
        credit[0] += budget
        while valu and (credit[0] > 0 or (until and until not in marks)):
            it = valu.pop(0)
            if callable(it): it()
            elif it.startswith("MARK"): marks.add(it); continue
            else: a(it)
            credit[0] -= icost(it)
        if not valu: credit[0] = min(credit[0], 0)
    credit = [0.0]
    for u in range(DLA): read(u)
    credit[0] = 0
    prof_stamp(a, 1, PV)
    slot = 0
    for u, (p, ks, il) in enumerate(units):
        if u % 54 == 0 and p >= 2:
            emit_valu(0, until=f"MARK_E{p-2}"); credit[0] = 0
        if u % 54 == 0 and p >= 1: prof_stamp(a, 1 + p, PV)
        if p == 0 and il == 0: need(f"X{ks}")
        if u % 3 == 0: lg.wait(f"R{u+2}")
        if u == 15: valu.extend(stats_math())
        if u % 54 == 1 and p >= 1:
            valu.extend(epi(p - 1))
        if u == 300:
            poll_loads()
            if hook_late:
                vq.extend(hook_late())
        wf = ar(WFA + (u % NBUF) * 4)
        for rb in range(2):
            xa = ar((rb * 18 + ks) * 4)
            acc = ACCB[p & 1] + (il * 2 + rb) * 4
            if p < 3: a(f"v_mfma_f32_16x16x32_bf16 {vr(acc)}, {xa}, {wf}, {vr(acc) if ks else 0}")
            else: a(f"v_mfma_f32_16x16x32_bf16 {vr(acc)}, {wf}, {xa}, {vr(acc) if ks else 0}")
            if rb == 0 and u + DLA < 324: read(u + DLA)
            if slot % (VPACE if p else 2) == 1 and vq: vq.pop(0)[1](); credit[0] -= 5
            emit_valu(BUD)
            slot += 1
    assert not vq
    prof_stamp(a, 7, PV)
    if hook_end: hook_end()
    valu.extend(["s_nop 7"] + norm_z2() + epi(5, tail=True))
    while valu: emit_valu(1e9)
    return Z1P

def gen_k4():
    a = Asm()
    vm = VmTrack(a)
    common_prologue(a, 256, "L_k4_end")
    k4_body(a, vm, False)
    if PROF:
        a("s_waitcnt vmcnt(0)")
    for i in range(12, 14): prof_stamp(a, i, 1)
    prof_real(a, 15, 1)
    a.label("L_k4_end")
    a("s_endpgm")
    return a.text(), dict(vgpr=256, agpr=216, grid=256, block=256, lds=144 * 1024)
```

```python
from asmlib import *
from gen_common import *
from k4n import k4_body, LgTrack
F4_OFF = 0
F5_OFF = 65536
F6_OFF = 131072
EXP = int(os.environ.get("EXP", "0"))
STAG = int(os.environ.get("STAG", "0"))
INL = [False]
PMODE = int(os.environ.get("PMODE", "1"))
PSC = os.environ.get("PSC", " sc0 sc1")
PLD = os.environ.get("PLD", " sc0 sc1")
USC = os.environ.get("USC", " sc0 sc1")
FSC = os.environ.get("FSC", " sc0 sc1")
FLD = os.environ.get("FLD", " sc0 sc1")
def poll(a, vaddr, vt, srdn, soff, sc=" sc0 sc1"):
    a(f"buffer_load_dword v{vt}, v{vaddr}, s[{srdn}:{srdn+3}], {soff} offen" + sc)
def spin_flags(a, name, vaddr, vt, srdn, soff, sc=38, orm=None, pre=False, ld=" sc0 sc1"):
    a(f"s_mov_b32 s{sc}, 0")
    if pre: a(f"s_branch L_{name}_chk")
    a.label(f"L_{name}_spin")
    poll(a, vaddr, vt, srdn, soff, ld)
    a.label(f"L_{name}_chk")
    a("s_waitcnt vmcnt(0)")
    if orm is not None: a(f"v_and_b32 v{vt}, v{vt}, v{orm}")
    a(f"v_cmp_eq_u32 vcc, -1, v{vt}")
    a("s_cmp_eq_u64 vcc, 0")
    a(f"s_cbranch_scc1 L_{name}_go")
    a(f"s_add_u32 s{sc}, s{sc}, 1")
    a(f"s_cmp_lt_u32 s{sc}, 0x40000")
    a(f"s_cbranch_scc0 L_{name}_go")
    a("s_sleep 1")
    a(f"s_branch L_{name}_spin")
    a.label(f"L_{name}_go")

def k5_parts(a, vm, Z1):
    ZS = 18432
    AF = 0; BR = 88; ACC = 32
    BI = 196
    ZU = 160
    TB = 236
    OW = Z1
    zslot = lambda G: {29: 0, 30: 1, 31: 2}.get(G, G % 8)
    def bload(G, i):
        a(f"buffer_load_dwordx4 {ar(BR + (G % 8) * 16 + i * 4)}, v4, s[60:63], s71 offen offset:{i*1024}"); vm.op(f"G{G}")
    def badv(): a("s_add_u32 s71, s71, 4096")
    def early():
        def bias():
            srd(a, 56, 80, 81, 4096)
            a(f"v_lshlrev_b32 v{BI+2}, 1, v2")
            a("s_lshl_b32 s73, s33, 6")
            for rb in range(2):
                a(f"buffer_load_ushort v{BI+rb}, v{BI+2}, s[56:59], s73 offen offset:{rb*32}"); vm.op("WSP")
        return [("WSP", bias)]
    def late():
        srd(a, 60, 10, 11, 2048 * 4096, off_imm=WSPP_OFF)
        a("s_lshl_b32 s71, s33, 17")
        for G in range(2):
            for i in range(4): bload(G, i)
            badv()
    TOP = 8 * ZS
    POS = [s_ * ZS + h * 9216 for s_ in (5, 6, 7, 3, 4, 0, 1, 2) for h in range(2)] + [TOP, 5 * ZS]
    def blk5(pos, srdn, ss, tag):
        def ld(i):
            if i < 4: a(f"buffer_load_dwordx4 v4, s[{srdn}:{srdn+3}], s{ss} offen offset:{i*1024} lds")
            else: a(f"buffer_load_dwordx4 v7, s[{srdn}:{srdn+3}], s{ss} offen lds")
            vm.op(tag)
        return [('s', lambda: a(f"s_add_u32 m0, s72, {pos}"))] + [('v', lambda i=i: ld(i)) for i in range(4)] + \
               [('s', lambda: a(f"s_add_u32 m0, s72, {pos + 4096}")), ('v', lambda: ld(4))]
    def p6_pair(n):
        return [('s', lambda: a(f"s_add_u32 s70, s{64 + n//4}, {(n % 4) * 9216}"))] + blk5(POS[n], 20, 70, f"W{n+1}")
    def p6_single(n):
        def one(k):
            if k == 2: a("s_mov_b64 exec, 0xffff")
            a(f"buffer_load_dwordx4 v4, s[20:23], s70 offen offset:{k*1024} lds"); vm.op(f"W{n}")
            if k == 2: a("s_mov_b64 exec, -1")
        return [('s', lambda: a(f"s_add_u32 s70, s68, {(n - 16) * 9216}")), ('s', lambda: a(f"s_add_u32 m0, s69, {POS[n]}"))] + \
               [('v', lambda k=k: one(k)) for k in range(3)]
    def main():
        a("v_lshrrev_b32 v1, 4, v4")
        srd(a, 24, 10, 11, 196608, off_imm=FL_OFF)
        a("v_lshlrev_b32 v16, 6, v2")
        a("s_mul_i32 s36, s29, 1280")
        a(f"s_add_u32 s36, s36, {F4_OFF}")
        a("s_lshl_b32 s37, s28, 6")
        a("s_add_u32 s37, s37, s36")
        for i in range(4): a(f"v_mov_b32 v{20+i}, 1")
        a("v_lshrrev_b32 v18, 2, v0")
        a("v_lshlrev_b32 v18, 24, v18")
        a("v_add_u32 v18, v18, v4")
        vm.wait("Z2")
        a("s_barrier")
        a("buffer_store_dwordx4 v[20:23], v18, s[24:27], s37 offen sc0 sc1")
        prof_stamp(a, 12, 17)
        a("s_lshr_b32 s31, s12, 1")
        a("s_mul_i32 s31, s31, 9")
        a("s_and_b32 s32, s12, 1")
        a("s_lshl_b32 s32, s32, 2")
        a("s_add_u32 s72, s31, s32")
        a("s_lshl_b32 s72, s72, 10")
        a("s_mul_i32 s40, s29, 589824")
        a("s_add_u32 s40, s40, s72")
        a("v_add_u32 v7, 4096, v4")
        a("v_mov_b32 v12, v4")
        srd(a, 16, 10, 11, 2304 * 4096, off_imm=Z2T_OFF)
        srd(a, 52, 10, 11, 2304 * 4096, off_imm=U_OFF)
        srd(a, 20, 10, 11, 2592 * 1024, off_imm=WOP_OFF)
        for rb in range(2): a(f"v_lshlrev_b32 v{BI+rb}, 16, v{BI+rb}")
        for i in range(72): a(f"v_mov_b32 v{ACC+i}, v{BI + i // 36}")
        a("s_and_b32 s74, s29, 3")
        a("s_lshr_b32 s75, s29, 2")
        a("s_mul_i32 s69, s12, 2304")
        for pp in range(4):
            a(f"s_add_u32 s35, s75, {pp}")
            a("s_and_b32 s35, s35, 3")
            a("s_lshl_b32 s35, s35, 11")
            for wd in range(3): a(f"v_add_u32 v{TB+pp*3+wd}, s35, v{4+wd}")
        a(f"s_mul_i32 s34, s29, {18*9216}")
        for b in range(4):
            a(f"s_add_u32 s35, s74, {b}")
            a("s_and_b32 s35, s35, 3")
            a(f"s_mul_i32 s35, s35, {4*9216}")
            a("s_add_u32 s35, s35, s34")
            a(f"s_add_u32 s{64+b}, s35, s72")
        a(f"s_add_u32 s68, s34, {16*9216}")
        a("s_add_u32 s68, s68, s69")
        spin_flags(a, "f4", 16, 17, 24, "s36")
        prof_stamp(a, 13, 17)
        def group(G, withb=True):
            u = blk5(zslot(G) * ZS, 16, 40, f"G{G}") + [('s', lambda: a(f"s_add_u32 s40, s40, {ZS}"))]
            if withb: u += [('v', lambda i=i: bload(G, i)) for i in range(4)] + [('s', badv)]
            return u
        vm.ops.clear()
        for G in range(4):
            for k, f_ in group(G, G >= 2):
                f_()
                if k == 's': a("s_nop 0")
        def reads(q):
            r = []
            for fb in range(9):
                pos = zslot(q >> 1) * ZS + (fb * 2 + (q & 1)) * 1024
                r.append(f"ds_read_b128 {ar(AF + (q & 1) * 36 + fb * 4)}, v{4 + (pos >> 16)} offset:{pos & 0xffff}")
            return r
        pend = []; valu = []
        def kstep(q, vs):
            af = AF + (q & 1) * 36; bf = BR + ((q >> 1) % 8) * 16 + (q & 1) * 8
            rd = reads(q + 1) if q < 63 else []
            slot = 0
            for fb in range(9):
                for rb in range(2):
                    acc = ACC + (rb * 9 + fb) * 4
                    a(f"v_mfma_f32_16x16x32_bf16 {vr(acc)}, {ar(af+fb*4)}, {ar(bf+rb*4)}, {vr(acc)}")
                    if slot in vs and pend and pend[0][0] == 'v': pend.pop(0)[1]()
                    else:
                        if rd: a(rd.pop(0))
                        elif valu: a(valu.pop(0))
                        if pend and pend[0][0] == 's' and (not rd or slot + 1 in vs or (slot + 2 in vs and len(pend) > 1 and pend[1][0] == 's')): pend.pop(0)[1]()
                        elif valu and not rd: a(valu.pop(0))
                    slot += 1
            assert not rd
        VA = (3, 7, 11, 15); VB = (1, 5, 9, 13, 16)
        vm.wait("G0")
        a("s_barrier")
        PROF_K[0] += 1
        prof_init(a, 10); prof_real(a, 6, 17); prof_stamp(a, 0, 17); prof_stamp(a, 1, 17)
        for r in reads(0): a(r)
        a("s_mov_b32 s50, 0")
        a("s_waitcnt lgkmcnt(0)")
        kstep(0, ())
        a.label("L_k5_loop")
        for q in range(1, 17):
            if q & 1:
                a("s_waitcnt vmcnt(18) lgkmcnt(0)")
                a("s_barrier")
                pend.extend(group((q - 1) // 2 + 4))
            else:
                a("s_waitcnt lgkmcnt(0)")
            if q == 16: a("s_add_u32 s50, s50, 1")
            kstep(q, VA if q & 1 else VB)
            assert q & 1 or not pend, pend
        a("s_cmp_lt_u32 s50, 3")
        a("s_cbranch_scc1 L_k5_loop")
        prof_stamp(a, 2, 17)
        vm.ops[:] = ["G25"] * 9 + ["G26"] * 9 + ["G27"] * 9
        for q in range(49, 64):
            G = q >> 1
            vs = VA if q & 1 else VB
            if q & 1:
                if G < 31: vm.wait(f"G{G+1}")
                a("s_waitcnt lgkmcnt(0)")
                a("s_barrier")
                if G < 28: pend.extend(group(G + 4))
                elif G < 31: pend.extend(p6_pair(4 * (G - 28)) + p6_pair(4 * (G - 28) + 2))
                else: pend.extend(p6_pair(12) + p6_single(16))
                if q == 51:
                    for fb in range(9):
                        for rb in range(2):
                            for h in range(2):
                                zr = Z1 + fb * 4 + rb * 2 + h; t = ZU + (rb * 9 + fb) * 4 + 2 * h
                                valu.append(f"v_lshlrev_b32 v{t}, 16, v{zr}")
                                valu.append(f"v_and_b32 v{t+1}, 0xffff0000, v{zr}")
            else:
                a("s_waitcnt lgkmcnt(0)")
            if q >= 57: vs = (3, 6, 9, 12, 15) if q & 1 else (1, 4, 7, 10, 13, 16)
            if q == 63: vs = (2, 3, 4, 5, 7, 10, 12, 14)
            kstep(q, vs)
            assert q & 1 and q < 63 or not pend, (q, pend)
        assert not valu
        prof_stamp(a, 3, 17); prof_stamp(a, 4, 17); prof_stamp(a, 5, 17); prof_real(a, 7, 17)
        PROF_K[0] += 1
        prof_init(a, 10); prof_real(a, 10, 17); prof_stamp(a, 0, 17)
        a("s_mul_i32 s40, s33, 144")
        a("s_lshl_b32 s40, s40, 10")
        for b in range(4):
            a(f"s_add_u32 s35, s74, {b}")
            a("s_and_b32 s35, s35, 3")
            a("s_lshl_b32 s39, s75, 2")
            a("s_add_u32 s35, s35, s39")
            a("s_lshr_b32 s39, s35, 1")
            a("s_mul_i32 s39, s39, 9")
            a("s_and_b32 s35, s35, 1")
            a("s_lshl_b32 s35, s35, 2")
            a("s_add_u32 s35, s35, s39")
            a("s_lshl_b32 s35, s35, 10")
            a(f"s_add_u32 s{41+b}, s40, s35")
            if b == 0:
                a("s_lshl_b32 s39, s39, 10")
                a("s_add_u32 s45, s40, s39")
                a("s_and_b32 s39, s29, 1")
                a("s_lshl_b32 s39, s39, 9")
                a("s_add_u32 s45, s45, s39")
                a("s_add_u32 s45, s45, 8192")
                a(f"v_add_u32 v13, 73728, v12")
                a("v_lshrrev_b32 v14, 1, v12")
                a(f"v_add_u32 v15, 73728, v14")
        for i in range(5):
            for rb in range(2):
                for fb in ((2 * i, 2 * i + 1) if i < 4 else (8,)):
                    x = ACC + (rb * 9 + fb) * 4; t = ZU + (rb * 9 + fb) * 4
                    o = OW + i * 8 + rb * 4 + (fb & 1) * 2 if i < 4 else OW + 32 + rb * 2
                    for h in (0, 2): a(pk("mul", x + h, x + h, t + h))
                    for h in (0, 2): a(f"v_cvt_pk_bf16_f32 v{o+h//2}, v{x+h}, v{x+h+1}")
                if i < 4: a(f"buffer_store_dwordx4 {vr(OW+i*8+rb*4)}, v{12+rb}, s[52:55], s41 offen offset:{i*1024}" + USC)
                else: a(f"buffer_store_dwordx2 {vr(OW+32+rb*2,2)}, v{14+rb}, s[52:55], s45 offen" + USC)
                vm.op("U")
        vm.wait("W7")
        a("s_barrier")
        WF = 112; XF = 0
        def wread(n, f, d):
            full = POS[n] + (f & 1 if f < 8 else 8) * 1024
            base = (TB + (f >> 1) * 3 if f < 8 else 4) + (full >> 16)
            return f"ds_read_b128 {ar(d)}, v{base} offset:{full & 0xffff}"
        def trreads(n, fl): return [wread(n, f, WF + (n & 1) * 36 + f * 4) for f in fl]
        ALL = list(range(9)); FOR = list(range(2, 9))
        for r in trreads(0, ALL): a(r)
        pend.extend(p6_pair(14))
        a("s_lshl_b32 s46, s33, 2")
        a("s_add_u32 s46, s46, s75")
        a("s_lshl_b32 s46, s46, 8")
        a(f"s_add_u32 s46, s46, {F5_OFF}")
        a("s_lshl_b32 s35, s74, 6")
        a("s_add_u32 s47, s46, s35")
        a("v_and_b32 v16, 3, v1")
        a("v_cmp_eq_u32 vcc, s74, v16")
        a("v_cndmask_b32 v19, -1, 0, vcc")
        a("v_lshlrev_b32 v16, 6, v16")
        for i in range(4): a(f"v_mov_b32 v{22+i}, 1")
        a("v_lshrrev_b32 v18, 2, v1")
        a("v_lshlrev_b32 v18, 24, v18")
        a("v_add_u32 v18, v18, v4")
        a(f"s_mul_i32 s35, s75, {18*1024}")
        a("s_add_u32 s45, s40, s35")
        a("s_add_u32 s45, s45, 8192")
        prof_stamp(a, 1, 21)
        def xfrag(n, rb): return vr(OW + n * 8 + rb * 4) if n < 4 else ar(XF + (n - 4) * 8 + rb * 4)
        def pop_pend():
            x = pend.pop(0)
            x[1]() if isinstance(x, tuple) else x()
        def p6step(n, fl, rd):
            a("s_waitcnt lgkmcnt(0)")
            slot = 0
            for f in fl:
                for rb in range(2):
                    acc = ACC + (f * 2 + rb) * 4
                    a(f"v_mfma_f32_16x16x32_bf16 {vr(acc)}, {ar(WF+(n&1)*36+f*4)}, {xfrag(n, rb)}, {vr(acc) if n else 0}")
                    if slot % 3 == 2 and pend: pop_pend()
                    elif rd: a(rd.pop(0))
                    elif pend and slot % 2: pop_pend()
                    slot += 1
            assert not rd
        p6step(0, ALL, trreads(1, ALL)); p6step(1, ALL, trreads(2, ALL))
        prof_stamp(a, 2, 21)
        if PROF: vm.op("P"); vm.op("P")
        vm.wait("U")
        prof_stamp(a, 3, 21)
        a("buffer_store_dwordx4 v[22:25], v18, s[24:27], s47 offen" + FSC); vm.op("F5")
        p6step(2, ALL, trreads(3, ALL))
        poll(a, 16, 21, 24, "s46", FLD)
        p6step(3, ALL, trreads(4, FOR))
        assert not pend
        prof_stamp(a, 4, 27)
        spin_flags(a, "f5", 16, 21, 24, "s46", sc=39, orm=19, pre=True, ld=FLD)
        vm.ops.clear()
        if os.environ.get("UFAKE"): srd(a, 52, 10, 11, 2304 * 4096, off_imm=eval(os.environ["UFAKE"]))
        def xload(n):
            def one(rb):
                d = XF + (n - 4) * 8 + rb * 4
                if n < 16:
                    a(f"buffer_load_dwordx4 {ar(d)}, v{12+rb}, s[52:55], s{41 + n//4} offen offset:{(n%4)*1024}"); vm.op(f"X{n}")
                else:
                    if n == 17 and rb == 0: a(f"s_add_u32 s45, s45, {9*1024}")
                    for h in range(2):
                        a(f"buffer_load_dwordx2 {ar(d+2*h,2)}, v{14+rb}, s[52:55], s45 offen offset:{h*512}"); vm.op(f"X{n}")
            return [lambda rb=rb: one(rb) for rb in range(2)] if not EXP & 4 else []
        XA = int(os.environ.get("XA", "5"))
        for n in range(4, 4 + XA):
            for f_ in xload(n): f_()
        prof_stamp(a, 5, 21)
        RES = 104
        srd(a, 16, 10, 11, 128 * 18 * 1024, off_imm=H_OFF)
        srd(a, 60, 10, 11, 256 * 36864, off_imm=P_OFF)
        srd(a, 56, 84, 85, 2048 * 1152)
        a(f"s_mul_i32 s48, s33, {32*1152}")
        a("s_mul_i32 s39, s74, 288")
        a("s_add_u32 s48, s48, s39")
        a("s_lshl_b32 s39, s75, 6")
        a("s_add_u32 s49, s48, s39")
        a(f"s_mul_i32 s35, s33, {36*1024}")
        a("s_mul_i32 s34, s74, 9")
        a("v_add_u32 v20, 18432, v12")
        def res(i):
            if i < 2:
                a("s_lshl_b32 s39, s75, 1")
                a("s_add_u32 s39, s39, s34")
                a(f"s_add_u32 s39, s39, {i}")
            else: a("s_add_u32 s39, s34, 8")
            a("s_lshr_b32 s50, s39, 1")
            a("s_and_b32 s39, s39, 1")
            a(f"s_lshr_b32 s38, {sum(1 << k for k in HSPLIT):#x}, s50")
            a("s_lshl_b32 s50, s50, 10")
            a("s_bitcmp1_b32 s38, 0")
            a("s_cselect_b32 s38, 9, 3")
            a("s_lshl_b32 s39, s39, s38")
            a("s_add_u32 s50, s50, s39")
            a("s_add_u32 s50, s50, s35")
            a("s_lshr_b32 s38, s38, 3")
            a(f"v_lshrrev_b32 v{22+i}, s38, v12")
            a("s_add_u32 s39, s50, 18432")
            for rb in range(2):
                a(f"buffer_load_dwordx2 {vr(RES+4*i+2*rb,2)}, v{22+i}, s[16:19], s{39 if rb else 50} offen"); vm.op("RES")
        a("s_lshl_b32 s51, s28, 2")
        a("s_add_u32 s51, s51, s74")
        a("s_lshl_b32 s51, s51, 2")
        a("s_add_u32 s51, s51, s12")
        a("s_mul_i32 s51, s51, 36864")
        a("v_mul_u32_u24 v26, 1152, v2")
        a("v_lshl_add_u32 v26, v3, 3, v26")
        a(f"v_add_u32 v27, {16*1152}, v26")
        a("v_cmp_eq_u32 vcc, s75, v3")
        a("v_mov_b32 v31, 0x40000000")
        a("v_cndmask_b32 v31, v31, 0, vcc")
        a("v_add_u32 v28, v31, v26")
        a("v_add_u32 v29, v31, v27")
        a("v_add_u32 v30, v31, v12")
        for n in range(4, 18):
            if n + XA < 18: pend.extend(xload(n + XA))
            if n == 7:
                if not EXP & 2: a("s_barrier")
            if n == 9 and not EXP & 8: pend.extend(p6_single(17))
            if n == 14 and not EXP & 8: pend.extend([lambda i=i: res(i) for i in range(3)])
            if n == 16:
                if not EXP & 1: vm.wait("W17")
                if not EXP & 2: a("s_barrier")
            if not EXP & 1: vm.wait(f"X{n}")
            W2 = 184
            own = lambda n_: [wread(n_, f, W2 + ((n_ - 4) % 4) * 8 + f * 4) for f in range(2)]
            p6step(n, FOR, trreads(n + 1, FOR) if n < 17 else own(4) + own(5) + own(6))
        assert not pend
        prof_stamp(a, 6, 21)
        PT = 160
        snd = []
        for f in FOR:
            t0 = PT + (f - 2) * 4
            for rb in range(2):
                x = ACC + (f * 2 + rb) * 4
                for h in (0, 2): snd.append(f"v_cvt_pk_bf16_f32 v{t0+rb*2+h//2}, v{x+h}, v{x+h+1}")
            if f < 8:
                snd.append(f"s_lshl_b32 s39, s75, 1\ns_add_u32 s39, s39, {f}\ns_and_b32 s39, s39, 7\ns_lshl_b32 s39, s39, 2\ns_add_u32 s39, s39, s75")
            else: snd.append("s_add_u32 s39, s75, 32")
            snd.append(f"s_lshl_b32 s39, s39, 10\ns_add_u32 s39, s39, s51\nbuffer_store_dwordx4 {vr(t0)}, v12, s[60:63], s39 offen" + PSC)
        lg = LgTrack(a)
        for n_ in (4, 5, 6):
            for _ in range(2): lg.op(f"O{n_}")
        for n in range(4, 18):
            rd = own(n + 3) if n + 3 < 18 else []
            lg.wait(f"O{n}")
            for f in range(2):
                for rb in range(2):
                    acc = ACC + (f * 2 + rb) * 4
                    a(f"v_mfma_f32_16x16x32_bf16 {vr(acc)}, {ar(W2+((n-4)%4)*8+f*4)}, {xfrag(n, rb)}, {vr(acc)}")
                    for _ in range(3):
                        if snd: a(snd.pop(0))
                    if rd: a(rd.pop(0)); lg.op(f"O{n+3}")
        assert not snd
        for di in range(4):
            a(f"s_add_u32 s39, s75, {di}")
            a("s_and_b32 s39, s39, 3")
            a("s_lshl_b32 s35, s75, 3")
            a("s_add_u32 s39, s39, s35")
            a("s_lshl_b32 s39, s39, 10")
            a(f"s_add_u32 s{64+di}, s39, s51")
            a(f"s_add_u32 s{40+di}, s{64+di}, 4096")
        a("s_add_u32 s68, s51, 32768")
        prof_stamp(a, 7, 21)
        RC = 48; T = 116
        a("s_mov_b32 s39, 0")
        def chk(name, regs, nxt):
            a("s_waitcnt vmcnt(0)")
            a(f"v_max3_u32 v21, v{regs[0]}, v{regs[1]}, v{regs[2]}")
            for i in range(3, len(regs) - 1, 2): a(f"v_max3_u32 v21, v21, v{regs[i]}, v{regs[i+1]}")
            a(f"v_max_u32 v21, v21, v{regs[-1]}")
            a("v_cmp_eq_u32 vcc, -1, v21")
            a("s_cmp_eq_u64 vcc, 0")
            a(f"s_cbranch_scc1 {nxt}")
            a("s_add_u32 s39, s39, 1")
            a("s_cmp_lt_u32 s39, 0x4000")
            a(f"s_cbranch_scc0 {nxt}")
            a("s_sleep 1")
            a(f"s_branch {name}")
        def ld8():
            for sidx in range(4):
                a(f"buffer_load_dwordx4 {vr(RC+24+sidx*4)}, v30, s[60:63], s68 offen offset:{sidx*1024}" + PLD)
        def ld6():
            for di in range(1, 4):
                for f in range(2):
                    a(f"buffer_load_dwordx4 {vr(RC+(di-1)*8+f*4)}, v12, s[60:63], s{(40 if f else 64)+di} offen" + PLD)
        if PMODE == 0:
            a.label("L_p6_spin")
            ld6(); ld8()
            chk("L_p6_spin", list(range(RC, RC + 40)), "L_p6_go")
        else:
            a.label("L_p6_spin")
            ld8()
            chk("L_p6_spin", list(range(RC + 24, RC + 40)), "L_p6_spin2")
            a.label("L_p6_spin2")
            ld6()
            chk("L_p6_spin2", list(range(RC, RC + 24)), "L_p6_go")
        a.label("L_p6_go")
        prof_stamp(a, 8, 21)
        def unpack(dst, src, cnt):
            for i in range(cnt):
                a(f"v_lshlrev_b32 v{dst+2*i}, 16, v{src+i}")
                a(f"v_and_b32 v{dst+2*i+1}, 0xffff0000, v{src+i}")
        B8 = 88
        unpack(B8, RC + 24, 4)
        for di in range(3):
            unpack(T, RC + di * 8, 8); unpack(T + 16, RC + 28 + di * 4, 4)
            for i in range(0, 16, 2): a(pk("add", ACC + i, ACC + i, T + i))
            for i in range(0, 8, 2): a(pk("add", B8 + i, B8 + i, T + 16 + i))
        for i in range(8): a(f"v_cvt_pk_bf16_f32 v{RC+i}, v{ACC+2*i}, v{ACC+2*i+1}")
        for i in range(4): a(f"v_cvt_pk_bf16_f32 v{RC+8+i}, v{B8+2*i}, v{B8+2*i+1}")
        unpack(T, RC, 12); unpack(160, RES, 12)
        for i in range(0, 24, 2): a(pk("add", T + i, T + i, 160 + i))
        for i in range(3):
            for rb in range(2):
                o = RC + i * 4 + rb * 2
                for h in range(2): a(f"v_cvt_pk_bf16_f32 v{o+h}, v{T+i*8+rb*4+2*h}, v{T+i*8+rb*4+2*h+1}")
                if i < 2: a(f"buffer_store_dwordx2 {vr(o,2)}, v{26+rb}, s[56:59], s49 offen offset:{i*32}")
                else: a(f"buffer_store_dwordx2 {vr(o,2)}, v{28+rb}, s[56:59], s48 offen offset:256")
        if PROF: a("s_waitcnt vmcnt(0)")
        prof_stamp(a, 9, 21); prof_real(a, 11, 21)
    return early, late, main

def gen_kb():
    a = Asm()
    vm = VmTrack(a)
    common_prologue(a, 256, "L_kb_end")
    a("s_load_dwordx2 s[10:11], s[0:1], 80")
    a("s_load_dwordx4 s[76:79], s[0:1], 32")
    a("s_load_dwordx4 s[80:83], s[0:1], 48")
    a("s_load_dwordx2 s[84:85], s[0:1], 64")
    a("s_load_dwordx2 s[86:87], s[0:1], 0")
    if TOPPF:
        for _ in range(top_prefetch(a, "L_kb_pf0", "L_kb_end", 36, 254)): vm.op("PF")
    a.label("L_kb_pf0")
    early, late, main = k5_parts(a, vm, 116)
    Z1 = k4_body(a, vm, True, hook_late=early, hook_end=late)
    assert Z1 == 116
    prof_real(a, 15, 1)
    main()
    a.label("L_kb_end")
    a("s_endpgm")
    return a.text(), dict(vgpr=256, agpr=216, grid=256, block=256, lds=160 * 1024)
```
